```python
import torch

def _softmax(x, axis=-1):
    return torch.softmax(x, dim=axis)

def _gelu(x):
    return torch.nn.functional.gelu(x, approximate='tanh')

def _silu(x):
    return torch.nn.functional.silu(x)

def _sigmoid(x):
    return torch.sigmoid(x)

def _layernorm(x, axis=-1, eps=1e-05):
    m = x.mean(dim=axis, keepdim=True)
    v = x.var(dim=axis, keepdim=True, unbiased=False)
    return (x - m) / torch.sqrt(v + eps)

def _scatter_add(tgt, idx, src, axis=0):
    return tgt.clone().index_add_(axis, idx, src)

def _segment_sum(src, seg, n):
    out = torch.zeros((n,) + src.shape[1:], dtype=src.dtype)
    return out.index_add_(0, seg, src)

def _pad(x, pw):
    flat = tuple((v for pair in reversed(pw) for v in pair))
    return torch.nn.functional.pad(x, flat)
kernel_name = 'parallel_sum__memory_aug_recurrent_mem_tr__dense_activation_relu__prompt'

def setup_inputs():

    _w = lambda a: (lambda t: t.to(torch.bfloat16) if t.is_floating_point() else t)(torch.as_tensor(a))

    def _A_setup():
        B, S, Dm = (1, 2048, 1024)
        H, Dh = (32, 128)
        M, seg = (8, 32)
        seg = min(seg, S)
        S = S // seg * seg
        return {'x': _w((lambda *s: torch.randn(*s, dtype=torch.bfloat16) * 0.05)(B, S, Dm)), 'mem0': _w((lambda *s: torch.randn(*s, dtype=torch.bfloat16) * 1.6)(B, M, Dm)), 'Wq': _w((lambda *s: torch.randn(*s, dtype=torch.bfloat16) * 0.8)(Dm, H, Dh) * Dm ** (-0.5)), 'Wk': _w((lambda *s: torch.randn(*s, dtype=torch.bfloat16) * 0.8)(Dm, H, Dh) * Dm ** (-0.5)), 'Wv': _w((lambda *s: torch.randn(*s, dtype=torch.bfloat16) * 1.6)(Dm, H, Dh) * Dm ** (-0.5)), 'Wo': _w((lambda *s: torch.randn(*s, dtype=torch.bfloat16) * 1.6)(H, Dh, Dm) * (H * Dh) ** (-0.5)), 'seg_len': seg}
    _A_in = _A_setup()

    def _B_setup():
        B, S, D, Dff = (1, 2048, 1024, 3584)
        return {'x': _w((lambda *s: torch.randn(*s, dtype=torch.bfloat16) * 0.05)(B, S, D)), 'w1': _w((lambda *s: torch.randn(*s, dtype=torch.bfloat16) * 0.05)(D, Dff)), 'w2': _w((lambda *s: torch.randn(*s, dtype=torch.bfloat16) * 0.05)(Dff, D))}
    _B_in = _B_setup()
    return {'A_x': _A_in['x'], 'A_mem0': _A_in['mem0'], 'A_Wq': _A_in['Wq'], 'A_Wk': _A_in['Wk'], 'A_Wv': _A_in['Wv'], 'A_Wo': _A_in['Wo'], 'A_seg_len': _A_in['seg_len'], 'B_x': _B_in['x'], 'B_w1': _B_in['w1'], 'B_w2': _B_in['w2']}

def reference(A_x, A_mem0, A_Wq, A_Wk, A_Wv, A_Wo, A_seg_len, B_x, B_w1, B_w2):

    def _A_ref(x, mem0, Wq, Wk, Wv, Wo, seg_len):
        B, S, Dm = x.shape
        H, Dh = (Wq.shape[1], Wq.shape[2])
        M = mem0.shape[1]
        scale = Dh ** (-0.5)
        n_seg = S // seg_len
        L = M + seg_len
        idx = torch.arange(L)
        mask = (idx[:, None] < M) | (idx[:, None] >= idx[None, :])
        mem = mem0
        outs = []
        for s in range(n_seg):
            xs = x[:, s * seg_len:(s + 1) * seg_len, :].clone()
            h = torch.concatenate([mem, xs], axis=1)
            q = torch.einsum('btd,dhe->bhte', h, Wq)
            k = torch.einsum('btd,dhe->bhte', h, Wk)
            v = torch.einsum('btd,dhe->bhte', h, Wv)
            scores = torch.einsum('bhqe,bhke->bhqk', q, k) * scale
            scores = torch.where(mask[None, None], scores, -1000000000.0)
            p = _softmax(scores, axis=-1)
            o = torch.einsum('bhqk,bhke->bhqe', p, v)
            o = torch.einsum('bhte,hed->btd', o, Wo)
            mem = o[:, :M, :].clone()
            outs.append(o[:, M:, :])
        return torch.concatenate(outs, axis=1)

    def _B_ref(x, w1, w2):
        h = torch.einsum('bsd,df->bsf', x, w1)
        zero = torch.zeros_like(h)
        h = torch.maximum(h, zero)
        return torch.einsum('bsf,fd->bsd', h, w2)
    x = A_x
    xn = _layernorm(x, axis=-1)
    return x + _A_ref(xn, A_mem0, A_Wq, A_Wk, A_Wv, A_Wo, A_seg_len) + _B_ref(xn, B_w1, B_w2)
```

```python
class Asm:
    def __init__(self):
        self.lines = []
        self.tail = []
        self._uid = 0

    def __call__(self, s):
        for ln in s.split('\n'):
            ln = ln.strip()
            if ln:
                self.lines.append(ln)

    def label(self, name):
        self.lines.append(name + ':')

    def uid(self, p):
        self._uid += 1
        return '%s_%d' % (p, self._uid)

    def ool(self, s):
        for ln in s.split('\n'):
            ln = ln.strip()
            if ln:
                self.tail.append(ln)

    def flush_tail(self):
        self.lines += self.tail
        self.tail = []

    def text(self):
        out = []
        for ln in self.lines:
            if ln.endswith(':') or ln.startswith('.') or ln.startswith(';'):
                out.append(ln)
            else:
                out.append(' ' + ln)
        return '\n'.join(out) + '\n'


def v(i, n=1):
    return 'v%d' % i if n == 1 else 'v[%d:%d]' % (i, i + n - 1)


def a(i, n=1):
    return 'a%d' % i if n == 1 else 'a[%d:%d]' % (i, i + n - 1)


def s(i, n=1):
    return 's%d' % i if n == 1 else 's[%d:%d]' % (i, i + n - 1)


def R(spec, off=0, n=1):
    k, b = spec
    return (v if k == 'v' else a)(b + off, n)


def hx(x):
    return '0x%x' % (x & 0xffffffff)
```

```python
from common import *

SMF = 'v_smfmac_f32_16x16x64_bf16'
MF = 'v_mfma_f32_16x16x32_bf16'


def wait_bell(A, vbell, sbell, regs, sval):
    l = A.uid('wb')
    d = len(regs)
    ld = lambda k: A('buffer_load_dword %s, %s, %s, %s offen sc1' % (v(regs[k]), v(vbell), s(sWS, 4), s(sbell)))
    for k in range(d):
        ld(k)
    A.label(l)
    for k in range(d):
        A('s_waitcnt vmcnt(%d)' % (d - 1))
        A('v_cmp_gt_u32 vcc, %s, %s' % (s(sval), v(regs[k])))
        A('s_cbranch_vccz %s_ok' % l)
        ld(k)
    spin_fail(A)
    A('s_branch %s' % l)
    A.label(l + '_ok')


def dma_mem(A, vpoll, smem):
    for i in range(4):
        A('buffer_load_dwordx4 %s, %s, %s offen offset:%d sc1 lds' % (v(vpoll), s(sWS, 4), s(smem), 1024 * i))


def nan_net(A, cfg, lbl, back, pre, resume, vA, vpoll, smem, tmp, vt, snan, sver):
    o = A.ool
    o(lbl + ':')
    o('s_mov_b64 %s, 0' % s(snan, 2))
    o('s_mov_b64 vcc, 0')
    o('s_cmp_eq_u32 %s, %s' % (s(sver), s(sSTEP)))
    o('s_cbranch_scc1 %s' % back)
    o('s_mov_b32 %s, %s' % (s(sver), s(sSTEP)))
    if cfg.profile:
        o('s_add_u32 s98, s98, 1')
    o(lbl + '_again:')
    o('s_waitcnt vmcnt(0) lgkmcnt(0)')
    o('s_barrier')
    for i in range(4):
        o('buffer_load_dwordx4 %s, %s, %s offen offset:%d sc1 lds' % (v(vpoll), s(sWS, 4), s(smem), 1024 * i))
    o('s_sub_u32 %s, %s, 1\ns_cbranch_scc1 L_end' % (s(sBUD), s(sBUD)))
    o('s_waitcnt vmcnt(0)')
    o('s_barrier')
    o('v_mov_b32 %s, 0' % v(vt))
    for f in range(16):
        o('ds_read_b128 %s, %s offset:%d' % (v(tmp, 4), v(vA), 1024 * f))
        o('s_waitcnt lgkmcnt(0)')
        o('v_max3_u32 %s, %s, %s, %s' % (v(vt), v(vt), v(tmp), v(tmp + 1)))
        o('v_max3_u32 %s, %s, %s, %s' % (v(vt), v(vt), v(tmp + 2), v(tmp + 3)))
    o('v_cmp_eq_u32 vcc, -1, %s' % v(vt))
    o('s_cbranch_vccnz %s_again' % lbl)
    for x in pre:
        o(x)
    o('s_waitcnt lgkmcnt(0)')
    o('s_branch %s' % resume)


def ring(A, dst, reg, delta, stepb):
    mask = 3 * stepb
    A('s_add_u32 %s, %s, %d' % (s(dst), s(reg), (delta % 4) * stepb))
    A('s_and_b32 %s, %s, %d' % (s(dst), s(dst), mask))
    A('s_andn2_b32 %s, %s, %d' % (s(sT2), s(reg), mask))
    A('s_or_b32 %s, %s, %s' % (s(dst), s(dst), s(sT2)))


def ring_adv(A, reg, stepb):
    mask = 3 * stepb
    A('s_add_u32 %s, %s, %d' % (s(sT2), s(reg), stepb))
    A('s_and_b32 %s, %s, %d' % (s(sT2), s(sT2), mask))
    A('s_andn2_b32 %s, %s, %d' % (s(reg), s(reg), mask))
    A('s_or_b32 %s, %s, %s' % (s(reg), s(reg), s(sT2)))


FR = lambda n: 4 * (n & 3) + (n >> 2)


def gen_qk(A, cfg):
    vT = 1; vA = 2; vB = 3; vPoll = 4; vSamp = 5; vQTw = 6; vQTr = 7; vIdx = 8; vBias = 9; vO = 10
    vVM = 11; vL16 = 12; vOne = 13; vKMr = 14; vKMo = 15
    AR, BR, ACC, KX, VX = 16, 32, 56, 72, 104
    ONES, VM, LS = 112, 116, 124
    WK0 = 128
    sMem, sO, sVM, sKF, sVF, sKM, sSeen, sFlag, sG1, sBell = range(50, 60)
    sC, sNC, sRing = 60, 62, 63
    sNan, sVer, sNext = 64, 66, 67
    A.label('L_qk')
    A('s_lshl_b32 %s, %s, 4' % (s(sT1), s(sGRP)))
    A('s_add_u32 %s, %s, %s' % (s(sT1), s(sT1), s(sJ)))
    common_chain_init(A, vB, vKMr, vA, vOne, vIdx)
    gstamp(A, cfg, 0, vOne)
    srd(A, sSA, sWQ, 8 * MB)
    srd(A, sSB, sWK, 8 * MB)
    A('s_lshr_b32 %s, %s, 1' % (s(sT0), s(sWAVE)))
    A('s_lshl_b32 %s, %s, 1' % (s(sT2), s(sJ)))
    A('s_add_u32 %s, %s, %s' % (s(sT0), s(sT0), s(sT2)))
    A('s_lshl_b32 %s, %s, 10' % (s(sT0), s(sT0)))
    A('s_and_b32 %s, %s, 1' % (s(sT2), s(sWAVE)))
    A('s_lshl_b32 %s, %s, 7' % (s(sT2), s(sT2)))
    A('s_add_u32 %s, %s, %s' % (s(sT0), s(sT0), s(sT2)))
    A('v_lshlrev_b32 %s, 4, v0' % v(vL16))
    A('v_add_u32 %s, %s, %s' % (v(vO), s(sT0), v(vL16)))
    A('v_and_b32 v16, 8, v0')
    A('v_lshlrev_b32 v16, 27, v16')
    A('v_or_b32 %s, %s, v16' % (v(vO), v(vO)))
    A('v_lshrrev_b32 v17, 4, v0')
    A('v_lshlrev_b32 v17, 7, v17')
    A('v_and_b32 v18, 7, v0')
    A('v_lshl_add_u32 v17, v18, 4, v17')
    A('s_lshl_b32 %s, %s, 9' % (s(sT0), s(sWAVE)))
    A('v_add_u32 v17, %s, v17' % s(sT0))
    A('v_or_b32 %s, v17, v16' % v(vKMo))
    A('s_lshl_b32 %s, %s, 17' % (s(sO), s(sGRP)))
    A('s_add_u32 %s, %s, %d' % (s(sO), s(sO), OR_))
    A('s_lshl_b32 %s, %s, 16' % (s(sMem), s(sGRP)))
    A('s_add_u32 %s, %s, %d' % (s(sMem), s(sMem), MEMR))
    A('s_lshl_b32 %s, %s, 13' % (s(sVM), s(sT1)))
    A('s_add_u32 %s, %s, %d' % (s(sVM), s(sVM), VMR))
    A('s_lshl_b32 %s, %s, 13' % (s(sKF), s(sT1)))
    A('s_add_u32 %s, %s, %s' % (s(sVF), s(sKF), hx(VF)))
    A('s_add_u32 %s, %s, %s' % (s(sKF), s(sKF), hx(KF)))
    A('s_lshl_b32 %s, %s, 11' % (s(sT0), s(sWAVE)))
    A('s_add_u32 %s, %s, %s' % (s(sVF), s(sVF), s(sT0)))
    A('s_lshl_b32 %s, %s, 11' % (s(sKM), s(sT1)))
    A('s_add_u32 %s, %s, %s' % (s(sKM), s(sKM), hx(KMG)))
    A('s_lshl_b32 %s, %s, 7' % (s(sFlag), s(sT1)))
    A('s_add_u32 %s, %s, %d' % (s(sFlag), s(sFlag), CT_KM))
    A('s_lshl_b32 %s, %s, 10' % (s(sRing), s(sGRP)))
    A('s_lshl_b32 %s, %s, 8' % (s(sBell), s(sWAVE)))
    A('s_add_u32 %s, %s, %s' % (s(sBell), s(sBell), s(sRing)))
    A('s_add_u32 %s, %s, %d' % (s(sBell), s(sBell), CT_BELL))
    A('s_lshr_b32 %s, %s, 2' % (s(sT0), s(sJ)))
    A('s_lshl_b32 %s, %s, 8' % (s(sT0), s(sT0)))
    A('s_add_u32 %s, %s, %s' % (s(sRing), s(sRing), s(sT0)))
    A('s_and_b32 %s, %s, 3' % (s(sT0), s(sJ)))
    A('s_lshl_b32 %s, %s, 4' % (s(sT0), s(sT0)))
    A('s_add_u32 %s, %s, %s' % (s(sRing), s(sRing), s(sT0)))
    A('s_lshl_b32 %s, %s, 2' % (s(sT0), s(sWAVE)))
    A('s_add_u32 %s, %s, %s' % (s(sRing), s(sRing), s(sT0)))
    A('s_add_u32 %s, %s, %d' % (s(sRing), s(sRing), CT_BELL + 2048))
    A('s_lshl_b32 %s, %s, 8' % (s(sG1), s(sT1)))
    A('s_add_u32 %s, %s, %d' % (s(sG1), s(sG1), CT_G1 + 64 * 128))
    A('s_mov_b32 %s, %s' % (s(sC), hx(f2u(SC))))
    A('s_mov_b32 %s, %s' % (s(sC + 1), hx(f2u(SC))))
    A('s_mov_b32 %s, %s' % (s(sNC), hx(f2u(-SC))))
    for i in range(4):
        A('v_mov_b32 %s, -1' % v(20 + i))
    for sl in range(4):
        A('s_add_u32 %s, %s, %d' % (s(sT0), s(sO), sl * 32 * KB))
        A('buffer_store_dwordx4 v[20:23], %s, %s, %s offen sc1' % (v(vO), s(sWS, 4), s(sT0)))
    A('v_mov_b32 v24, 0')
    A('buffer_store_dword v24, %s, %s, %s offen sc1' % (v(vOne), s(sWS, 4), s(sFlag)))
    A('buffer_store_dword v24, %s, %s, %s offen sc1' % (v(vOne), s(sWS, 4), s(sRing)))
    lane_consts(A, 16, 17, 18)
    sparse_rowlane_mem(A, 19, 16, 17, 25)
    A('s_lshl_b32 %s, %s, 8' % (s(sT0), s(sT1)))
    A('s_lshl_b32 %s, %s, 6' % (s(sT2), s(sWAVE)))
    A('s_add_u32 %s, %s, %s' % (s(sT2), s(sT2), s(sT0)))
    vPair, vSing = 26, 27
    dma_offsets(A, vPair, vSing, 19, 18, 25, 13, sT2)
    ops = []
    for ks in range(16):
        for hb in range(2):
            for u in range(2):
                ops.append(dict(srd=sSA, voff=vPair, soff=(64 * ks + 32 * hb + 2 * u) * 8192,
                                reads=[(a((ks * 2 + t) * 8 + 4 * hb + 2 * u, 2), 512 * t) for t in range(2)]))
            ops.append(dict(srd=sSB, voff=vSing, soff=(64 * ks + 32 * hb) * 8192,
                            reads=[(v(WK0 + ks * 8 + 4 * hb + 2 * u, 2), 512 * u) for u in range(2)]))
            ops.append(dict(srd=sSB, voff=vSing, soff=(64 * ks + 32 * hb) * 8192 + 32, final=2 * ks + hb))

    def arrive(n):
        A('s_waitcnt vmcnt(%d)' % n)
        grid_arrive(A, 28, 29)
    weight_loader(A, ops, vB, vKMr, arrive, relayout=(32, 16))
    gstamp(A, cfg, 1, vOne)
    A('s_lshl_b32 %s, %s, 12' % (s(sT0), s(sWAVE)))
    A('v_add_u32 %s, %s, %s' % (v(vPoll), s(sT0), v(vL16)))
    A('v_and_b32 %s, 7, v0' % v(vSamp))
    A('v_lshlrev_b32 %s, 2, %s' % (v(vSamp), v(vSamp)))
    A('s_add_u32 m0, %s, %d' % (s(sT0), MS))
    A('v_lshrrev_b32 v16, 5, v0')
    A('v_lshlrev_b32 v16, 4, v16')
    A('v_and_b32 v17, 15, v0')
    A('v_add_u32 v16, v16, v17')
    A('v_lshlrev_b32 v16, 4, v16')
    A('v_bfe_u32 v17, v0, 4, 1')
    A('v_lshl_add_u32 v16, v17, 3, v16')
    A('s_lshl_b32 %s, %s, 9' % (s(sT0), s(sWAVE)))
    A('s_add_u32 %s, %s, %d' % (s(sT0), s(sT0), QT))
    A('v_add_u32 %s, %s, v16' % (v(vQTw), s(sT0)))
    A('v_lshrrev_b32 v16, 2, v0')
    A('v_lshlrev_b32 v16, 4, v16')
    A('v_and_b32 v17, 1, v0')
    A('v_lshl_add_u32 v16, v17, 3, v16')
    A('v_add_u32 %s, %d, v16' % (v(vQTr), QT))
    A('v_add_u32 %s, %s, v16' % (v(vKMr), s(sT0)))
    A('v_cmp_gt_u32 vcc, 32, v0')
    A('v_mov_b32 %s, 0xff800000' % v(vBias))
    A('s_nop 0')
    A('v_cndmask_b32 %s, %s, 0, vcc' % (v(vBias), v(vBias)))
    A('v_and_b32 v16, 31, v0')
    A('v_lshlrev_b32 v16, 3, v16')
    A('s_lshl_b32 %s, %s, 9' % (s(sT0), s(sWAVE)))
    A('v_add_u32 %s, %s, v16' % (v(vVM), s(sT0)))
    for i in range(4):
        A('v_mov_b32 %s, 0x3f803f80' % v(ONES + i))
    for t in range(2):
        A('v_mov_b32 %s, 0' % v(VM + 4 * t + 2))
        A('v_mov_b32 %s, 0' % v(VM + 4 * t + 3))
    grid_wait(A, 16, 17, cfg.narrive)
    group_local(A, 16, 17)
    A('s_barrier')
    A('s_mov_b32 %s, 0' % s(sSTEP))
    A('s_mov_b32 %s, 0' % s(sSeen))
    A('s_mov_b32 %s, -1' % s(sVer))
    A('s_mov_b32 s98, 0')

    def prefetch_kv(nxt):
        ok, l = A.uid('kvok'), A.uid('kvp')
        A('s_add_u32 %s, %s, %d' % (s(sT1), s(sSTEP), nxt))
        A.label(l)
        A('s_cmp_lt_u32 %s, %s' % (s(sT1), s(sSeen)))
        A('s_cbranch_scc1 %s' % ok)
        A('v_and_b32 v16, 1, v0')
        A('v_bfe_u32 v17, v0, 1, 1')
        A('v_lshlrev_b32 v16, 7, v16')
        A('v_lshl_add_u32 v16, v17, 13, v16')
        A('buffer_load_dword v17, v16, %s, %s offen sc1' % (s(sWS, 4), s(sG1)))
        A('s_waitcnt vmcnt(0)')
        A('v_readlane_b32 %s, v17, 0' % s(sSeen))
        for k in range(1, 4):
            A('v_readlane_b32 %s, v17, %d' % (s(sT0), k))
            A('s_min_u32 %s, %s, %s' % (s(sSeen), s(sSeen), s(sT0)))
        spin_fail(A)
        A('s_branch %s' % l)
        A.label(ok)
        for i in range(8):
            if i == 4:
                A('s_add_u32 %s, %s, 4096' % (s(sT0), s(sKF)))
            A('buffer_load_dwordx4 %s, %s, %s, %s offen offset:%d sc1' % (v(KX + 4 * i, 4), v(vL16), s(sWS, 4), s(sKF if i < 4 else sT0), 1024 * (i & 3)))
        for i in range(2):
            A('buffer_load_dwordx4 %s, %s, %s, %s offen offset:%d sc1' % (v(VX + 4 * i, 4), v(vL16), s(sWS, 4), s(sVF), 1024 * i))
        A('s_add_u32 %s, %s, %d' % (s(sKF), s(sKF), 256 * KB))
        A('s_add_u32 %s, %s, %d' % (s(sVF), s(sVF), 256 * KB))

    def bread(n):
        return ['ds_read_b128 %s, %s offset:%d' % (v(BR + 8 * (n % 3) + 4 * q, 4), v(vB), FR(n) * 2048 + 1024 * q) for q in range(2)]

    def aread(n):
        return 'ds_read_b128 %s, %s offset:%d' % (v(AR + 4 * (n % 4), 4), v(vA), FR(n) * 1024)

    prefetch_kv(0)
    gstamp(A, cfg, 2, vOne)
    A('s_cmp_eq_u32 %s, 1' % s(sLOCAL))
    A('s_cbranch_scc0 L_qk_step_g')
    for tag, sfx in (('l', ''), ('g', ' sc1')):
        step = 'L_qk_step_' + tag
        A.label(step)
        stamp(A, cfg, 0)
        pre = ['v_mov_b32 %s, 0' % v(ACC + i) for i in range(16)] + bread(0) + bread(1) + bread(2)
        RB = 'buffer_store_dword v71, %s, %s, %s offen%s' % (v(vOne), s(sWS, 4), s(sRing), sfx)
        for x in pre:
            A(x)
        if cfg.profile == 1 or 12 in cfg.stamps:
            A('s_waitcnt vmcnt(0)')
            stamp(A, cfg, 12)
        A('s_add_u32 %s, %s, 1' % (s(sNext), s(sSTEP)))
        A('s_waitcnt lgkmcnt(0)')
        stamp(A, cfg, 10)
        wait_bell(A, vSamp, sBell, [124, 125, 126, 127][:cfg.depth], sSTEP)
        dma_mem(A, vPoll, sMem)
        stamp(A, cfg, 1)
        A('s_waitcnt vmcnt(3)')
        A.label(step + '_go')
        A('s_barrier')
        stamp(A, cfg, 4)
        for n in range(4):
            A(aread(n))
        q = ['a0', 'a1', 'a2', 'a3']
        when = {n: max(n - 3, cfg.adelay[n // 4]) for n in range(4, 16)}
        for n in range(16):
            ks = FR(n)
            need = max(q.index('a%d' % n), max([i for i, x in enumerate(q) if x == 'b%d' % n] + [0]))
            A('s_waitcnt lgkmcnt(%d)' % (len(q) - 1 - need))
            Aop = v(AR + 4 * (n % 4), 4)
            mk1 = '%s %s, %s, %s, %s' % (SMF, v(ACC + 12, 4), Aop, v(BR + 8 * (n % 3), 8), v(vIdx))
            mq0 = '%s %s, %s, %s, %s' % (SMF, v(ACC, 4), Aop, a(ks * 16, 8), v(vIdx))
            mq1 = '%s %s, %s, %s, %s' % (SMF, v(ACC + 4, 4), Aop, a(ks * 16 + 8, 8), v(vIdx))
            mk0 = '%s %s, %s, %s, %s' % (SMF, v(ACC + 8, 4), Aop, v(WK0 + ks * 8, 8), v(vIdx))
            if n + 3 < 16:
                br = bread(n + 3)
                ar = [m for m in range(4, 16) if when[m] == n]
                A(mk1)
                for m in ar:
                    assert m - 4 < n
                    if m % 4 == 0:
                        A('s_waitcnt vmcnt(%d)' % (3 - m // 4))
                        A('s_barrier')
                    A(aread(m))
                    q.append('a%d' % m)
                A(mq0)
                A(br[0])
                A(mq1)
                A(br[1])
                A(mk0)
                q += ['b%d' % (n + 3)] * 2
            else:
                A(mq0); A(mq1); A(mk0); A(mk1)
        stamp(A, cfg, 5)
        for base, off in ((ACC, 0), (ACC + 8, 2048)):
            for r in range(4):
                A('v_permlane32_swap_b32 %s, %s' % (v(base + r), v(base + 4 + r)))
            for r in (0, 2):
                A('v_pk_add_f32 %s, %s, %s' % (v(base + r, 2), v(base + r, 2), v(base + 4 + r, 2)))
            A('v_cvt_pk_bf16_f32 %s, %s, %s' % (v(base + 4), v(base), v(base + 1)))
            A('v_cvt_pk_bf16_f32 %s, %s, %s' % (v(base + 5), v(base + 2), v(base + 3)))
            A('ds_write_b64 %s, %s offset:%d' % (v(vQTw), v(base + 4, 2), off))
        A('v_cmp_u_f32 vcc, %s, %s' % (v(ACC), v(ACC + 1)))
        A('v_cmp_u_f32 %s, %s, %s' % (s(sNan, 2), v(ACC + 2), v(ACC + 3)))
        A('s_waitcnt lgkmcnt(0)')
        A('s_barrier')
        stamp(A, cfg, 2)
        QFR, KFR = 16, 32
        A.label(step + '_ok')
        for ks in range(4):
            for u in range(2):
                A('ds_read_b64_tr_b16 %s, %s offset:%d' % (v(QFR + 4 * ks + 2 * u, 2), v(vQTr), (32 * ks + 16 * u) * 16))
        A('s_or_b64 vcc, vcc, %s' % s(sNan, 2))
        A('s_cmp_eq_u32 %s, %d' % (s(sSTEP), cfg.nsteps - 1))
        for ks in range(3):
            for u in range(2):
                A('ds_read_b64_tr_b16 %s, %s offset:%d' % (v(KFR + 4 * ks + 2 * u, 2), v(vQTr), 2048 + (32 * ks + 16 * u) * 16))
            if ks == 0:
                A('s_cbranch_vccnz %s_nan' % step)
            if ks == 1:
                A('s_cbranch_scc1 L_qk_last')
        nan_net(A, cfg, step + '_nan', step + '_ok', pre, step + '_go', vA, vPoll, sMem, AR, vT, sNan, sVer)
        S = ACC
        vml = ['buffer_load_dwordx2 %s, %s, %s, %s offen offset:%d sc1' % (v(VM + 4 * t, 2), v(vVM), s(sWS, 4), s(sVM), 256 * t) for t in range(2)]
        for ks in range(4):
            A('s_waitcnt lgkmcnt(%d)' % ((12, 12, 10, 8)[ks]))
            for jt in range(2):
                A('%s %s, %s, %s, %s' % (MF, v(S + 4 * jt, 4), v(KX + 16 * jt + 4 * ks, 4), v(QFR + 4 * ks, 4), v(S + 4 * jt, 4) if ks else '0'))
                if ks == 0:
                    A('ds_read_b64_tr_b16 %s, %s offset:%d' % (v(KFR + 12 + 2 * jt, 2), v(vQTr), 2048 + (96 + 16 * jt) * 16))
                if ks == 1 and cfg.vmat == 0:
                    A(vml[jt])
        A('s_waitcnt lgkmcnt(0)')
        stamp(A, cfg, 9)
        M, M2 = 68, 69
        PT, PM = 48, 52
        for ks in range(4):
            A('%s %s, %s, %s, %s' % (MF, v(S + 8, 4), v(KFR + 4 * ks, 4), v(QFR + 4 * ks, 4), v(S + 8, 4) if ks else '0'))
            if ks == 0:
                A('v_mov_b32 %s, 0' % v(PM + 2))
                A('v_mov_b32 %s, 0' % v(PM + 3))
            if ks == 1:
                A('v_mov_b32 v71, %s' % s(sNext))
            if ks == 2:
                A('v_max3_f32 %s, %s, %s, %s' % (v(M), v(S), v(S + 1), v(S + 2)))
                A('v_max3_f32 %s, %s, %s, %s' % (v(M), v(M), v(S + 3), v(S + 4)))
        A('v_max3_f32 %s, %s, %s, %s' % (v(M), v(M), v(S + 5), v(S + 6)))
        A('v_max_f32 %s, %s, %s' % (v(M), v(M), v(S + 7)))
        n = 6
        if cfg.vmat == 1:
            A(vml[0]); A(vml[1])
            n -= 2
        if cfg.ringat == 0:
            A(RB)
            n -= 1
        A('s_nop %d' % (n - 1))
        A('v_max3_f32 %s, %s, %s, %s' % (v(M), v(M), v(S + 8), v(S + 9)))
        A('v_max3_f32 %s, %s, %s, %s' % (v(M2), v(M), v(S + 10), v(S + 11)))
        A('v_max3_f32 %s, %s, %s, %s' % (v(M), v(M), v(S + 10), v(S + 11)))
        A('s_nop 1')
        A('v_permlane32_swap_b32 %s, %s' % (v(M), v(M2)))
        A('v_max_f32 %s, %s, %s' % (v(70), v(M), v(M2)))
        A('v_max_f32 %s, %s, %s' % (v(M), v(M), v(M2)))
        A('s_nop 1')
        A('v_permlane16_swap_b32 %s, %s' % (v(M), v(70)))
        A('v_max_f32 %s, %s, %s' % (v(M), v(M), v(70)))
        A('v_mul_f32 %s, %s, %s' % (v(M), s(sNC), v(M)))
        for i in range(0, 8, 2):
            A('v_pk_fma_f32 %s, %s, %s, %s op_sel_hi:[1,1,0]' % (v(S + i, 2), v(S + i, 2), s(sC, 2), v(M, 2)))
        A('v_add_f32 %s, %s, %s' % (v(70), v(M), v(vBias)))
        if cfg.ringat == 1:
            A(RB)
        for i in range(8):
            A('v_exp_f32 %s, %s' % (v(S + i), v(S + i)))
            if i in (2, 4, 6):
                A('v_cvt_pk_bf16_f32 %s, %s, %s' % (v(PT + i // 2 - 1), v(S + i - 2), v(S + i - 1)))
        A('v_pk_fma_f32 %s, %s, %s, %s op_sel_hi:[1,1,0]' % (v(S + 8, 2), v(S + 8, 2), s(sC, 2), v(70, 2)))
        A('v_cvt_pk_bf16_f32 %s, %s, %s' % (v(PT + 3), v(S + 6), v(S + 7)))
        A('v_pk_fma_f32 %s, %s, %s, %s op_sel_hi:[1,1,0]' % (v(S + 10, 2), v(S + 10, 2), s(sC, 2), v(70, 2)))
        A('v_exp_f32 %s, %s' % (v(S + 8), v(S + 8)))
        OA = 24
        A('%s %s, %s, %s, 0' % (MF, v(LS, 4), v(ONES, 4), v(PT, 4)))
        A('v_exp_f32 %s, %s' % (v(S + 9), v(S + 9)))
        A('%s %s, %s, %s, 0' % (MF, v(OA, 4), v(VX, 4), v(PT, 4)))
        A('v_exp_f32 %s, %s' % (v(S + 10), v(S + 10)))
        A('%s %s, %s, %s, 0' % (MF, v(OA + 4, 4), v(VX + 4, 4), v(PT, 4)))
        A('v_exp_f32 %s, %s' % (v(S + 11), v(S + 11)))
        l, d = A.uid('vm'), A.uid('vmd')
        stamp(A, cfg, 7)
        A('s_waitcnt vmcnt(%d)' % (1 if cfg.ringat < 2 else 0))
        A.label(l)
        A('v_max_u32 %s, %s, %s' % (v(vT), v(VM), v(VM + 4)))
        A('v_cmp_eq_u32 vcc, -1, %s' % v(vT))
        A('v_cvt_pk_bf16_f32 %s, %s, %s' % (v(PM), v(S + 8), v(S + 9)))
        A('v_cvt_pk_bf16_f32 %s, %s, %s' % (v(PM + 1), v(S + 10), v(S + 11)))
        A('s_nop 0')
        A('s_cbranch_vccnz %s' % d)
        A.ool(d + ':')
        for t in range(2):
            A.ool('buffer_load_dwordx2 %s, %s, %s, %s offen offset:%d sc1' % (v(VM + 4 * t, 2), v(vVM), s(sWS, 4), s(sVM), 256 * t))
        A.ool('s_sub_u32 %s, %s, 1\ns_cbranch_scc1 L_end\ns_waitcnt vmcnt(0)\ns_branch %s' % (s(sBUD), s(sBUD), l))
        stamp(A, cfg, 8)
        if cfg.ringat == 2:
            A(RB)
        A('%s %s, %s, %s, %s' % (MF, v(LS, 4), v(ONES, 4), v(PM, 4), v(LS, 4)))
        for t in range(2):
            A('%s %s, %s, %s, %s' % (MF, v(OA + 4 * t, 4), v(VM + 4 * t, 4), v(PM, 4), v(OA + 4 * t, 4)))
        A('s_nop 0')
        A('v_rcp_f32 %s, %s' % (v(M), v(LS)))
        A('s_nop 1')
        for i in range(0, 4, 2):
            A('v_pk_mul_f32 %s, %s, %s op_sel_hi:[1,0]' % (v(OA + i, 2), v(OA + i, 2), v(M, 2)))
        A('v_cvt_pk_bf16_f32 %s, %s, %s' % (v(OA), v(OA), v(OA + 1)))
        A('v_cvt_pk_bf16_f32 %s, %s, %s' % (v(OA + 1), v(OA + 2), v(OA + 3)))
        for i in range(4, 8, 2):
            A('v_pk_mul_f32 %s, %s, %s op_sel_hi:[1,0]' % (v(OA + i, 2), v(OA + i, 2), v(M, 2)))
        A('v_min_u32 %s, -2, %s' % (v(OA), v(OA)))
        A('v_cvt_pk_bf16_f32 %s, %s, %s' % (v(OA + 2), v(OA + 4), v(OA + 5)))
        A('v_cvt_pk_bf16_f32 %s, %s, %s' % (v(OA + 3), v(OA + 6), v(OA + 7)))
        A('buffer_store_dwordx4 %s, %s, %s, %s offen%s' % (v(OA, 4), v(vO), s(sWS, 4), s(sO), sfx))
        if cfg.ringat == 3:
            A(RB)
        stamp(A, cfg, 3)
        for u in range(2):
            A('ds_read_b64_tr_b16 %s, %s offset:%d' % (v(32 + 2 * u, 2), v(vKMr), 2048 + 256 * u))
        for i in range(4):
            A('v_mov_b32 %s, -1' % v(36 + i))
        ring(A, sT0, sO, -1, 32 * KB)
        A('buffer_store_dwordx4 v[36:39], %s, %s, %s offen%s' % (v(vO), s(sWS, 4), s(sT0), sfx))
        A('v_mov_b32 %s, %s' % (v(40), s(sSTEP)))
        A('buffer_store_dword v40, %s, %s, %s offen sc1' % (v(vOne), s(sWS, 4), s(sFlag)))
        A('s_waitcnt lgkmcnt(0)')
        if not cfg.nokm:
            A('buffer_store_dwordx4 v[32:35], %s, %s, %s offen sc1' % (v(vKMo), s(sWS, 4), s(sKM)))
        A('s_add_u32 %s, %s, %d' % (s(sKM), s(sKM), 64 * KB))
        if not cfg.nokv:
            prefetch_kv(1)
        stamp_flush(A, cfg, 15, vT, vOne)
        for reg, stepb in ((sO, 32 * KB), (sMem, 16 * KB), (sVM, 2 * KB)):
            ring_adv(A, reg, stepb)
        A('s_add_u32 %s, %s, 1' % (s(sSTEP), s(sSTEP)))
        A('s_branch %s' % step)
        A.flush_tail()
    A.label('L_qk_last')
    for u in range(2):
        A('ds_read_b64_tr_b16 %s, %s offset:%d' % (v(32 + 2 * u, 2), v(vKMr), 2048 + 256 * u))
    A('s_waitcnt lgkmcnt(0)')
    A('buffer_store_dwordx4 v[32:35], %s, %s, %s offen sc1' % (v(vKMo), s(sWS, 4), s(sKM)))
    A('s_waitcnt vmcnt(0)')
    A('s_barrier')
    gstamp(A, cfg, 3, vOne)
    A('v_mov_b32 v40, %d' % cfg.nsteps)
    A('buffer_store_dword v40, %s, %s, %s offen sc1' % (v(vOne), s(sWS, 4), s(sFlag)))
    A('s_branch L_end')


def gen_vo(A, cfg):
    vT = 1; vA = 2; vB = 3; vPoll = 4; vSamp = 5; vRw = 6; vRr = 7; vIdx = 8; vT16 = 9; vT8 = 10
    vVM = 11; vOp = 12; vOne = 13; vSp = 14; vRw2 = 15
    ACC, AR, SW = 16, 48, 64
    OP = 32
    WV0 = 128
    WV1 = 192
    sMem, sO, sVM, sVMG, sPart, sRem, sFlag, sO2, sMemW, sBell, sR0, sR1, sR2, sSel = range(50, 64)
    sNan, sVer, sNext, sRing, sBellO = 64, 66, 67, 26 + 1, 96
    A.label('L_vo')
    A('s_lshl_b32 %s, %s, 4' % (s(sT1), s(sGRP)))
    A('s_add_u32 %s, %s, %s' % (s(sT1), s(sT1), s(sJ)))
    common_chain_init(A, vB, vSp, vA, vOne, vIdx)
    gstamp(A, cfg, 0, vOne)
    srd(A, sSA, sWV, 8 * MB)
    srd(A, sSB, sWO, 8 * MB)
    A('s_and_b32 %s, %s, 1' % (s(sT0), s(sWAVE)))
    A('s_lshl_b32 %s, %s, 6' % (s(sT0), s(sT0)))
    A('v_add_u32 v16, %s, v0' % s(sT0))
    A('v_lshlrev_b32 %s, 4, v16' % v(vT16))
    A('v_lshlrev_b32 %s, 3, v16' % v(vT8))
    A('s_lshl_b32 %s, %s, 16' % (s(sMem), s(sGRP)))
    A('s_add_u32 %s, %s, %d' % (s(sMem), s(sMem), MEMR))
    A('s_lshl_b32 %s, %s, 10' % (s(sT0), s(sJ)))
    A('s_add_u32 %s, %s, %s' % (s(sMemW), s(sMem), s(sT0)))
    A('s_lshl_b32 %s, %s, 17' % (s(sO), s(sGRP)))
    A('s_add_u32 %s, %s, %d' % (s(sO), s(sO), OR_))
    A('s_lshl_b32 %s, %s, 13' % (s(sVM), s(sT1)))
    A('s_add_u32 %s, %s, %d' % (s(sVM), s(sVM), VMR))
    A('s_lshl_b32 %s, %s, 11' % (s(sVMG), s(sT1)))
    A('s_add_u32 %s, %s, %s' % (s(sVMG), s(sVMG), hx(VMG)))
    A('s_lshl_b32 %s, %s, 16' % (s(sRem), s(sT1)))
    A('s_xor_b32 %s, %s, %d' % (s(sPart), s(sRem), 16 << 16))
    A('s_add_u32 %s, %s, %s' % (s(sPart), s(sPart), hx(PART)))
    A('s_add_u32 %s, %s, %s' % (s(sRem), s(sRem), hx(PART)))
    A('s_lshl_b32 %s, %s, 7' % (s(sFlag), s(sT1)))
    A('s_add_u32 %s, %s, %d' % (s(sSel), s(sFlag), CT_SEL))
    A('s_add_u32 %s, %s, %d' % (s(sFlag), s(sFlag), CT_VM))
    A('s_lshl_b32 %s, %s, 10' % (s(sRing), s(sGRP)))
    A('s_lshl_b32 %s, %s, 8' % (s(sBell), s(sWAVE)))
    A('s_add_u32 %s, %s, %s' % (s(sBell), s(sBell), s(sRing)))
    A('s_add_u32 %s, %s, %d' % (s(sBell), s(sBell), CT_BELL))
    A('s_add_u32 %s, %s, 2048' % (s(sBellO), s(sBell)))
    A('s_lshr_b32 %s, %s, 2' % (s(sT0), s(sJ)))
    A('s_lshl_b32 %s, %s, 8' % (s(sT0), s(sT0)))
    A('s_add_u32 %s, %s, %s' % (s(sRing), s(sRing), s(sT0)))
    A('s_and_b32 %s, %s, 3' % (s(sT0), s(sJ)))
    A('s_lshl_b32 %s, %s, 3' % (s(sT0), s(sT0)))
    A('s_add_u32 %s, %s, %s' % (s(sRing), s(sRing), s(sT0)))
    A('s_and_b32 %s, %s, 1' % (s(sT0), s(sWAVE)))
    A('s_lshl_b32 %s, %s, 2' % (s(sT0), s(sT0)))
    A('s_add_u32 %s, %s, %s' % (s(sRing), s(sRing), s(sT0)))
    A('s_add_u32 %s, %s, %d' % (s(sRing), s(sRing), CT_BELL))
    A('s_lshl_b32 %s, %s, 9' % (s(sT0), s(sWAVE)))
    A('v_lshlrev_b32 %s, 3, v0' % v(vVM))
    A('v_add_u32 %s, %s, %s' % (v(vVM), s(sT0), v(vVM)))
    A('v_lshrrev_b32 v17, 4, v16')
    A('v_lshlrev_b32 v17, 3, v17')
    A('v_and_b32 v18, 1, v0')
    A('v_lshl_add_u32 v17, v18, 2, v17')
    A('v_bfe_u32 v18, v0, 1, 3')
    A('v_mul_u32_u24 v19, 320, v18')
    A('v_lshl_add_u32 v19, v17, 2, v19')
    A('v_add_u32 %s, %d, v19' % (v(vRr), RED))
    A('v_lshlrev_b32 v18, 11, v18')
    A('v_lshl_add_u32 v17, v17, 1, v18')
    A('s_lshl_b32 %s, %s, 7' % (s(sT0), s(sJ)))
    A('v_add_u32 v17, %s, v17' % s(sT0))
    A('global_load_dwordx2 v[18:19], v17, %s' % s(sMEM0, 2))
    for i in range(4):
        A('v_mov_b32 %s, -1' % v(20 + i))
    for sl in range(1, 4):
        A('s_add_u32 %s, %s, %d' % (s(sT0), s(sMemW), sl * 16 * KB))
        A('buffer_store_dwordx2 v[20:21], %s, %s, %s offen sc1' % (v(vT8), s(sWS, 4), s(sT0)))
    for sl in range(4):
        A('s_add_u32 %s, %s, %d' % (s(sT0), s(sVM), sl * 2 * KB))
        A('buffer_store_dwordx2 v[20:21], %s, %s, %s offen sc1' % (v(vVM), s(sWS, 4), s(sT0)))
    for k in range(8 * cfg.nrep):
        A('s_add_u32 %s, %s, %d' % (s(sT0), s(sRem), k * 2 * KB))
        A('buffer_store_dwordx4 v[20:23], %s, %s, %s offen sc1' % (v(vT16), s(sWS, 4), s(sT0)))
    A('buffer_store_dword v20, %s, %s, %s offen sc1' % (v(vOne), s(sWS, 4), s(sSel)))
    A('v_mov_b32 v24, 0')
    A('buffer_store_dword v24, %s, %s, %s offen sc1' % (v(vOne), s(sWS, 4), s(sFlag)))
    A('buffer_store_dword v24, %s, %s, %s offen sc1' % (v(vOne), s(sWS, 4), s(sRing)))
    A('s_waitcnt vmcnt(%d)' % (3 + 4 + 8 * cfg.nrep + 3))
    A('v_min_u32 v18, -2, v18')
    A('v_min_u32 v19, -2, v19')
    A('buffer_store_dwordx2 v[18:19], %s, %s, %s offen sc1' % (v(vT8), s(sWS, 4), s(sMemW)))
    A('s_add_u32 %s, %s, %d' % (s(sMemW), s(sMemW), 16 * KB))
    lane_consts(A, 16, 17, 24)
    sparse_rowlane_mem(A, 22, 16, 17, 25)
    A('s_lshl_b32 %s, %s, 8' % (s(sT0), s(sT1)))
    A('s_lshl_b32 %s, %s, 6' % (s(sT2), s(sWAVE)))
    A('s_add_u32 %s, %s, %s' % (s(sT2), s(sT2), s(sT0)))
    vPair, vSing, vPairO, vSingO = 26, 27, 30, 31
    dma_offsets(A, vPair, vSing, 22, 24, 25, 13, sT2)
    sparse_rowlane_o(A, 22, 16, 17, 25)
    A('s_lshl_b32 %s, %s, 22' % (s(sT0), s(sGRP)))
    A('s_lshl_b32 %s, %s, 20' % (s(sT2), s(sWAVE)))
    A('s_add_u32 %s, %s, %s' % (s(sT0), s(sT0), s(sT2)))
    A('s_lshl_b32 %s, %s, 7' % (s(sT2), s(sJ)))
    A('s_add_u32 %s, %s, %s' % (s(sT2), s(sT2), s(sT0)))
    dma_offsets(A, vPairO, vSingO, 22, 24, 25, 11, sT2)
    ops = []
    for ks in range(16):
        for hb in range(2):
            row = 64 * ks + 32 * hb
            if ks < 8:
                for u in range(2):
                    ops.append(dict(srd=sSA, voff=vPair, soff=(row + 2 * u) * 8192,
                                    reads=[(v(WV0 + ks * 8 + 4 * hb + 2 * u, 2), 0), (a(WV1 + ks * 8 + 4 * hb + 2 * u, 2), 512)]))
            else:
                ops.append(dict(srd=sSA, voff=vSing, soff=row * 8192,
                                reads=[(v(WV0 + ks * 8 + 4 * hb + 2 * u, 2), 512 * u) for u in range(2)]))
                ops.append(dict(srd=sSA, voff=vSing, soff=row * 8192 + 32, final=2 * (ks - 8) + hb))
    for ks in range(8):
        for hb in range(2):
            row = 64 * ks + 8 * hb
            for u in range(2):
                ops.append(dict(srd=sSB, voff=vPairO, soff=(row + 2 * u) * 2048,
                                reads=[(a((ks * 3 + t) * 8 + 4 * hb + 2 * u, 2), 512 * t) for t in range(2)]))
            ops.append(dict(srd=sSB, voff=vSingO, soff=row * 2048 + 64,
                            reads=[(a((ks * 3 + 2) * 8 + 4 * hb + 2 * u, 2), 512 * u) for u in range(2)]))
            ops.append(dict(srd=sSB, voff=vSingO, soff=row * 2048 + 96, final=16 + 2 * ks + hb))

    def arrive(n):
        A('s_waitcnt vmcnt(%d)' % n)
        grid_arrive(A, 28, 29)
    weight_loader(A, ops, vB, vSp, arrive, relayout=(32, 16))
    gstamp(A, cfg, 1, vOne)
    A('v_lshlrev_b32 v16, 4, v0')
    A('s_lshl_b32 %s, %s, 12' % (s(sT0), s(sWAVE)))
    A('v_add_u32 %s, %s, v16' % (v(vPoll), s(sT0)))
    A('v_and_b32 %s, 7, v0' % v(vSamp))
    A('v_lshlrev_b32 %s, 2, %s' % (v(vSamp), v(vSamp)))
    A('v_and_b32 %s, 15, v0' % v(vSp))
    A('v_lshlrev_b32 %s, 2, %s' % (v(vSp), v(vSp)))
    A('s_add_u32 m0, %s, %d' % (s(sT0), MS))
    A('s_lshl_b32 %s, %s, 13' % (s(sT0), s(sWAVE)))
    A('v_add_u32 %s, %s, v16' % (v(vOp), s(sT0)))
    A('v_lshrrev_b32 v16, 5, v0')
    A('v_lshlrev_b32 v16, 4, v16')
    A('v_and_b32 v17, 15, v0')
    A('v_add_u32 v16, v16, v17')
    A('v_lshlrev_b32 v16, 2, v16')
    A('v_bfe_u32 v17, v0, 4, 1')
    A('v_mul_u32_u24 v17, 1280, v17')
    A('v_add_u32 v16, v17, v16')
    A('s_mul_i32 %s, %s, 2560' % (s(sT0), s(sWAVE)))
    A('s_add_u32 %s, %s, %d' % (s(sT0), s(sT0), RED))
    A('v_add_u32 %s, %s, v16' % (v(vRw), s(sT0)))
    A('v_add_u32 %s, 128, %s' % (v(vRw2), v(vRw)))
    A('v_mov_b32 v17, %d' % RED)
    A('s_cmp_lg_u32 %s, 2' % s(sWAVE))
    A('s_cbranch_scc1 L_vo_nosel')
    for rep in range(2):
        for c in range(2):
            A('s_add_u32 %s, %s, %d' % (s(sT0), s(sRem), 8 * KB * c + 2 * KB * rep))
            A('s_memtime %s' % s(66, 2))
            A('s_waitcnt lgkmcnt(0)')
            A('buffer_load_dword v16, %s, %s, %s offen sc1' % (v(vOne), s(sWS, 4), s(sT0)))
            A('s_waitcnt vmcnt(0)')
            A('s_memtime %s' % s(68 if c else 64, 2))
            A('s_waitcnt lgkmcnt(0)')
            A('s_sub_u32 %s, %s, s66' % (s(68 if c else 64), s(68 if c else 64)))
    A('s_cmp_lt_u32 s68, s64')
    A('s_cselect_b32 %s, %d, 0' % (s(sT0), 8 * KB if cfg.near else 0))
    A('v_mov_b32 v16, %s' % s(sT0))
    A('buffer_store_dword v16, %s, %s, %s offen sc1' % (v(vOne), s(sWS, 4), s(sSel)))
    A('ds_write_b32 v17, v16')
    A('v_mov_b32 v18, -1')
    for rep in range(2):
        for c in range(2):
            A('s_add_u32 %s, %s, %d' % (s(sT0), s(sRem), 8 * KB * c + 2 * KB * rep))
            A('buffer_store_dword v18, %s, %s, %s offen sc1' % (v(vOne), s(sWS, 4), s(sT0)))
    A.label('L_vo_nosel')
    grid_wait(A, 16, 18, cfg.narrive)
    group_local(A, 16, 18)
    A('s_waitcnt lgkmcnt(0)')
    A('s_barrier')
    A('ds_read_b32 v16, v17')
    A('s_xor_b32 %s, %s, %d' % (s(sSel), s(sSel), 16 << 7))
    A('s_waitcnt lgkmcnt(0)')
    A('v_readfirstlane_b32 %s, v16' % s(sT0))
    A('s_add_u32 %s, %s, %s' % (s(sRem), s(sRem), s(sT0)))
    A.label('L_vo_sel')
    A('buffer_load_dword v16, %s, %s, %s offen sc1' % (v(vOne), s(sWS, 4), s(sSel)))
    spin_fail(A)
    A('s_waitcnt vmcnt(0)')
    A('v_readfirstlane_b32 %s, v16' % s(sT0))
    A('s_cmp_eq_u32 %s, -1' % s(sT0))
    A('s_cbranch_scc1 L_vo_sel')
    A('s_and_b32 %s, %s, %d' % (s(sT0), s(sT0), 8 * KB))
    A('s_add_u32 %s, %s, %s' % (s(sPart), s(sPart), s(sT0)))
    A('s_mov_b32 %s, 0' % s(sSTEP))
    A('s_mov_b32 %s, -1' % s(sVer))
    A('s_mov_b32 s98, 0')
    A('s_mov_b32 s97, 0')

    others = ((sO, 32 * KB), (sMemW, 16 * KB), (sVM, 2 * KB), (sPart, 2 * KB), (sRem, 2 * KB))
    sMask = 99

    def swap_in(base):
        for k in range(16):
            A('ds_read_b128 %s, %s offset:%d' % (v(SW + 4 * k, 4), v(vB), base + 1024 * k))

    def aread(ks):
        return 'ds_read_b128 %s, %s offset:%d' % (v(AR + 4 * (ks % 4), 4), v(vA), ks * 1024)

    def part_addr(base, hi, k):
        return (base if k < 1 else hi + k - 1), 0

    for reg, stepb in others:
        ring(A, sT0, reg, -1, stepb)
        A('s_mov_b32 %s, %s' % (s(reg), s(sT0)))
    A('s_lshr_b32 %s, %s, 1' % (s(sMask), s(sWAVE)))
    A('s_lshl_b32 %s, %s, 30' % (s(sMask), s(sMask)))
    gstamp(A, cfg, 2, vOne)
    A('s_cmp_eq_u32 %s, 1' % s(sLOCAL))
    A('s_cbranch_scc0 L_vo_step_g')
    for tag, sfx in (('l', ''), ('g', ' sc1')):
        step = 'L_vo_step_' + tag
        A.label(step)
        stamp(A, cfg, 0)
        wait_bell(A, vSamp, sBell, [32, 33, 34, 35][:cfg.vdepth], sSTEP)
        dma_mem(A, vPoll, sMem)
        stamp(A, cfg, 1)
        swap_in(0)
        for i in range(8):
            A('v_mov_b32 %s, 0' % v(ACC + i))
        for i in range(4):
            A('v_mov_b32 %s, -1' % v(ACC + 8 + i))
        A('v_mov_b32 %s, %s' % (v(ACC + 12), s(sSTEP)))
        A('v_or_b32 %s, %s, %s' % (v(ACC + 13), s(sMask), v(vT16)))
        A('s_mov_b32 %s, %s' % (s(sR1), s(sVM)))
        A('s_mov_b32 %s, %s' % (s(sR2), s(sRem)))
        for reg, stepb in others:
            ring_adv(A, reg, stepb)
        ring(A, sR0, sMemW, -2, 16 * KB)
        A('s_add_u32 %s, %s, 1' % (s(sNext), s(sSTEP)))
        A('s_waitcnt vmcnt(0) lgkmcnt(0)')
        A.label(step + '_go')
        A('s_barrier')
        for ks in range(4):
            A(aread(ks))
        house = ['buffer_store_dwordx2 %s, %s, %s, %s offen%s' % (v(ACC + 8, 2), v(vT8), s(sWS, 4), s(sR0), sfx),
                 'buffer_store_dwordx2 %s, %s, %s, %s offen%s' % (v(ACC + 8, 2), v(vVM), s(sWS, 4), s(sR1), sfx),
                 'buffer_store_dword %s, %s, %s, %s offen sc1' % (v(ACC + 12), v(vOne), s(sWS, 4), s(sFlag))]
        for k in range(cfg.nrep):
            house.append('s_add_u32 %s, %s, %d' % (s(sT1), s(sR2), 16 * KB * k))
            house.append('buffer_store_dwordx4 %s, %s, %s, %s offen sc1' % (v(ACC + 8, 4), v(ACC + 13), s(sWS, 4), s(sT1)))
        for ks in range(16):
            A('s_waitcnt lgkmcnt(%d)' % min(3, 15 - ks))
            Aop = v(AR + 4 * (ks % 4), 4)
            A('%s %s, %s, %s, %s' % (SMF, v(ACC, 4), Aop, v(WV0 + ks * 8, 8), v(vIdx)))
            if house:
                A(house.pop(0))
            A('%s %s, %s, %s, %s' % (SMF, v(ACC + 4, 4), Aop, a(WV1 + ks * 8, 8) if ks < 8 else v(SW + (ks - 8) * 8, 8), v(vIdx)))
            if ks + 4 < 16:
                A(aread(ks + 4))
        assert not house
        A('s_nop 7')
        for r in range(4):
            A('v_permlane32_swap_b32 %s, %s' % (v(ACC + r), v(ACC + 4 + r)))
        for r in (0, 2):
            A('v_pk_add_f32 %s, %s, %s' % (v(ACC + r, 2), v(ACC + r, 2), v(ACC + 4 + r, 2)))
        A('v_cmp_u_f32 vcc, %s, %s' % (v(ACC), v(ACC + 1)))
        A('v_cmp_u_f32 %s, %s, %s' % (s(sNan, 2), v(ACC + 2), v(ACC + 3)))
        A('v_cvt_pk_bf16_f32 %s, %s, %s' % (v(ACC + 4), v(ACC), v(ACC + 1)))
        A('v_cvt_pk_bf16_f32 %s, %s, %s' % (v(ACC + 5), v(ACC + 2), v(ACC + 3)))
        A('v_min_u32 %s, -2, %s' % (v(ACC + 4), v(ACC + 4)))
        A('s_or_b64 vcc, vcc, %s' % s(sNan, 2))
        A('s_cbranch_vccnz %s_nan' % step)
        A.label(step + '_ok')
        nan_net(A, cfg, step + '_nan', step + '_ok', ['v_mov_b32 %s, 0' % v(ACC + i) for i in range(8)], step + '_go', vA, vPoll, sMem, AR, vT, sNan, sVer)
        A('buffer_store_dwordx2 %s, %s, %s, %s offen%s' % (v(ACC + 4, 2), v(vVM), s(sWS, 4), s(sVM), sfx))
        if not cfg.nokm:
            A('buffer_store_dwordx2 %s, %s, %s, %s offen sc1' % (v(ACC + 4, 2), v(vVM), s(sWS, 4), s(sVMG)))
        A('s_add_u32 %s, %s, %d' % (s(sVMG), s(sVMG), 64 * KB))
        stamp(A, cfg, 2)
        A('s_cmp_eq_u32 %s, %d' % (s(sSTEP), cfg.nsteps - 1))
        A('s_cbranch_scc1 L_vo_last')
        swap_in(16 * KB)
        for i in range(16):
            A('v_mov_b32 %s, 0' % v(ACC + i))
        A('s_add_u32 %s, %s, 4096' % (s(sO2), s(sO)))
        for k in range(1, cfg.nrep):
            A('s_add_u32 %s, %s, %d' % (s(sR0 + k - 1), s(sPart), 16 * KB * k))

        def oload(p):
            return 'buffer_load_dwordx4 %s, %s, %s, %s offen offset:%d sc1' % (v(OP + 4 * p, 4), v(vOp), s(sWS, 4), s(sO if p < 4 else sO2), 1024 * (p & 3))

        def omf(p, t):
            B = a((p * 3 + t) * 8, 8) if t < 3 else v(SW + p * 8, 8)
            return '%s %s, %s, %s, %s' % (SMF, v(ACC + 4 * t, 4), v(OP + 4 * p, 4), B, v(vIdx))
        base = A.uid('op')
        A('v_mov_b32 v0, %s' % s(sNext))
        A('s_waitcnt lgkmcnt(0)')
        wait_bell(A, vSp, sBellO, [OP, OP + 1, OP + 2, OP + 3][:cfg.odepth], sNext)
        for p in range(8):
            A(oload(p))
        stamp(A, cfg, 9)
        for p in range(-1, 8):
            if p >= 0:
                A.label('%s_c%d' % (base, p))
                A(omf(p, 0))
                A(omf(p, 1))
            if p < 7:
                A('s_waitcnt vmcnt(%d)' % (6 - p))
                A('v_cmp_eq_u32 vcc, -1, %s' % v(OP + 4 * (p + 1)))
            if p >= 0:
                A(omf(p, 2))
                A(omf(p, 3))
            if p < 7:
                fix = '%s_f%d' % (base, p + 1)
                A('s_cbranch_vccnz %s' % fix)
                A.ool(fix + ':')
                if cfg.profile:
                    A.ool('s_add_u32 s97, s97, 1')
                for k in range(p + 1, 8):
                    A.ool(oload(k))
                A.ool('s_sub_u32 %s, %s, 1\ns_cbranch_scc1 L_end' % (s(sBUD), s(sBUD)))
                A.ool('s_waitcnt vmcnt(%d)' % (6 - p))
                A.ool('v_cmp_eq_u32 vcc, -1, %s' % v(OP + 4 * (p + 1)))
                A.ool('s_cbranch_vccnz %s' % fix)
                A.ool('s_branch %s_c%d' % (base, p + 1))
        A.label('%s_done' % base)
        stamp(A, cfg, 3)
        for tp in range(2):
            for r in range(4):
                A('v_permlane32_swap_b32 %s, %s' % (v(ACC + 8 * tp + r), v(ACC + 8 * tp + 4 + r)))
            for r in (0, 2):
                A('v_pk_add_f32 %s, %s, %s' % (v(ACC + 8 * tp + r, 2), v(ACC + 8 * tp + r, 2), v(ACC + 8 * tp + 4 + r, 2)))
            for r in (0, 2):
                A('ds_write2_b32 %s, %s, %s offset0:%d offset1:%d' % (v(vRw2 if tp else vRw), v(ACC + 8 * tp + r), v(ACC + 8 * tp + r + 1), 80 * r, 80 * r + 80))
        A('s_cmp_ge_u32 %s, 2' % s(sWAVE))
        A('s_waitcnt lgkmcnt(0)')
        A('s_barrier')
        stamp(A, cfg, 7)
        for p in range(4):
            A('ds_read_b128 %s, %s offset:%d' % (v(ACC + 4 * p, 4), v(vRr), 2560 * p))
        A('s_waitcnt lgkmcnt(2)')
        for c in (0, 2):
            A('v_pk_add_f32 %s, %s, %s' % (v(ACC + c, 2), v(ACC + c, 2), v(ACC + 4 + c, 2)))
        A('s_waitcnt lgkmcnt(0)')
        for c in (0, 2):
            A('v_pk_add_f32 %s, %s, %s' % (v(ACC + 8 + c, 2), v(ACC + 8 + c, 2), v(ACC + 12 + c, 2)))
        for c in (0, 2):
            A('v_pk_add_f32 %s, %s, %s' % (v(ACC + c, 2), v(ACC + c, 2), v(ACC + 8 + c, 2)))
        A('s_cbranch_scc1 %s_ld' % step)
        A('v_min_u32 %s, -2, %s' % (v(ACC), v(ACC)))
        for k in range(cfg.nrep):
            r, o = part_addr(sPart, sR0, k)
            A('buffer_store_dwordx4 %s, %s, %s, %s offen offset:%d sc1' % (v(ACC, 4), v(vT16), s(sWS, 4), s(r), o))
        stamp(A, cfg, 4)
        A('s_branch %s_fin' % step)
        A.label(step + '_ld')
        for k in range(1, cfg.nrep):
            A('s_add_u32 %s, %s, %d' % (s(sR0 + k - 1), s(sRem), 16 * KB * k))

        def rload(k):
            r, o = part_addr(sRem, sR0, k)
            return 'buffer_load_dwordx4 %s, %s, %s, %s offen offset:%d sc1' % (v(OP + 4 * k, 4), v(vT16), s(sWS, 4), s(r), o)
        stamp(A, cfg, 10)
        if cfg.profile:
            A('s_mov_b32 %s, 0' % s(sSTAMP + 22))
        for k in range(cfg.nrep):
            if cfg.rsleep[k]:
                A('s_sleep %d' % cfg.rsleep[k])
            A(rload(k))
        stamp(A, cfg, 8)
        got = A.uid('got')
        for k in range(cfg.nrep):
            if k == cfg.nrep - 1:
                A.label(got + '_l')
            A('s_waitcnt vmcnt(%d)' % (cfg.nrep - 1 - k))
            A('v_cmp_eq_u32 vcc, -1, %s' % v(OP + 4 * k))
            if k == 0:
                A('s_cbranch_vccnz %s_%s' % (got, 'n1' if cfg.nrep > 1 else 'again'))
                break
        for c in (0, 2):
            A('v_pk_add_f32 %s, %s, %s' % (v(ACC + c, 2), v(ACC + c, 2), v(OP + c, 2)))
        if cfg.profile:
            A('s_mov_b32 %s, 0' % s(sSTAMP + 12))
        A.label(got + '_fin')
        if cfg.mring == 0:
            A('buffer_store_dword v0, %s, %s, %s offen%s' % (v(vOne), s(sWS, 4), s(sRing), sfx))
        A('v_cvt_pk_bf16_f32 %s, %s, %s' % (v(ACC + 12), v(ACC), v(ACC + 1)))
        A('v_cvt_pk_bf16_f32 %s, %s, %s' % (v(ACC + 13), v(ACC + 2), v(ACC + 3)))
        A('v_min_u32 %s, -2, %s' % (v(ACC + 12), v(ACC + 12)))
        A('v_min_u32 %s, -2, %s' % (v(ACC + 13), v(ACC + 13)))
        A('buffer_store_dwordx2 %s, %s, %s, %s offen%s' % (v(ACC + 12, 2), v(vT8), s(sWS, 4), s(sMemW), sfx))
        if cfg.mring == 1:
            A('buffer_store_dword v0, %s, %s, %s offen%s' % (v(vOne), s(sWS, 4), s(sRing), sfx))
        for k in range(1, cfg.nrep):
            A.ool('%s_n%d:' % (got, k))
            A.ool('s_waitcnt vmcnt(%d)' % (cfg.nrep - 1 - k))
            A.ool('v_cmp_eq_u32 vcc, -1, %s' % v(OP + 4 * k))
            if k < cfg.nrep - 1:
                A.ool('s_cbranch_vccnz %s_n%d' % (got, k + 1))
            else:
                A.ool('s_cbranch_vccnz %s_again' % got)
            for c in (0, 2):
                A.ool('v_pk_add_f32 %s, %s, %s' % (v(ACC + c, 2), v(ACC + c, 2), v(OP + 4 * k + c, 2)))
            if cfg.profile:
                A.ool('s_mov_b32 %s, %d' % (s(sSTAMP + 12), k))
            A.ool('s_branch %s_fin' % got)
        A.ool(got + '_again:')
        if cfg.profile:
            A.ool('s_add_u32 %s, %s, 1' % (s(sSTAMP + 22), s(sSTAMP + 22)))
        A.ool(rload(cfg.nrep - 1))
        A.ool('s_sub_u32 %s, %s, 1\ns_cbranch_scc1 L_end\ns_branch %s_%s' % (s(sBUD), s(sBUD), got, 'n%d' % (cfg.nrep - 1) if cfg.nrep > 1 else 'l'))
        stamp(A, cfg, 5)
        A.label(step + '_fin')
        stamp_flush(A, cfg, 15, vT, vOne, wave=cfg.pwave)
        ring_adv(A, sMem, 16 * KB)
        A('s_add_u32 %s, %s, 1' % (s(sSTEP), s(sSTEP)))
        A('s_branch %s' % step)
        A.flush_tail()
    A.label('L_vo_last')
    A('s_waitcnt vmcnt(0)')
    A('s_barrier')
    gstamp(A, cfg, 3, vOne)
    A('v_mov_b32 v40, %d' % cfg.nsteps)
    A('buffer_store_dword v40, %s, %s, %s offen sc1' % (v(vOne), s(sWS, 4), s(sFlag)))
    A('s_branch L_end')
```

```python
from asmlib import *
from layout import *

sWG, sXCC = 2, 3
sX, sMEM0, sWQ, sWK, sWV, sWO, sW1, sW2, sOUT, sDBG, sWSP = 4, 6, 8, 10, 12, 14, 16, 18, 20, 22, 24
sBUD = 26
sWS = 28
sSA, sSB = 32, 36
sWAVE, sGRP, sJ, sSTEP, sLOCAL = 40, 41, 42, 43, 44
sRES, sSPARE = 45, 46
sT0, sT1, sT2 = 47, 48, 49
sSTAMP = 70

LDS_SPARE = 128 * KB
MS = 128 * KB
QT = 144 * KB
RED = 144 * KB

SC = 0.12751743


def f2u(x):
    import struct
    return struct.unpack('<I', struct.pack('<f', x))[0]


def srd(A, d, base, nbytes):
    A('s_mov_b32 %s, %s' % (s(d), s(base)))
    A('s_and_b32 %s, %s, 0xffff' % (s(d + 1), s(base + 1)))
    A('s_mov_b32 %s, %s' % (s(d + 2), hx(nbytes)))
    A('s_mov_b32 %s, 0x20000' % s(d + 3))


def spin_fail(A):
    A('s_sub_u32 %s, %s, 1' % (s(sBUD), s(sBUD)))
    A('s_cbranch_scc1 L_end')


def weight_loader(A, ops, vres, vspare, after_first=None, lag=3, nslots=40, relayout=None):
    staged = [o for o in ops if 'final' not in o]
    final = {o['final']: o for o in ops if 'final' in o}
    ns = len(staged)
    off = (nslots - 1 - (ns - 1)) % nslots
    slot = lambda i: (i + off) % nslots
    issued = []

    def issue(o, sl, ident):
        base, so = (sRES, sl * 1024) if sl < 32 else (sSPARE, (sl - 32) * 1024)
        if so:
            A('s_add_u32 m0, %s, %d' % (s(base), so))
        else:
            A('s_mov_b32 m0, %s' % s(base))
        A('s_mov_b32 %s, %s' % (s(sT0), hx(o['soff'])))
        A('buffer_load_dwordx4 %s, %s, %s offen lds' % (v(o['voff']), s(o['srd'], 4), s(sT0)))
        issued.append(ident)

    first = min(nslots, ns)
    for i in range(first):
        issue(staged[i], slot(i), i)
    if after_first:
        after_first(first)

    def refill(i):
        if i + nslots < ns:
            issue(staged[i + nslots], slot(i), i + nslots)
        elif slot(i) in final:
            issue(final.pop(slot(i)), slot(i), 'f')

    for i in range(ns):
        later = len(issued) - 1 - issued.index(i)
        A('s_waitcnt vmcnt(%d)' % later)
        sl = slot(i)
        for dst, o in staged[i]['reads']:
            if sl < 32:
                A('ds_read_b64_tr_b16 %s, %s offset:%d' % (dst, v(vres), sl * 1024 + o))
            else:
                A('ds_read_b64_tr_b16 %s, %s offset:%d' % (dst, v(vspare), (sl - 32) * 1024 + o))
        if i >= lag:
            A('s_waitcnt lgkmcnt(%d)' % (2 * lag))
            refill(i - lag)
    A('s_waitcnt lgkmcnt(0)')
    for i in range(max(ns - lag, 0), ns):
        refill(i)
    assert not final, final
    A('s_waitcnt vmcnt(0)')
    if relayout is not None:
        tmp, v16 = relayout
        A('v_lshlrev_b32 %s, 4, v0' % v(v16))
        A('v_add_u32 %s, %s, %s' % (v(v16), s(sRES), v(v16)))
        for g in range(0, 32, 4):
            for k in range(4):
                for u in range(2):
                    A('ds_read_b64_tr_b16 %s, %s offset:%d' % (v(tmp + 4 * k + 2 * u, 2), v(vres), (g + k) * 1024 + 512 * u))
            A('s_waitcnt lgkmcnt(0)')
            for k in range(4):
                A('ds_write_b128 %s, %s offset:%d' % (v(v16), v(tmp + 4 * k, 4), (g + k) * 1024))
            A('s_waitcnt lgkmcnt(0)')
        A('v_mov_b32 %s, %s' % (v(vres), v(v16)))


def grid_arrive(A, vz, vt):
    A('s_barrier')
    l = A.uid('arr')
    A('s_cmp_lg_u32 %s, 0' % s(sWAVE))
    A('s_cbranch_scc1 %s' % l)
    A('s_mov_b64 exec, 1')
    A('v_mov_b32 %s, 0' % v(vz))
    A('v_mov_b32 %s, 1' % v(vt))
    A('global_atomic_add %s, %s, %s sc1' % (v(vz), v(vt), s(sDBG, 2)))
    A('s_mov_b64 exec, -1')
    A.label(l)


def grid_wait(A, vz, vt, n, dbg_off=0):
    l, d = A.uid('gw'), A.uid('gwd')
    A('v_mov_b32 %s, 0' % v(vz))
    A.label(l)
    A('global_load_dword %s, %s, %s offset:%d sc1' % (v(vt), v(vz), s(sDBG, 2), dbg_off))
    A('s_waitcnt vmcnt(0)')
    A('v_readfirstlane_b32 %s, %s' % (s(sT0), v(vt)))
    A('s_cmp_ge_u32 %s, %d' % (s(sT0), n))
    A('s_cbranch_scc1 %s' % d)
    spin_fail(A)
    A('s_sleep 8')
    A('s_branch %s' % l)
    A.label(d)


def group_local(A, vt, vt2, stride_note=None):
    A('v_and_b32 %s, 31, v0' % v(vt))
    A('v_lshlrev_b32 %s, 5, %s' % (v(vt), v(vt)))
    A('s_and_b32 %s, %s, 7' % (s(sT0), s(sWG)))
    A('s_lshl_b32 %s, %s, 2' % (s(sT0), s(sT0)))
    A('s_add_u32 %s, %s, %d' % (s(sT0), s(sT0), CT_XCC))
    A('buffer_load_dword %s, %s, %s, %s offen sc1' % (v(vt2), v(vt), s(sWS, 4), s(sT0)))
    A('s_waitcnt vmcnt(0)')
    A('v_cmp_ne_u32 vcc, %s, %s' % (s(sXCC), v(vt2)))
    A('s_cmp_eq_u64 vcc, 0')
    A('s_cselect_b32 %s, 1, 0' % s(sLOCAL))


def xstore(A, instr):
    slow, back = A.uid('xs'), A.uid('xb')
    A('s_cmp_eq_u32 %s, 1' % s(sLOCAL))
    A('s_cbranch_scc0 %s' % slow)
    for i in instr:
        A(i)
    A.label(back)
    A.ool(slow + ':')
    for i in instr:
        A.ool(i + ' sc1')
    A.ool('s_branch %s' % back)


def stamp(A, cfg, k):
    if cfg.profile == 1 or (cfg.profile and (k == 0 or k in cfg.stamps)):
        A('%s %s' % ('s_memrealtime' if cfg.rt else 's_memtime', s(sSTAMP + 2 * k, 2)))
        A('s_waitcnt lgkmcnt(0)')


def stamp_flush(A, cfg, n, vt, vone, wave=0):
    if not cfg.profile:
        return
    l = A.uid('sf')
    A('s_lshl_b32 %s, %s, 2' % (s(sT0), s(sWG)))
    A('s_add_u32 %s, %s, %s' % (s(sT0), s(sT0), s(sWAVE)))
    A('s_lshl_b32 %s, %s, 12' % (s(sT0), s(sT0)))
    A('s_lshl_b32 %s, %s, 6' % (s(sT1), s(sSTEP)))
    A('s_add_u32 %s, %s, %s' % (s(sT0), s(sT0), s(sT1)))
    A('s_add_u32 %s, %s, %s' % (s(sT0), s(sT0), hx(STAMP)))
    for k in range(n):
        if cfg.profile != 1 and k not in (0, 6, 11, 13, 14) and k not in cfg.stamps:
            continue
        A('v_mov_b32 %s, %s' % (v(vt), s(97 if k == 13 else sSTAMP + 2 * k)))
        A('buffer_store_dword %s, %s, %s, %s offen offset:%d' % (v(vt), v(vone), s(sWS, 4), s(sT0), 4 * k))
        A('s_nop 1')
    A.label(l)


def check_regs(A, regs, vt):
    regs = list(regs)
    cur = None
    while regs:
        if cur is None:
            if len(regs) >= 3:
                A('v_max3_u32 %s, %s, %s, %s' % (v(vt), v(regs[0]), v(regs[1]), v(regs[2])))
                regs = regs[3:]
            elif len(regs) == 2:
                A('v_max_u32 %s, %s, %s' % (v(vt), v(regs[0]), v(regs[1])))
                regs = []
            else:
                A('v_cmp_eq_u32 vcc, -1, %s' % v(regs[0]))
                return
            cur = vt
        elif len(regs) >= 2:
            A('v_max3_u32 %s, %s, %s, %s' % (v(vt), v(vt), v(regs[0]), v(regs[1])))
            regs = regs[2:]
        else:
            A('v_max_u32 %s, %s, %s' % (v(vt), v(vt), v(regs[0])))
            regs = []
    A('v_cmp_eq_u32 vcc, -1, %s' % v(vt))


def poll_mem(A, cfg, P, vpoll, smem, vt):
    def rnd():
        for i in range(4):
            A('buffer_load_dwordx4 %s, %s, %s, %s offen offset:%d sc1' % (v(P + 4 * i, 4), v(vpoll), s(sWS, 4), s(smem), 1024 * i))
    l, d = A.uid('pm'), A.uid('pmd')
    rnd()
    if cfg.poll2:
        rnd()
    A.label(l)
    A('s_waitcnt vmcnt(%d)' % (4 if cfg.poll2 else 0))
    check_regs(A, range(P, P + 16), vt)
    A('s_cbranch_vccz %s' % d)
    rnd()
    spin_fail(A)
    A('s_branch %s' % l)
    A.label(d)


def lane_consts(A, vg, vr, vc):
    A('v_bfe_u32 %s, v0, 3, 2' % v(vg))
    A('v_bfe_u32 %s, v0, 1, 2' % v(vr))
    A('v_and_b32 %s, 1, v0' % v(vc))


def sparse_rowlane_mem(A, vd, vg, vr, vt):
    A('v_lshrrev_b32 %s, 1, %s' % (v(vd), v(vg)))
    A('v_lshlrev_b32 %s, 4, %s' % (v(vd), v(vd)))
    A('v_and_b32 %s, 1, %s' % (v(vt), v(vg)))
    A('v_lshl_add_u32 %s, %s, 2, %s' % (v(vd), v(vt), v(vd)))
    A('v_lshrrev_b32 %s, 1, %s' % (v(vt), v(vr)))
    A('v_lshl_add_u32 %s, %s, 3, %s' % (v(vd), v(vt), v(vd)))
    A('v_and_b32 %s, 1, %s' % (v(vt), v(vr)))
    A('v_add_u32 %s, %s, %s' % (v(vd), v(vt), v(vd)))


def sparse_rowlane_o(A, vd, vg, vr, vt):
    A('v_lshrrev_b32 %s, 1, %s' % (v(vd), v(vr)))
    A('v_lshlrev_b32 %s, 5, %s' % (v(vd), v(vd)))
    A('v_and_b32 %s, 1, %s' % (v(vt), v(vg)))
    A('v_lshl_add_u32 %s, %s, 4, %s' % (v(vd), v(vt), v(vd)))
    A('v_lshrrev_b32 %s, 1, %s' % (v(vt), v(vg)))
    A('v_lshl_add_u32 %s, %s, 2, %s' % (v(vd), v(vt), v(vd)))
    A('v_and_b32 %s, 1, %s' % (v(vt), v(vr)))
    A('v_add_u32 %s, %s, %s' % (v(vd), v(vt), v(vd)))


def dma_offsets(A, vpair, vsingle, vrow, vc, vt, lgstride, scol):
    A('v_lshlrev_b32 %s, %d, %s' % (v(vsingle), lgstride, v(vrow)))
    A('v_lshl_add_u32 %s, %s, 4, %s' % (v(vsingle), v(vc), v(vsingle)))
    A('v_add_u32 %s, %s, %s' % (v(vsingle), s(scol), v(vsingle)))
    A('v_lshrrev_b32 %s, 5, v0' % v(vt))
    A('v_lshl_add_u32 %s, %s, 5, %s' % (v(vpair), v(vt), v(vsingle)))
    A('v_lshl_add_u32 %s, %s, %d, %s' % (v(vsingle), v(vt), lgstride + 1, v(vsingle)))


def common_chain_init(A, vB, vSp, vA, vOne, vIdx):
    A('s_lshl_b32 %s, %s, 15' % (s(sRES), s(sWAVE)))
    A('s_lshl_b32 %s, %s, 13' % (s(sSPARE), s(sWAVE)))
    A('s_add_u32 %s, %s, %d' % (s(sSPARE), s(sSPARE), LDS_SPARE))
    A('v_lshlrev_b32 %s, 3, v0' % v(vB))
    A('v_add_u32 %s, %s, %s' % (v(vSp), s(sSPARE), v(vB)))
    A('v_add_u32 %s, %s, %s' % (v(vB), s(sRES), v(vB)))
    A('v_lshlrev_b32 %s, 4, v0' % v(vA))
    A('v_add_u32 %s, %d, %s' % (v(vA), MS, v(vA)))
    A('v_cmp_eq_u32 vcc, 0, v0')
    A('v_mov_b32 %s, %s' % (v(vOne), hx(OOB)))
    A('s_nop 0')
    A('v_cndmask_b32 %s, %s, 0, vcc' % (v(vOne), v(vOne)))
    A('v_and_b32 %s, 8, v0' % v(vIdx))
    A('v_cmp_eq_u32 vcc, 0, %s' % v(vIdx))
    A('v_mov_b32 %s, 0xeeee' % v(vIdx))
    A('v_mov_b32 v1, 0x4444')
    A('v_cndmask_b32 %s, %s, v1, vcc' % (v(vIdx), v(vIdx)))
    A('s_lshl_b32 %s, %s, 2' % (s(sT0), s(sWG)))
    A('s_add_u32 %s, %s, %d' % (s(sT0), s(sT0), CT_XCC))
    A('v_mov_b32 v1, %s' % s(sXCC))
    A('buffer_store_dword v1, %s, %s, %s offen sc1' % (v(vOne), s(sWS, 4), s(sT0)))


def gstamp(A, cfg, k, vone):
    if not cfg.profile:
        return
    A('s_memrealtime s[70:71]')
    A('s_memtime s[72:73]')
    A('s_lshl_b32 s74, %s, 2' % s(sWG))
    A('s_add_u32 s74, s74, %s' % s(sWAVE))
    A('s_lshl_b32 s74, s74, 12')
    A('s_add_u32 s74, s74, %s' % hx(STAMP + 63 * 64 + 8 * k))
    A('s_waitcnt lgkmcnt(0)')
    A('v_mov_b32 v1, s70')
    A('buffer_store_dword v1, %s, %s, s74 offen' % (v(vone), s(sWS, 4)))
    A('s_nop 1')
    A('v_mov_b32 v1, s72')
    A('buffer_store_dword v1, %s, %s, s74 offen offset:4' % (v(vone), s(sWS, 4)))
    A('s_nop 1')
```

```python
from common import *

MF = 'v_mfma_f32_16x16x32_bf16'
sC_, sGX, sGI = 50, 51, 52
sSrc, sDst, sDst2, sDstep, sIt, sEnd, sFlagA, sRelu, sM0 = 53, 54, 55, 56, 57, 58, 59, 60, 61
vOne, vL16, vRes, vSp, vPair, vA = 2, 3, 4, 5, 6, 7


def allred_g(A, op, x, y):
    for sw in ('v_permlane32_swap_b32', 'v_permlane16_swap_b32'):
        A('v_mov_b32 %s, %s' % (v(y), v(x)))
        A('s_nop 1')
        A('%s %s, %s' % (sw, v(x), v(y)))
        A('%s %s, %s, %s' % (op, v(x), v(x), v(y)))


def dense_offsets(A, vdst, natural, stride, scol):
    A('v_bfe_u32 v16, v0, 3, 2')
    A('v_bfe_u32 v17, v0, 1, 2')
    A('v_lshl_add_u32 v16, v16, %d, v17' % (3 if natural else 2))
    A('v_mul_u32_u24 v16, %d, v16' % stride)
    A('v_and_b32 v17, 1, v0')
    A('v_lshl_add_u32 v16, v17, 4, v16')
    A('v_lshrrev_b32 v17, 5, v0')
    A('v_lshl_add_u32 v16, v17, 5, v16')
    A('v_add_u32 %s, %s, v16' % (v(vdst), s(scol)))


def layernorm(A, cfg, sTile):
    X, F, T = 32, 64, 16
    LNS = LDS_SPARE + 7 * KB
    for i in range(32):
        A('v_lshlrev_b32 %s, 16, %s' % (v(F + 2 * i), v(X + i)))
        A('v_and_b32 %s, 0xffff0000, %s' % (v(F + 2 * i + 1), v(X + i)))
    A('v_and_b32 v20, 15, v0')
    A('v_lshlrev_b32 v20, 4, v20')
    A('v_add_u32 v20, %d, v20' % LNS)
    A('s_lshl_b32 %s, %s, 2' % (s(sT0), s(sWAVE)))
    A('v_add_u32 v21, %s, v20' % s(sT0))

    def total(off):
        A('v_add_f32 v16, v16, v17')
        allred_g(A, 'v_add_f32', 16, 17)
        A('ds_write_b32 v21, v16 offset:%d' % off)
        A('s_waitcnt lgkmcnt(0)')
        A('s_barrier')
        A('ds_read_b128 v[16:19], v20 offset:%d' % off)
        A('s_waitcnt lgkmcnt(0)')
        A('v_add_f32 v16, v16, v17')
        A('v_add_f32 v18, v18, v19')
        A('v_add_f32 v16, v16, v18')
        A('v_mul_f32 v16, 0x3a800000, v16')
    A('v_pk_add_f32 v[16:17], %s, %s' % (v(F, 2), v(F + 2, 2)))
    for i in range(2, 32):
        A('v_pk_add_f32 v[16:17], v[16:17], %s' % v(F + 2 * i, 2))
    total(0)
    A('v_mov_b32 v22, v16')
    A('v_cvt_pk_bf16_f32 v24, v16, v16')
    A('v_and_b32 v24, 0xffff0000, v24')
    for i in range(32):
        A('v_pk_add_f32 v[18:19], %s, v[22:23] op_sel_hi:[1,0] neg_lo:[0,1] neg_hi:[0,1]' % v(F + 2 * i, 2))
        if i == 0:
            A('v_pk_mul_f32 v[16:17], v[18:19], v[18:19]')
        else:
            A('v_pk_fma_f32 v[16:17], v[18:19], v[18:19], v[16:17]')
    total(256)
    A('v_cvt_pk_bf16_f32 v16, v16, v16')
    A('v_and_b32 v16, 0xffff0000, v16')
    A('v_add_f32 v16, 0x3727c5ac, v16')
    A('v_cvt_pk_bf16_f32 v16, v16, v16')
    A('v_and_b32 v16, 0xffff0000, v16')
    A('v_sqrt_f32 v16, v16')
    A('s_nop 0')
    A('v_cvt_pk_bf16_f32 v16, v16, v16')
    A('v_and_b32 v16, 0xffff0000, v16')
    A('v_rcp_f32 v26, v16')
    for i in range(32):
        A('v_pk_add_f32 v[18:19], %s, v[24:25] op_sel_hi:[1,0] neg_lo:[0,1] neg_hi:[0,1]' % v(F + 2 * i, 2))
        A('v_cvt_pk_bf16_f32 v17, v18, v19')
        A('v_lshlrev_b32 v18, 16, v17')
        A('v_and_b32 v19, 0xffff0000, v17')
        A('v_pk_mul_f32 v[18:19], v[18:19], v[26:27] op_sel_hi:[1,0]')
        A('v_cvt_pk_bf16_f32 %s, v18, v19' % v(X + i))
    A('s_lshl_b32 %s, %s, 15' % (s(sT0), s(sTile)))
    A('s_lshl_b32 %s, %s, 13' % (s(sT1), s(sWAVE)))
    A('s_add_u32 %s, %s, %s' % (s(sT0), s(sT0), s(sT1)))
    A('s_add_u32 %s, %s, %s' % (s(sT0), s(sT0), hx(XNF)))
    for i in range(8):
        if i == 4:
            A('s_add_u32 %s, %s, 4096' % (s(sT0), s(sT0)))
        A('buffer_store_dwordx4 %s, %s, %s, %s offen offset:%d sc1' % (v(X + 4 * i, 4), v(vL16), s(sWS, 4), s(sT0), 1024 * (i & 3)))


def proj_ops(stride):
    return [dict(srd=sSA, voff=vPair, soff=(32 * ks + 4 * u) * stride,
                 reads=[(a((ks * 2 + t) * 4 + 2 * u, 2), 512 * t) for t in range(2)])
            for ks in range(32) for u in range(2)]


def proj_loop(A, cfg, tag, swapped, flag):
    ACC, AR, PK = (16, 32), 48, 80

    def dma(c):
        out = ['s_add_u32 m0, %s, %d' % (s(sM0), (c % 8) * 16 * KB) if c % 8 else 's_mov_b32 m0, %s' % s(sM0),
               's_nop 0']
        out += ['buffer_load_dwordx4 %s, %s, %s offen offset:%d sc1 lds' % (v(vL16), s(sWS, 4), s(sSrc), 1024 * i) for i in range(4)]
        out.append('s_add_u32 %s, %s, %d' % (s(sSrc), s(sSrc), 4096 if c % 8 != 7 else 128 * KB - 7 * 4096))
        return out

    def aread(c, j):
        base = (c % 8) * 16 * KB + j * 1024
        reg, off = (vA, base) if base < 64 * KB else (vA + 1, base - 64 * KB)
        return ['ds_read_b128 %s, %s offset:%d' % (v(AR + 8 * j + 4 * rt, 4), v(reg), off + 4096 * rt) for rt in range(2)]

    def epilogue(acc):
        out = []
        for x in range(2):
            for h in range(4):
                out.append('v_cvt_pk_bf16_f32 %s, %s, %s' % (v(PK + 4 * x + h), v(acc + 8 * x + 2 * h), v(acc + 8 * x + 2 * h + 1)))
            if swapped:
                for h in range(4):
                    out.append('v_pk_max_i16 %s, %s, %s' % (v(PK + 4 * x + h), v(PK + 4 * x + h), s(sRelu)))
            out.append('buffer_store_dwordx4 %s, %s, %s, %s offen sc1' % (v(PK + 4 * x, 4), v(vL16), s(sWS, 4), s(sDst2 if x else sDst)))
        out.append('s_add_u32 %s, %s, %s' % (s(sDst), s(sDst), s(sDstep)))
        out.append('s_add_u32 %s, %s, %s' % (s(sDst2), s(sDst2), s(sDstep)))
        return out

    A('s_lshl_b32 %s, %s, 12' % (s(sM0), s(sWAVE)))
    for c in range(7):
        for x in dma(c):
            A(x)
    A('s_waitcnt vmcnt(24)')
    A('s_barrier')
    for j in range(2):
        for x in aread(0, j):
            A(x)
    top = 'L_%s_top' % tag
    for first in (True, False):
        if not first:
            A.label(top)
        for half in ((0,) if first else (1, 0)):
            acc, prev = ACC[half], ACC[1 - half]
            for c in range(8):
                for j in range(4):
                    ks = 4 * c + j
                    fill = []
                    if j == 2:
                        extra = 0 if first else (2 if c <= 5 else flag if c == 7 else 0)
                        fill += ['s_waitcnt vmcnt(%d)' % (20 + extra), 's_barrier']
                    nc, nj = (c, j + 2) if j < 2 else (c + 1, j - 2)
                    rd = aread(nc, nj)
                    late = []
                    if j == 2:
                        late = dma(c + 7)
                    if not first and c == 0 and j < 2:
                        ep = epilogue(prev)
                        n = len(ep) // 2 - 1
                        late = ep[:n] if j == 0 else ep[n:]
                    if not first and flag and c == 7 and j == 0:
                        late = ['s_lshl_b32 %s, %s, 1' % (s(sT0), s(sIt)),
                                'v_mov_b32 v1, %s' % s(sT0),
                                'buffer_store_dword v1, %s, %s, %s offen sc1' % (v(vOne), s(sWS, 4), s(sFlagA))]
                    A('s_waitcnt lgkmcnt(2)')
                    seq = fill + rd + late
                    per = [seq[:len(fill) + 1], seq[len(fill) + 1:len(fill) + 2]]
                    rest = seq[len(fill) + 2:]
                    h = (len(rest) + 1) // 2
                    per += [rest[:h], rest[h:]]
                    m = 0
                    for x in range(2):
                        for y in range(2):
                            rt, ct = (x, y) if swapped else (y, x)
                            W, Xf = a((ks * 2 + ct) * 4, 4), v(AR + 8 * j + 4 * rt, 4)
                            D = v(acc + 8 * x + 4 * y, 4)
                            A('%s %s, %s, %s, %s' % ((MF, D) + ((W, Xf) if swapped else (Xf, W)) + (D if ks else '0',)))
                            for z in per[m]:
                                A(z)
                            m += 1
            A('s_add_u32 %s, %s, 1' % (s(sIt), s(sIt)))
            A('s_cmp_eq_u32 %s, %s' % (s(sIt), s(sEnd)))
            A('s_cbranch_scc1 L_%s_end%d' % (tag, half))
        if not first:
            A('s_branch %s' % top)
    for half in range(2):
        A.label('L_%s_end%d' % (tag, half))
        A('s_nop 7')
        for x in epilogue(ACC[half]):
            A(x)
        if half == 0:
            A('s_branch L_%s_done' % tag)
    A.label('L_%s_done' % tag)
    A('s_waitcnt vmcnt(0) lgkmcnt(0)')
    A('s_barrier')
    if flag:
        A('v_mov_b32 v1, 64')
        A('buffer_store_dword v1, %s, %s, %s offen sc1' % (v(vOne), s(sWS, 4), s(sFlagA)))


def counter_arrive(A, off):
    l = A.uid('arr')
    A('s_cmp_lg_u32 %s, 0' % s(sWAVE))
    A('s_cbranch_scc1 %s' % l)
    A('s_mov_b64 exec, 1')
    A('v_mov_b32 v16, 0')
    A('v_mov_b32 v17, 1')
    A('global_atomic_add v16, v17, %s offset:%d sc1' % (s(sDBG, 2), off))
    A('s_mov_b64 exec, -1')
    A.label(l)


def wait_ge(A, voff, sbase, vt, sval):
    l = A.uid('wg')
    A.label(l)
    A('buffer_load_dword %s, %s, %s, %s offen sc1' % (v(vt), v(voff), s(sWS, 4), s(sbase)))
    spin_fail(A)
    A('s_waitcnt vmcnt(0)')
    A('v_cmp_gt_u32 vcc, %s, %s' % (s(sval), v(vt)))
    A('s_cbranch_vccz %s_ok' % l)
    A('s_sleep 2')
    A('s_branch %s' % l)
    A.label(l + '_ok')


def final_phase(A, cfg):
    W2V = 160
    ACC, BB, RING, NR = 16, 32, 48, 26
    vMask, vRw, vRr, vXo, vKm, vVm, vBell, vFl = 152, 8, 9, 10, 11, 12, 13, 14
    sSeg, sH, sOT, sOTw, sQ, sKMa, sCnt, sBellA, sFlK, sC, sNC, sXo, sH1, sH2, sH3, sNeed = 53, 54, 55, 56, 57, 58, 59, 60, 61, 62, 64, 65, 66, 67, 68, 69
    RED2 = LDS_SPARE
    srd(A, sSA, sW2, 3584 * 2048)
    srd(A, sSB, sWO, 8 * MB)
    A('s_lshl_b32 %s, %s, 6' % (s(sT1), s(sGI)))
    A('s_mul_i32 %s, %s, %d' % (s(sT2), s(sWAVE), 28 * 32 * 2048))
    A('s_add_u32 %s, %s, %s' % (s(sT2), s(sT2), s(sT1)))
    dense_offsets(A, vPair, False, 2048, sT2)
    A('s_lshl_b32 %s, %s, 21' % (s(sT2), s(sWAVE)))
    A('s_add_u32 %s, %s, %s' % (s(sT2), s(sT2), s(sT1)))
    dense_offsets(A, vA, False, 2048, sT2)
    ops = []
    for kk in range(12):
        for u in range(2):
            ops.append(dict(srd=sSA, voff=vPair, soff=(32 * kk + 16 * u) * 2048,
                            reads=[(v(W2V + (kk * 2 + t) * 4 + 2 * u, 2), 512 * t) for t in range(2)]))
    for kk in range(32):
        for u in range(2):
            ops.append(dict(srd=sSB, voff=vA, soff=(32 * kk + 16 * u) * 2048,
                            reads=[(a((kk * 2 + t) * 4 + 2 * u, 2), 512 * t) for t in range(2)]))
    for kk in range(12, 28):
        for u in range(2):
            ops.append(dict(srd=sSA, voff=vPair, soff=(32 * kk + 16 * u) * 2048, final=2 * (kk - 12) + u))
    A('v_lshlrev_b32 %s, 3, v0' % v(vRes))
    A('v_add_u32 %s, %s, %s' % (v(vRes), s(sRES), v(vRes)))
    weight_loader(A, ops, vRes, vSp)
    A('v_add_u32 v16, %s, %s' % (s(sRES), v(vL16)))
    for g in range(0, 32, 4):
        for k in range(2):
            for u in range(2):
                for t in range(2):
                    A('ds_read_b64_tr_b16 %s, %s offset:%d' % (v(32 + 8 * k + 4 * t + 2 * u, 2), v(vRes), (g + 2 * k + u) * 1024 + 512 * t))
        A('s_waitcnt lgkmcnt(0)')
        for k in range(4):
            A('ds_write_b128 v16, %s offset:%d' % (v(32 + 4 * k, 4), (g + k) * 1024))
        A('s_waitcnt lgkmcnt(0)')
    A('v_mov_b32 %s, v16' % v(vRes))
    gstamp(A, cfg, 5, vOne)
    A('s_and_b32 %s, %s, 1' % (s(sT0), s(sWAVE)))
    A('s_lshl_b32 %s, %s, 4' % (s(sT0), s(sT0)))
    A('v_and_b32 v16, 15, v0')
    A('v_add_u32 v16, %s, v16' % s(sT0))
    A('v_lshrrev_b32 v17, 4, v0')
    A('v_lshlrev_b32 v17, 2, v17')
    A('v_mov_b32 v19, 0xff800000')
    for jt in range(2):
        for r in range(4):
            A('v_add_u32 v18, %d, v17' % (16 * jt + r))
            A('v_cmp_gt_u32 vcc, v18, v16')
            A('s_nop 1')
            A('v_cndmask_b32 %s, 0, v19, vcc' % v(vMask + 4 * jt + r))
    A('v_and_b32 v16, 15, v0')
    A('v_mul_u32_u24 v16, 144, v16')
    A('v_lshl_add_u32 v16, v17, 2, v16')
    A('s_mul_i32 %s, %s, 4608' % (s(sT0), s(sWAVE)))
    A('s_add_u32 %s, %s, %d' % (s(sT0), s(sT0), RED2))
    A('v_add_u32 %s, %s, v16' % (v(vRw), s(sT0)))
    A('s_lshl_b32 %s, %s, 3' % (s(sT0), s(sWAVE)))
    A('v_lshrrev_b32 v16, 3, v0')
    A('v_add_u32 v16, %s, v16' % s(sT0))
    A('v_and_b32 v18, 7, v0')
    A('v_mul_u32_u24 v19, 144, v16')
    A('v_lshl_add_u32 v19, v18, 4, v19')
    A('v_add_u32 %s, %d, v19' % (v(vRr), RED2))
    A('v_lshlrev_b32 v16, 11, v16')
    A('v_lshl_add_u32 v16, v18, 3, v16')
    A('s_lshl_b32 %s, %s, 6' % (s(sT0), s(sGI)))
    A('v_add_u32 %s, %s, v16' % (v(vXo), s(sT0)))
    A('v_and_b32 v16, 7, v0')
    A('v_lshlrev_b32 v16, 4, v16')
    A('v_lshl_add_u32 %s, v17, 5, v16' % v(vKm))
    A('v_and_b32 v16, 31, v0')
    A('v_lshlrev_b32 %s, 3, v16' % v(vVm))
    A('v_lshlrev_b32 %s, 2, v16' % v(vBell))
    A('v_and_b32 v16, 1, v0')
    A('v_lshlrev_b32 %s, 12, v16' % v(vFl))
    A('v_cmp_gt_u32 vcc, 32, v0')
    A('v_mov_b32 v15, 0xff800000')
    A('s_nop 0')
    A('v_cndmask_b32 v15, v15, 0, vcc')
    srd(A, sSA, sX, 4 * MB)
    srd(A, sSB, sOUT, 4 * MB)
    A('s_mov_b32 %s, %s' % (s(sC), hx(f2u(SC))))
    A('s_mov_b32 %s, %s' % (s(sC + 1), hx(f2u(SC))))
    A('s_mov_b32 %s, %s' % (s(sNC), hx(f2u(-SC))))
    A('s_lshl_b32 %s, %s, 7' % (s(sFlK), s(sGI)))
    A('s_add_u32 %s, %s, %d' % (s(sFlK), s(sFlK), CT_KM))
    A('s_lshl_b32 %s, %s, 8' % (s(sBellA), s(sGX)))
    A('s_add_u32 %s, %s, %d' % (s(sBellA), s(sBellA), CT_OT))
    A('s_mov_b32 %s, %s' % (s(sSeg), s(sGX)))
    A('s_mov_b32 %s, 1' % s(sCnt))
    A('s_lshl_b32 %s, %s, 19' % (s(sOT), s(sGX)))
    A('s_add_u32 %s, %s, %s' % (s(sOT), s(sOT), hx(OT)))
    grid_wait(A, 16, 17, 192, dbg_off=128)
    group_local(A, 16, 17)
    A('s_barrier')
    gstamp(A, cfg, 6, vOne)

    def stream(n, bases, bsrc, first):
        nl = 2 * n

        def ld(i):
            return 'buffer_load_dwordx4 %s, %s, %s, %s offen offset:%d sc1' % (v(RING + 4 * (i % NR), 4), v(vL16), s(sWS, 4), s(bases), 1024 * (i % 4))
        bump = 's_add_u32 %s, %s, 4096' % (s(bases), s(bases))
        issued = 0

        def more():
            nonlocal issued
            out = []
            if issued < nl:
                out.append(ld(issued))
                issued += 1
                if issued % 4 == 0:
                    out.append(bump)
            return out
        while issued < min(NR, nl):
            for x in more():
                A(x)
        lds = lambda kk: bsrc(kk)[0] == 'l'

        def bread(kk):
            return ['ds_read_b128 %s, %s offset:%d' % (v(BB + 8 * (kk % 2) + 4 * t, 4), v(vRes), (bsrc(kk)[1] * 2 + t) * 1024) for t in range(2)]
        for kk in range(n):
            pre = bread(kk + 1) if kk + 1 < n and lds(kk + 1) else []
            A('s_waitcnt vmcnt(%d)' % (issued - 2 * kk - 2))
            if lds(kk):
                A('s_waitcnt lgkmcnt(0)')
            for rt in range(2):
                for ct in range(2):
                    k, b = bsrc(kk)
                    W = v(BB + 8 * (kk % 2) + 4 * ct, 4) if k == 'l' else R((k, b), 4 * ct, 4)
                    D = v(ACC + 8 * rt + 4 * ct, 4)
                    A('%s %s, %s, %s, %s' % (MF, D, W, v(RING + 4 * ((2 * kk + rt) % NR), 4), '0' if first and kk == 0 else D))
                    if ct == 0 and pre:
                        A(pre[rt])
                for x in more():
                    A(x)

    A('s_cmp_eq_u32 %s, 1' % s(sLOCAL))
    A('s_cbranch_scc0 L_fin_g')
    for tag, sfx in (('l', ''), ('g', ' sc1')):
        top = 'L_fin_' + tag
        A.label(top)
        A('s_mul_i32 %s, %s, %d' % (s(sH), s(sSeg), 224 * KB))
        A('s_mul_i32 %s, %s, %d' % (s(sT0), s(sWAVE), 56 * KB))
        A('s_add_u32 %s, %s, %s' % (s(sH), s(sH), s(sT0)))
        A('s_add_u32 %s, %s, %s' % (s(sH), s(sH), hx(HF)))
        stream(28, sH, lambda kk: ('v', W2V + 8 * kk) if kk < 12 else ('l', kk - 12), True)
        Q, K, KM, V, VM, S, O, LS, ONES, PT, PM, M = 48, 64, 96, 112, 128, 32, 64, 80, 84, 88, 92, 44
        A('s_lshl_b32 %s, %s, 5' % (s(sQ), s(sSeg)))
        A('s_add_u32 %s, %s, %s' % (s(sQ), s(sQ), s(sGI)))
        A('s_lshl_b32 %s, %s, 11' % (s(sKMa), s(sQ)))
        A('s_lshl_b32 %s, %s, 13' % (s(sQ), s(sQ)))
        A('s_and_b32 %s, %s, 1' % (s(sT0), s(sWAVE)))
        A('s_lshl_b32 %s, %s, 12' % (s(sT0), s(sT0)))
        A('s_add_u32 %s, %s, %s' % (s(sH1), s(sQ), s(sT0)))
        A('s_add_u32 %s, %s, %s' % (s(sH1), s(sH1), hx(QF)))
        A('s_add_u32 %s, %s, %s' % (s(sH2), s(sQ), hx(KF)))
        A('s_add_u32 %s, %s, 4096' % (s(sH3), s(sH2)))
        for i in range(4):
            A('buffer_load_dwordx4 %s, %s, %s, %s offen offset:%d sc1' % (v(Q + 4 * i, 4), v(vL16), s(sWS, 4), s(sH1), 1024 * i))
        for i in range(8):
            A('buffer_load_dwordx4 %s, %s, %s, %s offen offset:%d sc1' % (v(K + 4 * i, 4), v(vL16), s(sWS, 4), s(sH2 if i < 4 else sH3), 1024 * (i & 3)))
        A('s_lshr_b32 %s, %s, 1' % (s(sT0), s(sWAVE)))
        A('s_lshl_b32 %s, %s, 12' % (s(sT1), s(sT0)))
        A('s_add_u32 %s, %s, %s' % (s(sH1), s(sQ), s(sT1)))
        A('s_add_u32 %s, %s, %s' % (s(sH1), s(sH1), hx(VF)))
        for i in range(4):
            A('buffer_load_dwordx4 %s, %s, %s, %s offen offset:%d sc1' % (v(V + 4 * i, 4), v(vL16), s(sWS, 4), s(sH1), 1024 * i))
        A('s_lshl_b32 %s, %s, 10' % (s(sT0), s(sT0)))
        A('s_add_u32 %s, %s, %s' % (s(sH2), s(sKMa), s(sT0)))
        A('s_add_u32 %s, %s, %s' % (s(sH2), s(sH2), hx(VMG)))
        A('s_add_u32 %s, %s, %s' % (s(sKMa), s(sKMa), hx(KMG)))
        A('s_add_u32 %s, %s, 1' % (s(sNeed), s(sSeg)))
        wait_ge(A, vFl, sFlK, 1, sNeed)
        for i in range(4):
            A('buffer_load_dwordx4 %s, %s, %s, %s offen offset:%d sc1' % (v(KM + 4 * i, 4), v(vKm), s(sWS, 4), s(sKMa), 512 * i))
        for i in range(4):
            A('buffer_load_dwordx2 %s, %s, %s, %s offen offset:%d sc1' % (v(VM + 4 * i, 2), v(vVm), s(sWS, 4), s(sH2), 256 * i))
            A('v_mov_b32 %s, 0' % v(VM + 4 * i + 2))
            A('v_mov_b32 %s, 0' % v(VM + 4 * i + 3))
        for ks in range(4):
            for jt in range(2):
                A('%s %s, %s, %s, %s' % (MF, v(S + 4 * jt, 4), v(K + 16 * jt + 4 * ks, 4), v(Q + 4 * ks, 4), v(S + 4 * jt, 4) if ks else '0'))
        A('s_waitcnt vmcnt(4)')
        for ks in range(4):
            A('%s %s, %s, %s, %s' % (MF, v(S + 8, 4), v(KM + 4 * ks, 4), v(Q + 4 * ks, 4), v(S + 8, 4) if ks else '0'))
        for i in range(0, 8, 2):
            A('v_pk_add_f32 %s, %s, %s' % (v(S + i, 2), v(S + i, 2), v(vMask + i, 2)))
        for i in range(4):
            A('v_mov_b32 %s, 0x3f803f80' % v(ONES + i))
        A('v_mov_b32 %s, 0' % v(PM + 2))
        A('v_mov_b32 %s, 0' % v(PM + 3))
        A('v_max3_f32 %s, %s, %s, %s' % (v(M), v(S), v(S + 1), v(S + 2)))
        for i in range(3, 11, 2):
            A('v_max3_f32 %s, %s, %s, %s' % (v(M), v(M), v(S + i), v(S + i + 1)))
        A('v_max_f32 %s, %s, %s' % (v(M), v(M), v(S + 11)))
        allred_g(A, 'v_max_f32', M, M + 1)
        A('v_mul_f32 %s, %s, %s' % (v(M), s(sNC), v(M)))
        A('v_add_f32 %s, %s, v15' % (v(M + 2), v(M)))
        for i in range(0, 12, 2):
            A('v_pk_fma_f32 %s, %s, %s, %s op_sel_hi:[1,1,0]' % (v(S + i, 2), v(S + i, 2), s(sC, 2), v(M if i < 8 else M + 2, 2)))
        for i in range(12):
            A('v_exp_f32 %s, %s' % (v(S + i), v(S + i)))
        for i in range(6):
            A('v_cvt_pk_bf16_f32 %s, %s, %s' % (v(PT + i), v(S + 2 * i), v(S + 2 * i + 1)))
        A('s_waitcnt vmcnt(0)')
        A('s_nop 0')
        A('%s %s, %s, %s, 0' % (MF, v(LS, 4), v(ONES, 4), v(PT, 4)))
        for t in range(4):
            A('%s %s, %s, %s, 0' % (MF, v(O + 4 * t, 4), v(V + 4 * t, 4), v(PT, 4)))
        A('%s %s, %s, %s, %s' % (MF, v(LS, 4), v(ONES, 4), v(PM, 4), v(LS, 4)))
        for t in range(4):
            A('%s %s, %s, %s, %s' % (MF, v(O + 4 * t, 4), v(VM + 4 * t, 4), v(PM, 4), v(O + 4 * t, 4)))
        A('s_lshl_b32 %s, %s, 13' % (s(sOTw), s(sGI)))
        A('s_lshr_b32 %s, %s, 1' % (s(sT0), s(sWAVE)))
        A('s_lshl_b32 %s, %s, 12' % (s(sT0), s(sT0)))
        A('s_add_u32 %s, %s, %s' % (s(sOTw), s(sOTw), s(sT0)))
        A('s_and_b32 %s, %s, 1' % (s(sT0), s(sWAVE)))
        A('s_lshl_b32 %s, %s, 10' % (s(sT0), s(sT0)))
        A('s_add_u32 %s, %s, %s' % (s(sOTw), s(sOTw), s(sT0)))
        A('s_add_u32 %s, %s, %s' % (s(sOTw), s(sOTw), s(sOT)))
        A('v_rcp_f32 %s, %s' % (v(M), v(LS)))
        A('s_nop 1')
        for i in range(0, 16, 2):
            A('v_pk_mul_f32 %s, %s, %s op_sel_hi:[1,0]' % (v(O + i, 2), v(O + i, 2), v(M, 2)))
        for i in range(8):
            A('v_cvt_pk_bf16_f32 %s, %s, %s' % (v(S + i), v(O + 2 * i), v(O + 2 * i + 1)))
        for p in range(2):
            A('buffer_store_dwordx4 %s, %s, %s, %s offen offset:%d%s' % (v(S + 4 * p, 4), v(vL16), s(sWS, 4), s(sOTw), 2048 * p, sfx))
        A('s_lshl_b32 %s, %s, 2' % (s(sT0), s(sGI)))
        A('s_add_u32 %s, %s, %s' % (s(sT0), s(sT0), s(sBellA)))
        A('v_mov_b32 v1, %s' % s(sCnt))
        A('s_waitcnt vmcnt(0)')
        A('s_barrier')
        A('buffer_store_dword v1, %s, %s, %s offen%s' % (v(vOne), s(sWS, 4), s(sT0), sfx))
        A('s_lshl_b32 %s, %s, 16' % (s(sXo), s(sSeg)))
        A('s_lshl_b32 %s, %s, 16' % (s(sH), s(sWAVE)))
        A('s_add_u32 %s, %s, %s' % (s(sH), s(sH), s(sOT)))
        wait_ge(A, vBell, sBellA, 44, sCnt)
        A('buffer_load_dwordx2 v[44:45], %s, %s, %s offen' % (v(vXo), s(sSA, 4), s(sXo)))
        stream(32, sH, lambda kk: ('a', 8 * kk), False)
        A('s_nop 7')
        for rt in range(2):
            for ct in range(2):
                A('ds_write_b128 %s, %s offset:%d' % (v(vRw), v(ACC + 8 * rt + 4 * ct, 4), 16 * 144 * rt + 64 * ct))
        A('v_lshlrev_b32 v46, 16, v44')
        A('v_and_b32 v47, 0xffff0000, v44')
        A('v_lshlrev_b32 v44, 16, v45')
        A('v_and_b32 v45, 0xffff0000, v45')
        A('s_waitcnt lgkmcnt(0)')
        A('s_barrier')
        for p in range(4):
            A('ds_read_b128 %s, %s offset:%d' % (v(48 + 4 * p, 4), v(vRr), 4608 * p))
        A('s_xor_b32 %s, %s, %d' % (s(sOT), s(sOT), 256 * KB))
        A('s_add_u32 %s, %s, 1' % (s(sCnt), s(sCnt)))
        A('s_add_u32 %s, %s, 6' % (s(sSeg), s(sSeg)))
        A('s_waitcnt lgkmcnt(0)')
        for c in (0, 2):
            A('v_pk_add_f32 %s, %s, %s' % (v(48 + c, 2), v(48 + c, 2), v(52 + c, 2)))
            A('v_pk_add_f32 %s, %s, %s' % (v(56 + c, 2), v(56 + c, 2), v(60 + c, 2)))
        for c in (0, 2):
            A('v_pk_add_f32 %s, %s, %s' % (v(48 + c, 2), v(48 + c, 2), v(56 + c, 2)))
        A('v_pk_add_f32 v[48:49], v[48:49], v[46:47]')
        A('v_pk_add_f32 v[50:51], v[50:51], v[44:45]')
        A('v_cvt_pk_bf16_f32 v46, v48, v49')
        A('v_cvt_pk_bf16_f32 v47, v50, v51')
        A('buffer_store_dwordx2 v[46:47], %s, %s, %s offen' % (v(vXo), s(sSB, 4), s(sXo)))
        A('s_cmp_lt_u32 %s, 64' % s(sSeg))
        A('s_cbranch_scc1 %s' % top)
        gstamp(A, cfg, 7, vOne)
        A('s_branch L_end')


def gen_gemm(A, cfg):
    sTile = 62
    A('s_sub_u32 %s, %s, 2' % (s(sGX), s(sGRP)))
    A('s_mov_b32 %s, %s' % (s(sGI), s(sJ)))
    A('s_lshl_b32 %s, %s, 5' % (s(sC_), s(sGX)))
    A('s_add_u32 %s, %s, %s' % (s(sC_), s(sC_), s(sGI)))
    A('s_lshl_b32 %s, %s, 15' % (s(sRES), s(sWAVE)))
    A('s_lshl_b32 %s, %s, 13' % (s(sSPARE), s(sWAVE)))
    A('s_add_u32 %s, %s, %d' % (s(sSPARE), s(sSPARE), LDS_SPARE))
    A('v_lshlrev_b32 %s, 4, v0' % v(vL16))
    A('v_lshlrev_b32 %s, 3, v0' % v(vRes))
    A('v_add_u32 %s, %s, %s' % (v(vSp), s(sSPARE), v(vRes)))
    A('v_add_u32 %s, %s, %s' % (v(vRes), s(sRES), v(vRes)))
    A('v_cmp_eq_u32 vcc, 0, v0')
    A('v_mov_b32 %s, %s' % (v(vOne), hx(OOB)))
    A('s_nop 0')
    A('v_cndmask_b32 %s, %s, 0, vcc' % (v(vOne), v(vOne)))
    gstamp(A, cfg, 0, vOne)
    A('s_mul_i32 %s, %s, 6' % (s(sTile), s(sGI)))
    A('s_add_u32 %s, %s, %s' % (s(sTile), s(sTile), s(sGX)))
    srd(A, sSB, sX, 4 * MB)
    A('v_and_b32 v16, 15, v0')
    A('v_lshlrev_b32 v16, 11, v16')
    A('v_lshrrev_b32 v17, 4, v0')
    A('v_lshl_add_u32 v16, v17, 4, v16')
    A('s_lshl_b32 %s, %s, 15' % (s(sT0), s(sTile)))
    A('s_lshl_b32 %s, %s, 9' % (s(sT1), s(sWAVE)))
    A('s_add_u32 %s, %s, %s' % (s(sT0), s(sT0), s(sT1)))
    for i in range(8):
        A('buffer_load_dwordx4 %s, v16, %s, %s offen offset:%d' % (v(32 + 4 * i, 4), s(sSB, 4), s(sT0), 64 * i))
    A('s_lshl_b32 %s, %s, 2' % (s(sT0), s(sWG)))
    A('s_add_u32 %s, %s, %d' % (s(sT0), s(sT0), CT_XCC))
    A('v_mov_b32 v1, %s' % s(sXCC))
    A('buffer_store_dword v1, %s, %s, %s offen sc1' % (v(vOne), s(sWS, 4), s(sT0)))
    A('s_lshl_b32 %s, %s, 7' % (s(sFlagA), s(sC_)))
    A('s_add_u32 %s, %s, %d' % (s(sFlagA), s(sFlagA), CT_G1))
    A('v_mov_b32 v18, 0')
    A('buffer_store_dword v18, %s, %s, %s offen sc1' % (v(vOne), s(sWS, 4), s(sFlagA)))
    A('s_lshl_b32 %s, %s, 8' % (s(sT0), s(sGX)))
    A('s_lshl_b32 %s, %s, 2' % (s(sT1), s(sGI)))
    A('s_add_u32 %s, %s, %s' % (s(sT0), s(sT0), s(sT1)))
    A('s_add_u32 %s, %s, %d' % (s(sT0), s(sT0), CT_OT))
    A('buffer_store_dword v18, %s, %s, %s offen sc1' % (v(vOne), s(sWS, 4), s(sT0)))
    A('s_lshr_b32 %s, %s, 6' % (s(sT0), s(sC_)))
    A('s_cmp_eq_u32 %s, 1' % s(sT0))
    A('s_cselect_b32 %s, %s, %s' % (s(sSA), s(sWK), s(sWQ)))
    A('s_cselect_b32 %s, %s, %s' % (s(sSA + 1), s(sWK + 1), s(sWQ + 1)))
    A('s_cmp_eq_u32 %s, 2' % s(sT0))
    A('s_cselect_b32 %s, %s, %s' % (s(sSA), s(sWV), s(sSA)))
    A('s_cselect_b32 %s, %s, %s' % (s(sSA + 1), s(sWV + 1), s(sSA + 1)))
    A('s_and_b32 %s, %s, 0xffff' % (s(sSA + 1), s(sSA + 1)))
    A('s_mov_b32 %s, %s' % (s(sSA + 2), hx(8 * MB)))
    A('s_mov_b32 %s, 0x20000' % s(sSA + 3))
    A('s_and_b32 %s, %s, 63' % (s(sT1), s(sC_)))
    A('s_lshl_b32 %s, %s, 7' % (s(sT1), s(sT1)))
    A('s_and_b32 %s, %s, 1' % (s(sT2), s(sWAVE)))
    A('s_lshl_b32 %s, %s, 6' % (s(sT2), s(sT2)))
    A('s_add_u32 %s, %s, %s' % (s(sT2), s(sT2), s(sT1)))
    dense_offsets(A, vPair, True, 8192, sT2)

    def ln_then_arrive(n):
        A('s_cmp_ge_u32 %s, 128' % s(sTile))
        A('s_cbranch_scc1 L_noln')
        A('s_waitcnt vmcnt(%d)' % (n + 3))
        layernorm(A, cfg, sTile)
        A.label('L_noln')
        A('s_waitcnt vmcnt(0)')
        A('s_barrier')
        counter_arrive(A, 0)
        gstamp(A, cfg, 1, vOne)
    weight_loader(A, proj_ops(8192), vRes, vSp, ln_then_arrive, nslots=39)
    A('s_lshr_b32 %s, %s, 6' % (s(sT0), s(sC_)))
    A('s_lshl_b32 %s, %s, 24' % (s(sDst), s(sT0)))
    A('s_add_u32 %s, %s, %s' % (s(sDst), s(sDst), hx(QF)))
    A('s_lshr_b32 %s, %s, 1' % (s(sT1), s(sWAVE)))
    A('s_lshl_b32 %s, %s, 18' % (s(sT1), s(sT1)))
    A('s_add_u32 %s, %s, %s' % (s(sDst), s(sDst), s(sT1)))
    A('s_bfe_u32 %s, %s, 0x50001' % (s(sT1), s(sC_)))
    A('s_lshl_b32 %s, %s, 13' % (s(sT1), s(sT1)))
    A('s_add_u32 %s, %s, %s' % (s(sDst), s(sDst), s(sT1)))
    A('s_and_b32 %s, %s, 1' % (s(sT1), s(sC_)))
    A('s_lshl_b32 %s, %s, 1' % (s(sT1), s(sT1)))
    A('s_and_b32 %s, %s, 1' % (s(sT2), s(sWAVE)))
    A('s_add_u32 %s, %s, %s' % (s(sT1), s(sT1), s(sT2)))
    A('s_mov_b32 %s, %d' % (s(sDstep), 512 * KB))
    A('s_lshl_b32 %s, %s, 15' % (s(sSrc), s(sWAVE)))
    A('s_add_u32 %s, %s, %s' % (s(sSrc), s(sSrc), hx(XNF)))
    A('s_mov_b32 %s, 0' % s(sIt))
    A('s_mov_b32 %s, 32' % s(sEnd))
    A('s_mov_b32 %s, 0x80008000' % s(sRelu))
    A('s_lshr_b32 %s, %s, 1' % (s(sT2), s(sWAVE)))
    A('s_lshl_b32 %s, %s, 13' % (s(sT2), s(sT2)))
    A('v_add_u32 %s, %s, %s' % (v(vA), s(sT2), v(vL16)))
    A('v_add_u32 %s, %d, %s' % (v(vA + 1), 64 * KB, v(vA)))
    A('s_mov_b32 s63, %s' % s(sT1))
    grid_wait(A, 16, 17, cfg.narrive)
    A('s_barrier')
    gstamp(A, cfg, 2, vOne)
    A('s_cmp_ge_u32 %s, 128' % s(sC_))
    A('s_cbranch_scc1 L_projv')
    A('s_lshl_b32 s63, s63, 10')
    A('s_add_u32 %s, %s, s63' % (s(sDst), s(sDst)))
    A('s_add_u32 %s, %s, 4096' % (s(sDst2), s(sDst)))
    proj_loop(A, cfg, 'qk', True, 1)
    A('s_branch L_ffn1')
    A.label('L_projv')
    A('s_lshl_b32 s63, s63, 11')
    A('s_add_u32 %s, %s, s63' % (s(sDst), s(sDst)))
    A('s_add_u32 %s, %s, 1024' % (s(sDst2), s(sDst)))
    proj_loop(A, cfg, 'v', False, 1)
    A.label('L_ffn1')
    gstamp(A, cfg, 3, vOne)
    A('s_cmp_ge_u32 %s, 168' % s(sC_))
    A('s_cbranch_scc1 L_final')
    A('s_cmp_ge_u32 %s, 56' % s(sC_))
    A('s_cselect_b32 %s, 1, 0' % s(sT0))
    A('s_cmp_ge_u32 %s, 112' % s(sC_))
    A('s_cselect_b32 %s, 2, %s' % (s(sT0), s(sT0)))
    A('s_mul_i32 %s, %s, 56' % (s(sT1), s(sT0)))
    A('s_sub_u32 s63, %s, %s' % (s(sC_), s(sT1)))
    A('s_mul_i32 %s, %s, 11' % (s(sIt), s(sT0)))
    A('s_add_u32 %s, %s, 11' % (s(sEnd), s(sIt)))
    A('s_min_u32 %s, %s, 32' % (s(sEnd), s(sEnd)))
    srd(A, sSA, sW1, 1024 * 7168)
    A('s_lshl_b32 %s, s63, 7' % s(sT1))
    A('s_and_b32 %s, %s, 1' % (s(sT2), s(sWAVE)))
    A('s_lshl_b32 %s, %s, 6' % (s(sT2), s(sT2)))
    A('s_add_u32 %s, %s, %s' % (s(sT2), s(sT2), s(sT1)))
    dense_offsets(A, vPair, True, 7168, sT2)
    weight_loader(A, proj_ops(7168), vRes, vSp)
    A('s_mul_i32 %s, %s, %d' % (s(sDst), s(sIt), 448 * KB))
    A('s_lshr_b32 %s, %s, 1' % (s(sT1), s(sWAVE)))
    A('s_mul_i32 %s, %s, %d' % (s(sT1), s(sT1), 224 * KB))
    A('s_add_u32 %s, %s, %s' % (s(sDst), s(sDst), s(sT1)))
    A('s_lshl_b32 %s, s63, 12' % s(sT1))
    A('s_add_u32 %s, %s, %s' % (s(sDst), s(sDst), s(sT1)))
    A('s_and_b32 %s, %s, 1' % (s(sT1), s(sWAVE)))
    A('s_lshl_b32 %s, %s, 11' % (s(sT1), s(sT1)))
    A('s_add_u32 %s, %s, %s' % (s(sDst), s(sDst), s(sT1)))
    A('s_add_u32 %s, %s, %s' % (s(sDst), s(sDst), hx(HF)))
    A('s_add_u32 %s, %s, 1024' % (s(sDst2), s(sDst)))
    A('s_mov_b32 %s, %d' % (s(sDstep), 448 * KB))
    A('s_lshl_b32 %s, %s, 17' % (s(sSrc), s(sIt)))
    A('s_lshl_b32 %s, %s, 15' % (s(sT1), s(sWAVE)))
    A('s_add_u32 %s, %s, %s' % (s(sSrc), s(sSrc), s(sT1)))
    A('s_add_u32 %s, %s, %s' % (s(sSrc), s(sSrc), hx(XNF)))
    A('s_mov_b32 %s, 0' % s(sRelu))
    A('s_barrier')
    proj_loop(A, cfg, 'h', True, 0)
    A.label('L_final')
    gstamp(A, cfg, 4, vOne)
    A('s_waitcnt vmcnt(0)')
    A('s_barrier')
    counter_arrive(A, 128)
    final_phase(A, cfg)
```

```python
KB = 1024
MB = 1024 * 1024
NREP = 6

CT_XCC = 0
CT_G1 = 4 * KB
CT_KM = 32 * KB
CT_VM = 36 * KB
CT_BELL = 40 * KB
CT_SEL = 44 * KB
CT_OT = 48 * KB
MEMR = 128 * KB
OR_ = 256 * KB
VMR = 512 * KB
PART = 96 * MB
STAMP = 100 * MB
KMG = 4 * MB
VMG = 8 * MB
XNF = 12 * MB
QF = 16 * MB
KF = 32 * MB
VF = 48 * MB
HF = 64 * MB
OT = 80 * MB
WS_BYTES = 256 * MB
OOB = 0x40000000
```

```python
import sys
from asmlib import *
from layout import *
import chain
from chain import *

NAME = 'parallel_sum__memory_aug_recurrent_mem_tr__dense_activation_relu__prompt_kernel'
HDR = open('parallel_sum__memory_aug_recurrent_mem_tr__dense_activation_relu__prompt.s.ref').read().split('; Override launch')[0]


class Cfg:
    chain_only = False
    gemm_only = False
    profile = False
    stamps = ()
    nsteps = 64
    narrive = 256
    poll2 = True
    hint = True
    osleep = 0
    rsleep = (4, 3, 3, 1, 2, 2)
    nrep = 1
    near = True
    depth = 3
    vdepth = 2
    odepth = 3
    ringat = 2
    mring = 1
    vmat = 1
    adelay = (0, 1, 5, 9)
    nokv = False
    nokm = False
    resetsleep = 2
    rt = False
    pwave = 2


def build(cfg):
    A = Asm()
    A('s_cmp_ge_u32 s2, 256')
    A('s_cbranch_scc1 L_end')
    A('s_load_dwordx8 s[4:11], s[0:1], 0')
    A('s_load_dwordx4 s[12:15], s[0:1], 32')
    A('s_load_dwordx4 s[16:19], s[0:1], 64')
    A('s_load_dwordx4 s[20:23], s[0:1], 80')
    A('s_load_dwordx2 s[24:25], s[0:1], 96')
    A('v_lshrrev_b32 v1, 6, v0')
    A('v_and_b32 v0, 63, v0')
    A('s_getreg_b32 %s, hwreg(HW_REG_XCC_ID, 0, 4)' % s(sXCC))
    A('v_readfirstlane_b32 %s, v1' % s(sWAVE))
    A('s_mov_b32 %s, 0x100000' % s(sBUD))
    A('s_waitcnt lgkmcnt(0)')
    srd(A, sWS, sWSP, WS_BYTES)
    A('s_and_b32 %s, s2, 7' % s(sGRP))
    A('s_lshr_b32 %s, s2, 3' % s(sJ))
    A('s_cmp_ge_u32 %s, 2' % s(sGRP))
    A('s_cbranch_scc1 L_gemm')
    if cfg.gemm_only:
        A('s_branch L_end')
    else:
        A('s_cmp_lt_u32 %s, 16' % s(sJ))
        A('s_cbranch_scc1 L_qk')
        A('s_sub_u32 %s, %s, 16' % (s(sJ), s(sJ)))
        gen_vo(A, cfg)
        gen_qk(A, cfg)
    A.label('L_gemm')
    if not cfg.chain_only:
        import gemm
        gemm.gen_gemm(A, cfg)
    A.label('L_end')
    A('s_endpgm')
    txt = HDR + '; @launch grid=(256,1,1) block=(256,1,1) lds=163840\n'
    txt += '.amdgcn_target "amdgcn-amd-amdhsa--gfx950"\n.text\n.globl %s\n.p2align 8\n.type %s,@function\n%s:\n' % (NAME, NAME, NAME)
    txt += A.text()
    txt += '''.section .rodata,"a"
.p2align 6
.amdhsa_kernel %s
  .amdhsa_next_free_vgpr 512
  .amdhsa_next_free_sgpr 102
  .amdhsa_accum_offset 256
  .amdhsa_group_segment_fixed_size 0
  .amdhsa_kernarg_size 104
  .amdhsa_user_sgpr_count 2
  .amdhsa_user_sgpr_kernarg_segment_ptr 1
  .amdhsa_system_sgpr_workgroup_id_x 1
  .amdhsa_float_denorm_mode_32 3
.end_amdhsa_kernel
''' % NAME
    return txt


if __name__ == '__main__':
    cfg = Cfg()
    out = sys.argv[1]
    for kv in sys.argv[2:]:
        k, val = kv.split('=')
        setattr(cfg, k, eval(val))
    if cfg.chain_only:
        cfg.narrive = 64
    if cfg.gemm_only:
        cfg.narrive = 192
    open(out, 'w').write(build(cfg))
```

```python
from common import *

SMF = 'v_smfmac_f32_16x16x64_bf16'
MF = 'v_mfma_f32_16x16x32_bf16'


def wait_bell(A, vbell, sbell, regs, sval):
    l = A.uid('wb')
    d = len(regs)
    ld = lambda k: A('buffer_load_dword %s, %s, %s, %s offen sc1' % (v(regs[k]), v(vbell), s(sWS, 4), s(sbell)))
    for k in range(d):
        ld(k)
    A.label(l)
    for k in range(d):
        A('s_waitcnt vmcnt(%d)' % (d - 1))
        A('v_cmp_gt_u32 vcc, %s, %s' % (s(sval), v(regs[k])))
        A('s_cbranch_vccz %s_ok' % l)
        ld(k)
    spin_fail(A)
    A('s_branch %s' % l)
    A.label(l + '_ok')


def dma_mem(A, vpoll, smem):
    for i in range(4):
        A('buffer_load_dwordx4 %s, %s, %s offen offset:%d sc1 lds' % (v(vpoll), s(sWS, 4), s(smem), 1024 * i))


def nan_net(A, cfg, lbl, back, pre, resume, vA, vpoll, smem, tmp, vt, snan, sver):
    o = A.ool
    o(lbl + ':')
    o('s_mov_b64 %s, 0' % s(snan, 2))
    o('s_mov_b64 vcc, 0')
    o('s_cmp_eq_u32 %s, %s' % (s(sver), s(sSTEP)))
    o('s_cbranch_scc1 %s' % back)
    o('s_mov_b32 %s, %s' % (s(sver), s(sSTEP)))
    if cfg.profile:
        o('s_add_u32 s98, s98, 1')
    o(lbl + '_again:')
    o('s_waitcnt vmcnt(0) lgkmcnt(0)')
    o('s_barrier')
    for i in range(4):
        o('buffer_load_dwordx4 %s, %s, %s offen offset:%d sc1 lds' % (v(vpoll), s(sWS, 4), s(smem), 1024 * i))
    o('s_sub_u32 %s, %s, 1\ns_cbranch_scc1 L_end' % (s(sBUD), s(sBUD)))
    o('s_waitcnt vmcnt(0)')
    o('s_barrier')
    o('v_mov_b32 %s, 0' % v(vt))
    for f in range(16):
        o('ds_read_b128 %s, %s offset:%d' % (v(tmp, 4), v(vA), 1024 * f))
        o('s_waitcnt lgkmcnt(0)')
        o('v_max3_u32 %s, %s, %s, %s' % (v(vt), v(vt), v(tmp), v(tmp + 1)))
        o('v_max3_u32 %s, %s, %s, %s' % (v(vt), v(vt), v(tmp + 2), v(tmp + 3)))
    o('v_cmp_eq_u32 vcc, -1, %s' % v(vt))
    o('s_cbranch_vccnz %s_again' % lbl)
    for x in pre:
        o(x)
    o('s_waitcnt lgkmcnt(0)')
    o('s_branch %s' % resume)


def ring(A, dst, reg, delta, stepb):
    mask = 3 * stepb
    A('s_add_u32 %s, %s, %d' % (s(dst), s(reg), (delta % 4) * stepb))
    A('s_and_b32 %s, %s, %d' % (s(dst), s(dst), mask))
    A('s_andn2_b32 %s, %s, %d' % (s(sT2), s(reg), mask))
    A('s_or_b32 %s, %s, %s' % (s(dst), s(dst), s(sT2)))


def ring_adv(A, reg, stepb):
    mask = 3 * stepb
    A('s_add_u32 %s, %s, %d' % (s(sT2), s(reg), stepb))
    A('s_and_b32 %s, %s, %d' % (s(sT2), s(sT2), mask))
    A('s_andn2_b32 %s, %s, %d' % (s(reg), s(reg), mask))
    A('s_or_b32 %s, %s, %s' % (s(reg), s(reg), s(sT2)))


FR = lambda n: 4 * (n & 3) + (n >> 2)


def gen_qk(A, cfg):
    vT = 1; vA = 2; vB = 3; vPoll = 4; vSamp = 5; vQTw = 6; vQTr = 7; vIdx = 8; vBias = 9; vO = 10
    vVM = 11; vL16 = 12; vOne = 13; vKMr = 14; vKMo = 15
    AR, BR, ACC, KX, VX = 16, 32, 56, 72, 104
    ONES, VM, LS = 112, 116, 124
    WK0 = 128
    sMem, sO, sVM, sKF, sVF, sKM, sSeen, sFlag, sG1, sBell = range(50, 60)
    sC, sNC, sRing = 60, 62, 63
    sNan, sVer, sNext = 64, 66, 67
    A.label('L_qk')
    A('s_lshl_b32 %s, %s, 4' % (s(sT1), s(sGRP)))
    A('s_add_u32 %s, %s, %s' % (s(sT1), s(sT1), s(sJ)))
    common_chain_init(A, vB, vKMr, vA, vOne, vIdx)
    gstamp(A, cfg, 0, vOne, True)
    srd(A, sSA, sWK, 8 * MB)
    srd(A, sSB, sWQ, 8 * MB)
    A('s_lshr_b32 %s, %s, 1' % (s(sT0), s(sWAVE)))
    A('s_lshl_b32 %s, %s, 1' % (s(sT2), s(sJ)))
    A('s_add_u32 %s, %s, %s' % (s(sT0), s(sT0), s(sT2)))
    A('s_lshl_b32 %s, %s, 10' % (s(sT0), s(sT0)))
    A('s_and_b32 %s, %s, 1' % (s(sT2), s(sWAVE)))
    A('s_lshl_b32 %s, %s, 7' % (s(sT2), s(sT2)))
    A('s_add_u32 %s, %s, %s' % (s(sT0), s(sT0), s(sT2)))
    A('v_lshlrev_b32 %s, 4, v0' % v(vL16))
    A('v_add_u32 %s, %s, %s' % (v(vO), s(sT0), v(vL16)))
    A('v_and_b32 v16, 8, v0')
    A('v_lshlrev_b32 v16, 27, v16')
    A('v_or_b32 %s, %s, v16' % (v(vO), v(vO)))
    A('v_lshrrev_b32 v17, 4, v0')
    A('v_lshlrev_b32 v17, 7, v17')
    A('v_and_b32 v18, 7, v0')
    A('v_lshl_add_u32 v17, v18, 4, v17')
    A('s_lshl_b32 %s, %s, 9' % (s(sT0), s(sWAVE)))
    A('v_add_u32 v17, %s, v17' % s(sT0))
    A('v_or_b32 %s, v17, v16' % v(vKMo))
    A('s_lshl_b32 %s, %s, 17' % (s(sO), s(sGRP)))
    A('s_add_u32 %s, %s, %d' % (s(sO), s(sO), OR_))
    A('s_lshl_b32 %s, %s, 16' % (s(sMem), s(sGRP)))
    A('s_add_u32 %s, %s, %d' % (s(sMem), s(sMem), MEMR))
    A('s_lshl_b32 %s, %s, 13' % (s(sVM), s(sT1)))
    A('s_add_u32 %s, %s, %d' % (s(sVM), s(sVM), VMR))
    A('s_lshl_b32 %s, %s, 13' % (s(sKF), s(sT1)))
    A('s_add_u32 %s, %s, %s' % (s(sVF), s(sKF), hx(VF)))
    A('s_add_u32 %s, %s, %s' % (s(sKF), s(sKF), hx(KF)))
    A('s_lshl_b32 %s, %s, 11' % (s(sT0), s(sWAVE)))
    A('s_add_u32 %s, %s, %s' % (s(sVF), s(sVF), s(sT0)))
    A('s_lshl_b32 %s, %s, 11' % (s(sKM), s(sT1)))
    A('s_add_u32 %s, %s, %s' % (s(sKM), s(sKM), hx(KMG)))
    A('s_lshl_b32 %s, %s, 7' % (s(sFlag), s(sT1)))
    A('s_add_u32 %s, %s, %d' % (s(sFlag), s(sFlag), CT_KM))
    A('s_lshl_b32 %s, %s, 10' % (s(sRing), s(sGRP)))
    A('s_lshl_b32 %s, %s, 8' % (s(sBell), s(sWAVE)))
    A('s_add_u32 %s, %s, %s' % (s(sBell), s(sBell), s(sRing)))
    A('s_add_u32 %s, %s, %d' % (s(sBell), s(sBell), CT_BELL))
    A('s_lshr_b32 %s, %s, 2' % (s(sT0), s(sJ)))
    A('s_lshl_b32 %s, %s, 8' % (s(sT0), s(sT0)))
    A('s_add_u32 %s, %s, %s' % (s(sRing), s(sRing), s(sT0)))
    A('s_and_b32 %s, %s, 3' % (s(sT0), s(sJ)))
    A('s_lshl_b32 %s, %s, 4' % (s(sT0), s(sT0)))
    A('s_add_u32 %s, %s, %s' % (s(sRing), s(sRing), s(sT0)))
    A('s_lshl_b32 %s, %s, 2' % (s(sT0), s(sWAVE)))
    A('s_add_u32 %s, %s, %s' % (s(sRing), s(sRing), s(sT0)))
    A('s_add_u32 %s, %s, %d' % (s(sRing), s(sRing), CT_BELL + 2048))
    A('s_lshl_b32 %s, %s, 8' % (s(sG1), s(sT1)))
    A('s_add_u32 %s, %s, %d' % (s(sG1), s(sG1), CT_G1 + 64 * 128))
    A('s_mov_b32 %s, %s' % (s(sC), hx(f2u(SC))))
    A('s_mov_b32 %s, %s' % (s(sC + 1), hx(f2u(SC))))
    A('s_mov_b32 %s, %s' % (s(sNC), hx(f2u(-SC))))
    lane_consts(A, 16, 17, 18)
    sparse_rowlane_mem(A, 19, 16, 17, 25)
    A('s_lshl_b32 %s, %s, 8' % (s(sT0), s(sT1)))
    A('s_lshl_b32 %s, %s, 6' % (s(sT2), s(sWAVE)))
    A('s_add_u32 %s, %s, %s' % (s(sT2), s(sT2), s(sT0)))
    vPair = vPoll
    dma_offsets(A, vPair, 19, 18, 25, 13, sT2)
    ops = []
    for m in range(2):
        for ks in range(16):
            for hb in range(2):
                for u in range(2):
                    q = 4 * hb + 2 * u
                    ops.append(dict(srd=sSB if m else sSA, voff=vPair, soff=(64 * ks + 32 * hb + 2 * u) * 8192,
                                    reads=[(v(WK0 + ks * 8 + q, 2), 0), (('res', 2 * ks + hb, u), 512)] if m else
                                    [(a((ks * 2 + t) * 8 + q, 2), 512 * t) for t in range(2)]))

    def init(n):
        publish_xcc(A, vOne)
        for i in range(4):
            A('v_mov_b32 %s, -1' % v(20 + i))
        for sl in range(4):
            A('s_add_u32 %s, %s, %d' % (s(sT0), s(sO), sl * 32 * KB))
            A('buffer_store_dwordx4 v[20:23], %s, %s, %s offen sc1' % (v(vO), s(sWS, 4), s(sT0)))
        A('v_mov_b32 v24, 0')
        A('buffer_store_dword v24, %s, %s, %s offen sc1' % (v(vOne), s(sWS, 4), s(sFlag)))
        A('buffer_store_dword v24, %s, %s, %s offen sc1' % (v(vOne), s(sWS, 4), s(sRing)))
    weight_loader(A, ops, vB, vKMr, init, resident=32, vfin=vSamp, covered=lambda: grid_arrive(A, vT, vSamp))
    A('v_mov_b32 %s, %s' % (v(vB), v(vSamp)))
    gstamp(A, cfg, 1, vOne, True)
    A('s_lshl_b32 %s, %s, 12' % (s(sT0), s(sWAVE)))
    A('v_add_u32 %s, %s, %s' % (v(vPoll), s(sT0), v(vL16)))
    A('v_and_b32 %s, 7, v0' % v(vSamp))
    A('v_lshlrev_b32 %s, 2, %s' % (v(vSamp), v(vSamp)))
    A('s_add_u32 m0, %s, %d' % (s(sT0), MS))
    A('v_lshrrev_b32 v16, 5, v0')
    A('v_lshlrev_b32 v16, 4, v16')
    A('v_and_b32 v17, 15, v0')
    A('v_add_u32 v16, v16, v17')
    A('v_lshlrev_b32 v16, 4, v16')
    A('v_bfe_u32 v17, v0, 4, 1')
    A('v_lshl_add_u32 v16, v17, 3, v16')
    A('s_lshl_b32 %s, %s, 9' % (s(sT0), s(sWAVE)))
    A('s_add_u32 %s, %s, %d' % (s(sT0), s(sT0), QT))
    A('v_add_u32 %s, %s, v16' % (v(vQTw), s(sT0)))
    A('v_lshrrev_b32 v16, 2, v0')
    A('v_lshlrev_b32 v16, 4, v16')
    A('v_and_b32 v17, 1, v0')
    A('v_lshl_add_u32 v16, v17, 3, v16')
    A('v_add_u32 %s, %d, v16' % (v(vQTr), QT))
    A('v_add_u32 %s, %s, v16' % (v(vKMr), s(sT0)))
    A('v_cmp_gt_u32 vcc, 32, v0')
    A('v_mov_b32 %s, 0xff800000' % v(vBias))
    A('s_nop 0')
    A('v_cndmask_b32 %s, %s, 0, vcc' % (v(vBias), v(vBias)))
    A('v_and_b32 v16, 31, v0')
    A('v_lshlrev_b32 v16, 3, v16')
    A('s_lshl_b32 %s, %s, 9' % (s(sT0), s(sWAVE)))
    A('v_add_u32 %s, %s, v16' % (v(vVM), s(sT0)))
    for i in range(4):
        A('v_mov_b32 %s, 0x3f803f80' % v(ONES + i))
    for t in range(2):
        A('v_mov_b32 %s, 0' % v(VM + 4 * t + 2))
        A('v_mov_b32 %s, 0' % v(VM + 4 * t + 3))
    grid_wait(A, 16, 17, cfg, [(192, cfg.nchain), (8, cfg.ngemm)])
    group_local(A, 16, 17)
    A('s_barrier')
    A('s_mov_b32 %s, 0' % s(sSTEP))
    A('s_mov_b32 %s, 0' % s(sSeen))
    A('s_mov_b32 %s, -1' % s(sVer))
    A('s_mov_b32 s98, 0')

    def prefetch_kv(nxt):
        ok, l = A.uid('kvok'), A.uid('kvp')
        A('s_add_u32 %s, %s, %d' % (s(sT1), s(sSTEP), nxt))
        A.label(l)
        A('s_cmp_lt_u32 %s, %s' % (s(sT1), s(sSeen)))
        A('s_cbranch_scc1 %s' % ok)
        A('v_and_b32 v16, 1, v0')
        A('v_bfe_u32 v17, v0, 1, 1')
        A('v_lshlrev_b32 v16, 7, v16')
        A('v_lshl_add_u32 v16, v17, 13, v16')
        A('buffer_load_dword v17, v16, %s, %s offen sc1' % (s(sWS, 4), s(sG1)))
        A('s_waitcnt vmcnt(0)')
        A('v_readlane_b32 %s, v17, 0' % s(sSeen))
        for k in range(1, 4):
            A('v_readlane_b32 %s, v17, %d' % (s(sT0), k))
            A('s_min_u32 %s, %s, %s' % (s(sSeen), s(sSeen), s(sT0)))
        spin_fail(A)
        A('s_branch %s' % l)
        A.label(ok)
        for i in range(8):
            if i == 4:
                A('s_add_u32 %s, %s, 4096' % (s(sT0), s(sKF)))
            A('buffer_load_dwordx4 %s, %s, %s, %s offen offset:%d sc1' % (v(KX + 4 * i, 4), v(vL16), s(sWS, 4), s(sKF if i < 4 else sT0), 1024 * (i & 3)))
        for i in range(2):
            A('buffer_load_dwordx4 %s, %s, %s, %s offen offset:%d sc1' % (v(VX + 4 * i, 4), v(vL16), s(sWS, 4), s(sVF), 1024 * i))
        A('s_add_u32 %s, %s, %d' % (s(sKF), s(sKF), 256 * KB))
        A('s_add_u32 %s, %s, %d' % (s(sVF), s(sVF), 256 * KB))

    def bread(n):
        return ['ds_read_b128 %s, %s offset:%d' % (v(BR + 8 * (n % 3) + 4 * q, 4), v(vB), FR(n) * 2048 + 1024 * q) for q in range(2)]

    def aread(n):
        return 'ds_read_b128 %s, %s offset:%d' % (v(AR + 4 * (n % 4), 4), v(vA), FR(n) * 1024)

    prefetch_kv(0)
    gstamp(A, cfg, 2, vOne, True)
    A('s_cmp_eq_u32 %s, 1' % s(sLOCAL))
    A('s_cbranch_scc0 L_qk_step_g')
    for tag, sfx in (('l', ''), ('g', ' sc1')):
        step = 'L_qk_step_' + tag
        A.label(step)
        stamp(A, cfg, 0)
        pre = ['v_mov_b32 %s, 0' % v(ACC + i) for i in range(16)] + bread(0) + bread(1) + bread(2)
        RB = 'buffer_store_dword v71, %s, %s, %s offen%s' % (v(vOne), s(sWS, 4), s(sRing), sfx)
        for x in pre:
            A(x)
        if cfg.profile == 1 or 12 in cfg.stamps:
            A('s_waitcnt vmcnt(0)')
            stamp(A, cfg, 12)
        A('s_add_u32 %s, %s, 1' % (s(sNext), s(sSTEP)))
        A('s_waitcnt lgkmcnt(0)')
        stamp(A, cfg, 10)
        wait_bell(A, vSamp, sBell, [124, 125, 126, 127][:cfg.depth], sSTEP)
        dma_mem(A, vPoll, sMem)
        stamp(A, cfg, 1)
        A('s_waitcnt vmcnt(3)')
        A.label(step + '_go')
        A('s_barrier')
        stamp(A, cfg, 4)
        for n in range(4):
            A(aread(n))
        q = ['a0', 'a1', 'a2', 'a3']
        when = {n: max(n - 3, cfg.adelay[n // 4]) for n in range(4, 16)}
        for n in range(16):
            ks = FR(n)
            need = max(q.index('a%d' % n), max([i for i, x in enumerate(q) if x == 'b%d' % n] + [0]))
            A('s_waitcnt lgkmcnt(%d)' % (len(q) - 1 - need))
            Aop = v(AR + 4 * (n % 4), 4)
            mq1 = '%s %s, %s, %s, %s' % (SMF, v(ACC + 4, 4), Aop, v(BR + 8 * (n % 3), 8), v(vIdx))
            mk0 = '%s %s, %s, %s, %s' % (SMF, v(ACC + 8, 4), Aop, a(ks * 16, 8), v(vIdx))
            mk1 = '%s %s, %s, %s, %s' % (SMF, v(ACC + 12, 4), Aop, a(ks * 16 + 8, 8), v(vIdx))
            mq0 = '%s %s, %s, %s, %s' % (SMF, v(ACC, 4), Aop, v(WK0 + ks * 8, 8), v(vIdx))
            if n + 3 < 16:
                br = bread(n + 3)
                ar = [m for m in range(4, 16) if when[m] == n]
                A(mq1)
                for m in ar:
                    assert m - 4 < n
                    if m % 4 == 0:
                        A('s_waitcnt vmcnt(%d)' % (3 - m // 4))
                        A('s_barrier')
                    A(aread(m))
                    q.append('a%d' % m)
                A(mq0)
                A(br[0])
                A(mk0)
                A(br[1])
                A(mk1)
                q += ['b%d' % (n + 3)] * 2
            else:
                A(mq0); A(mq1); A(mk0); A(mk1)
        stamp(A, cfg, 5)
        for base, off in ((ACC, 0), (ACC + 8, 2048)):
            for r in range(4):
                A('v_permlane32_swap_b32 %s, %s' % (v(base + r), v(base + 4 + r)))
            for r in (0, 2):
                A('v_pk_add_f32 %s, %s, %s' % (v(base + r, 2), v(base + r, 2), v(base + 4 + r, 2)))
            A('v_cvt_pk_bf16_f32 %s, %s, %s' % (v(base + 4), v(base), v(base + 1)))
            A('v_cvt_pk_bf16_f32 %s, %s, %s' % (v(base + 5), v(base + 2), v(base + 3)))
            A('ds_write_b64 %s, %s offset:%d' % (v(vQTw), v(base + 4, 2), off))
        A('v_cmp_u_f32 vcc, %s, %s' % (v(ACC), v(ACC + 1)))
        A('v_cmp_u_f32 %s, %s, %s' % (s(sNan, 2), v(ACC + 2), v(ACC + 3)))
        A('s_waitcnt lgkmcnt(0)')
        A('s_barrier')
        stamp(A, cfg, 2)
        QFR, KFR = 16, 32
        A.label(step + '_ok')
        for ks in range(4):
            for u in range(2):
                A('ds_read_b64_tr_b16 %s, %s offset:%d' % (v(QFR + 4 * ks + 2 * u, 2), v(vQTr), (32 * ks + 16 * u) * 16))
        A('s_or_b64 vcc, vcc, %s' % s(sNan, 2))
        A('s_cmp_eq_u32 %s, %d' % (s(sSTEP), cfg.nsteps - 1))
        for ks in range(3):
            for u in range(2):
                A('ds_read_b64_tr_b16 %s, %s offset:%d' % (v(KFR + 4 * ks + 2 * u, 2), v(vQTr), 2048 + (32 * ks + 16 * u) * 16))
            if ks == 0:
                A('s_cbranch_vccnz %s_nan' % step)
            if ks == 1:
                A('s_cbranch_scc1 L_qk_last')
        nan_net(A, cfg, step + '_nan', step + '_ok', pre, step + '_go', vA, vPoll, sMem, AR, vT, sNan, sVer)
        S = ACC
        vml = ['buffer_load_dwordx2 %s, %s, %s, %s offen offset:%d sc1' % (v(VM + 4 * t, 2), v(vVM), s(sWS, 4), s(sVM), 256 * t) for t in range(2)]
        for ks in range(4):
            A('s_waitcnt lgkmcnt(%d)' % ((12, 12, 10, 8)[ks]))
            for jt in range(2):
                A('%s %s, %s, %s, %s' % (MF, v(S + 4 * jt, 4), v(KX + 16 * jt + 4 * ks, 4), v(QFR + 4 * ks, 4), v(S + 4 * jt, 4) if ks else '0'))
                if ks == 0:
                    A('ds_read_b64_tr_b16 %s, %s offset:%d' % (v(KFR + 12 + 2 * jt, 2), v(vQTr), 2048 + (96 + 16 * jt) * 16))
                if ks == 1 and cfg.vmat == 0:
                    A(vml[jt])
        A('s_waitcnt lgkmcnt(0)')
        stamp(A, cfg, 9)
        M, M2 = 68, 69
        PT, PM = 48, 52
        for ks in range(4):
            A('%s %s, %s, %s, %s' % (MF, v(S + 8, 4), v(KFR + 4 * ks, 4), v(QFR + 4 * ks, 4), v(S + 8, 4) if ks else '0'))
            if ks == 0:
                A('v_mov_b32 %s, 0' % v(PM + 2))
                A('v_mov_b32 %s, 0' % v(PM + 3))
            if ks == 1:
                A('v_mov_b32 v71, %s' % s(sNext))
            if ks == 2:
                A('v_max3_f32 %s, %s, %s, %s' % (v(M), v(S), v(S + 1), v(S + 2)))
                A('v_max3_f32 %s, %s, %s, %s' % (v(M), v(M), v(S + 3), v(S + 4)))
        A('v_max3_f32 %s, %s, %s, %s' % (v(M), v(M), v(S + 5), v(S + 6)))
        A('v_max_f32 %s, %s, %s' % (v(M), v(M), v(S + 7)))
        n = 6
        if cfg.vmat == 1:
            A(vml[0]); A(vml[1])
            n -= 2
        if cfg.ringat == 0:
            A(RB)
            n -= 1
        A('s_nop %d' % (n - 1))
        A('v_max3_f32 %s, %s, %s, %s' % (v(M), v(M), v(S + 8), v(S + 9)))
        A('v_max3_f32 %s, %s, %s, %s' % (v(M2), v(M), v(S + 10), v(S + 11)))
        A('v_max3_f32 %s, %s, %s, %s' % (v(M), v(M), v(S + 10), v(S + 11)))
        A('s_nop 1')
        A('v_permlane32_swap_b32 %s, %s' % (v(M), v(M2)))
        A('v_max_f32 %s, %s, %s' % (v(70), v(M), v(M2)))
        A('v_max_f32 %s, %s, %s' % (v(M), v(M), v(M2)))
        A('s_nop 1')
        A('v_permlane16_swap_b32 %s, %s' % (v(M), v(70)))
        A('v_max_f32 %s, %s, %s' % (v(M), v(M), v(70)))
        A('v_mul_f32 %s, %s, %s' % (v(M), s(sNC), v(M)))
        for i in range(0, 8, 2):
            A('v_pk_fma_f32 %s, %s, %s, %s op_sel_hi:[1,1,0]' % (v(S + i, 2), v(S + i, 2), s(sC, 2), v(M, 2)))
        A('v_add_f32 %s, %s, %s' % (v(70), v(M), v(vBias)))
        if cfg.ringat == 1:
            A(RB)
        for i in range(8):
            A('v_exp_f32 %s, %s' % (v(S + i), v(S + i)))
            if i in (2, 4, 6):
                A('v_cvt_pk_bf16_f32 %s, %s, %s' % (v(PT + i // 2 - 1), v(S + i - 2), v(S + i - 1)))
        A('v_pk_fma_f32 %s, %s, %s, %s op_sel_hi:[1,1,0]' % (v(S + 8, 2), v(S + 8, 2), s(sC, 2), v(70, 2)))
        A('v_cvt_pk_bf16_f32 %s, %s, %s' % (v(PT + 3), v(S + 6), v(S + 7)))
        A('v_pk_fma_f32 %s, %s, %s, %s op_sel_hi:[1,1,0]' % (v(S + 10, 2), v(S + 10, 2), s(sC, 2), v(70, 2)))
        A('v_exp_f32 %s, %s' % (v(S + 8), v(S + 8)))
        OA = 24
        A('%s %s, %s, %s, 0' % (MF, v(LS, 4), v(ONES, 4), v(PT, 4)))
        A('v_exp_f32 %s, %s' % (v(S + 9), v(S + 9)))
        A('%s %s, %s, %s, 0' % (MF, v(OA, 4), v(VX, 4), v(PT, 4)))
        A('v_exp_f32 %s, %s' % (v(S + 10), v(S + 10)))
        A('%s %s, %s, %s, 0' % (MF, v(OA + 4, 4), v(VX + 4, 4), v(PT, 4)))
        A('v_exp_f32 %s, %s' % (v(S + 11), v(S + 11)))
        l, d = A.uid('vm'), A.uid('vmd')
        stamp(A, cfg, 7)
        A('s_waitcnt vmcnt(%d)' % (1 if cfg.ringat < 2 else 0))
        A.label(l)
        A('v_max_u32 %s, %s, %s' % (v(vT), v(VM), v(VM + 4)))
        A('v_cmp_eq_u32 vcc, -1, %s' % v(vT))
        A('v_cvt_pk_bf16_f32 %s, %s, %s' % (v(PM), v(S + 8), v(S + 9)))
        A('v_cvt_pk_bf16_f32 %s, %s, %s' % (v(PM + 1), v(S + 10), v(S + 11)))
        A('s_nop 0')
        A('s_cbranch_vccnz %s' % d)
        A.ool(d + ':')
        for t in range(2):
            A.ool('buffer_load_dwordx2 %s, %s, %s, %s offen offset:%d sc1' % (v(VM + 4 * t, 2), v(vVM), s(sWS, 4), s(sVM), 256 * t))
        A.ool('s_sub_u32 %s, %s, 1\ns_cbranch_scc1 L_end\ns_waitcnt vmcnt(0)\ns_branch %s' % (s(sBUD), s(sBUD), l))
        stamp(A, cfg, 8)
        if cfg.ringat == 2:
            A(RB)
        A('%s %s, %s, %s, %s' % (MF, v(LS, 4), v(ONES, 4), v(PM, 4), v(LS, 4)))
        for t in range(2):
            A('%s %s, %s, %s, %s' % (MF, v(OA + 4 * t, 4), v(VM + 4 * t, 4), v(PM, 4), v(OA + 4 * t, 4)))
        A('s_nop 0')
        A('v_rcp_f32 %s, %s' % (v(M), v(LS)))
        A('s_nop 1')
        for i in range(0, 4, 2):
            A('v_pk_mul_f32 %s, %s, %s op_sel_hi:[1,0]' % (v(OA + i, 2), v(OA + i, 2), v(M, 2)))
        A('v_cvt_pk_bf16_f32 %s, %s, %s' % (v(OA), v(OA), v(OA + 1)))
        A('v_cvt_pk_bf16_f32 %s, %s, %s' % (v(OA + 1), v(OA + 2), v(OA + 3)))
        for i in range(4, 8, 2):
            A('v_pk_mul_f32 %s, %s, %s op_sel_hi:[1,0]' % (v(OA + i, 2), v(OA + i, 2), v(M, 2)))
        A('v_min_u32 %s, -2, %s' % (v(OA), v(OA)))
        A('v_cvt_pk_bf16_f32 %s, %s, %s' % (v(OA + 2), v(OA + 4), v(OA + 5)))
        A('v_cvt_pk_bf16_f32 %s, %s, %s' % (v(OA + 3), v(OA + 6), v(OA + 7)))
        A('buffer_store_dwordx4 %s, %s, %s, %s offen%s' % (v(OA, 4), v(vO), s(sWS, 4), s(sO), sfx))
        if cfg.ringat == 3:
            A(RB)
        stamp(A, cfg, 3)
        for u in range(2):
            A('ds_read_b64_tr_b16 %s, %s offset:%d' % (v(32 + 2 * u, 2), v(vKMr), 2048 + 256 * u))
        for i in range(4):
            A('v_mov_b32 %s, -1' % v(36 + i))
        ring(A, sT0, sO, -1, 32 * KB)
        A('buffer_store_dwordx4 v[36:39], %s, %s, %s offen%s' % (v(vO), s(sWS, 4), s(sT0), sfx))
        A('v_mov_b32 %s, %s' % (v(40), s(sSTEP)))
        A('buffer_store_dword v40, %s, %s, %s offen sc1' % (v(vOne), s(sWS, 4), s(sFlag)))
        A('s_waitcnt lgkmcnt(0)')
        if not cfg.nokm:
            A('buffer_store_dwordx4 v[32:35], %s, %s, %s offen sc1' % (v(vKMo), s(sWS, 4), s(sKM)))
        A('s_add_u32 %s, %s, %d' % (s(sKM), s(sKM), 64 * KB))
        if not cfg.nokv:
            prefetch_kv(1)
        stamp_flush(A, cfg, 15, vT, vOne)
        for reg, stepb in ((sO, 32 * KB), (sMem, 16 * KB), (sVM, 2 * KB)):
            ring_adv(A, reg, stepb)
        A('s_add_u32 %s, %s, 1' % (s(sSTEP), s(sSTEP)))
        A('s_branch %s' % step)
        A.flush_tail()
    A.label('L_qk_last')
    for u in range(2):
        A('ds_read_b64_tr_b16 %s, %s offset:%d' % (v(32 + 2 * u, 2), v(vKMr), 2048 + 256 * u))
    A('s_waitcnt lgkmcnt(0)')
    A('buffer_store_dwordx4 v[32:35], %s, %s, %s offen sc1' % (v(vKMo), s(sWS, 4), s(sKM)))
    A('s_waitcnt vmcnt(0)')
    A('s_barrier')
    gstamp(A, cfg, 3, vOne, True)
    A('v_mov_b32 v40, %d' % cfg.nsteps)
    A('buffer_store_dword v40, %s, %s, %s offen sc1' % (v(vOne), s(sWS, 4), s(sFlag)))
    A('s_branch L_end')


def gen_vo(A, cfg):
    vT = 1; vA = 2; vB = 3; vPoll = 4; vSamp = 5; vRw = 6; vRr = 7; vIdx = 8; vT16 = 9; vT8 = 10
    vVM = 11; vOp = 12; vOne = 13; vSp = 14; vRw2 = 15
    ACC, AR, SW = 16, 48, 64
    OP = 32
    WV0 = 128
    WV1 = 192
    sMem, sO, sVM, sVMG, sPart, sRem, sFlag, sO2, sMemW, sBell, sR0, sR1, sR2, sSel = range(50, 64)
    sNan, sVer, sNext, sRing, sBellO = 64, 66, 67, 26 + 1, 96
    A.label('L_vo')
    A('s_lshl_b32 %s, %s, 4' % (s(sT1), s(sGRP)))
    A('s_add_u32 %s, %s, %s' % (s(sT1), s(sT1), s(sJ)))
    common_chain_init(A, vB, vSp, vA, vOne, vIdx)
    gstamp(A, cfg, 0, vOne, True)
    srd(A, sSA, sWV, 8 * MB)
    srd(A, sSB, sWO, 8 * MB)
    A('s_and_b32 %s, %s, 1' % (s(sT0), s(sWAVE)))
    A('s_lshl_b32 %s, %s, 6' % (s(sT0), s(sT0)))
    A('v_add_u32 v16, %s, v0' % s(sT0))
    A('v_lshlrev_b32 %s, 4, v16' % v(vT16))
    A('v_lshlrev_b32 %s, 3, v16' % v(vT8))
    A('s_lshl_b32 %s, %s, 16' % (s(sMem), s(sGRP)))
    A('s_add_u32 %s, %s, %d' % (s(sMem), s(sMem), MEMR))
    A('s_lshl_b32 %s, %s, 10' % (s(sT0), s(sJ)))
    A('s_add_u32 %s, %s, %s' % (s(sMemW), s(sMem), s(sT0)))
    A('s_lshl_b32 %s, %s, 17' % (s(sO), s(sGRP)))
    A('s_add_u32 %s, %s, %d' % (s(sO), s(sO), OR_))
    A('s_lshl_b32 %s, %s, 13' % (s(sVM), s(sT1)))
    A('s_add_u32 %s, %s, %d' % (s(sVM), s(sVM), VMR))
    A('s_lshl_b32 %s, %s, 11' % (s(sVMG), s(sT1)))
    A('s_add_u32 %s, %s, %s' % (s(sVMG), s(sVMG), hx(VMG)))
    A('s_lshl_b32 %s, %s, 16' % (s(sRem), s(sT1)))
    A('s_xor_b32 %s, %s, %d' % (s(sPart), s(sRem), 16 << 16))
    A('s_add_u32 %s, %s, %s' % (s(sPart), s(sPart), hx(PART)))
    A('s_add_u32 %s, %s, %s' % (s(sRem), s(sRem), hx(PART)))
    A('s_lshl_b32 %s, %s, 7' % (s(sFlag), s(sT1)))
    A('s_add_u32 %s, %s, %d' % (s(sFlag), s(sFlag), CT_VM))
    A('s_and_b32 %s, %s, 1' % (s(sSel), s(sWAVE)))
    A('s_lshl_b32 %s, %s, 13' % (s(sSel), s(sSel)))
    A('s_lshr_b32 %s, %s, 1' % (s(sT0), s(sWAVE)))
    A('s_lshl_b32 %s, %s, 10' % (s(sT0), s(sT0)))
    A('s_add_u32 %s, %s, %s' % (s(sSel), s(sSel), s(sT0)))
    A('s_add_u32 %s, %s, %s' % (s(sSel), s(sSel), s(sRem)))
    A('s_add_u32 %s, %s, %d' % (s(sSel), s(sSel), 32 * KB))
    A('s_lshl_b32 %s, %s, 10' % (s(sRing), s(sGRP)))
    A('s_lshl_b32 %s, %s, 8' % (s(sBell), s(sWAVE)))
    A('s_add_u32 %s, %s, %s' % (s(sBell), s(sBell), s(sRing)))
    A('s_add_u32 %s, %s, %d' % (s(sBell), s(sBell), CT_BELL))
    A('s_add_u32 %s, %s, 2048' % (s(sBellO), s(sBell)))
    A('s_lshr_b32 %s, %s, 2' % (s(sT0), s(sJ)))
    A('s_lshl_b32 %s, %s, 8' % (s(sT0), s(sT0)))
    A('s_add_u32 %s, %s, %s' % (s(sRing), s(sRing), s(sT0)))
    A('s_and_b32 %s, %s, 3' % (s(sT0), s(sJ)))
    A('s_lshl_b32 %s, %s, 3' % (s(sT0), s(sT0)))
    A('s_add_u32 %s, %s, %s' % (s(sRing), s(sRing), s(sT0)))
    A('s_and_b32 %s, %s, 1' % (s(sT0), s(sWAVE)))
    A('s_lshl_b32 %s, %s, 2' % (s(sT0), s(sT0)))
    A('s_add_u32 %s, %s, %s' % (s(sRing), s(sRing), s(sT0)))
    A('s_add_u32 %s, %s, %d' % (s(sRing), s(sRing), CT_BELL))
    A('s_lshl_b32 %s, %s, 9' % (s(sT0), s(sWAVE)))
    A('v_lshlrev_b32 %s, 3, v0' % v(vVM))
    A('v_add_u32 %s, %s, %s' % (v(vVM), s(sT0), v(vVM)))
    A('v_lshrrev_b32 v17, 4, v16')
    A('v_lshlrev_b32 v17, 3, v17')
    A('v_and_b32 v18, 1, v0')
    A('v_lshl_add_u32 v17, v18, 2, v17')
    A('v_bfe_u32 v18, v0, 1, 3')
    A('v_mul_u32_u24 v19, 320, v18')
    A('v_lshl_add_u32 v19, v17, 2, v19')
    A('v_add_u32 %s, %d, v19' % (v(vRr), RED))
    A('v_lshlrev_b32 v18, 11, v18')
    A('v_lshl_add_u32 v17, v17, 1, v18')
    A('s_lshl_b32 %s, %s, 7' % (s(sT0), s(sJ)))
    A('v_add_u32 v17, %s, v17' % s(sT0))
    A('global_load_dwordx2 v[28:29], v17, %s' % s(sMEM0, 2))
    lane_consts(A, 16, 17, 24)
    sparse_rowlane_mem(A, 22, 16, 17, 25)
    A('s_lshl_b32 %s, %s, 8' % (s(sT0), s(sT1)))
    A('s_lshl_b32 %s, %s, 6' % (s(sT2), s(sWAVE)))
    A('s_add_u32 %s, %s, %s' % (s(sT2), s(sT2), s(sT0)))
    vPair, vPairO = vPoll, vOp
    dma_offsets(A, vPair, 22, 24, 25, 13, sT2)
    sparse_rowlane_o(A, 22, 16, 17, 25)
    A('s_lshl_b32 %s, %s, 22' % (s(sT0), s(sGRP)))
    A('s_lshl_b32 %s, %s, 20' % (s(sT2), s(sWAVE)))
    A('s_add_u32 %s, %s, %s' % (s(sT0), s(sT0), s(sT2)))
    A('s_lshl_b32 %s, %s, 7' % (s(sT2), s(sJ)))
    A('s_add_u32 %s, %s, %s' % (s(sT2), s(sT2), s(sT0)))
    dma_offsets(A, vPairO, 22, 24, 25, 11, sT2)
    ops = []
    for ks in range(16):
        for hb in range(2):
            for u in range(2):
                q = 4 * hb + 2 * u
                ops.append(dict(srd=sSA, voff=vPair, soff=(64 * ks + 32 * hb + 2 * u) * 8192,
                                reads=[(v(WV0 + ks * 8 + q, 2), 0),
                                       (a(WV1 + ks * 8 + q, 2) if ks < 8 else ('res', 2 * (ks - 8) + hb, u), 512)]))
    lo, hi = [], []
    for ks in range(8):
        for hb in range(2):
            for u in range(2):
                q, so = 4 * hb + 2 * u, (64 * ks + 8 * hb + 2 * u) * 2048
                lo.append(dict(srd=sSB, voff=vPairO, soff=so, reads=[(a((ks * 3 + t) * 8 + q, 2), 512 * t) for t in range(2)]))
                hi.append(dict(srd=sSB, voff=vPairO, soff=so + 64, reads=[(a((ks * 3 + 2) * 8 + q, 2), 0), (('res', 16 + 2 * ks + hb, u), 512)]))
    for i in range(0, 32, 8):
        ops += lo[i:i + 8] + hi[i:i + 8]

    def init(n):
        for i in range(4):
            A('v_mov_b32 %s, -1' % v(20 + i))
        for sl in range(1, 4):
            A('s_add_u32 %s, %s, %d' % (s(sT0), s(sMemW), sl * 16 * KB))
            A('buffer_store_dwordx2 v[20:21], %s, %s, %s offen sc1' % (v(vT8), s(sWS, 4), s(sT0)))
        for sl in range(4):
            A('s_add_u32 %s, %s, %d' % (s(sT0), s(sVM), sl * 2 * KB))
            A('buffer_store_dwordx2 v[20:21], %s, %s, %s offen sc1' % (v(vVM), s(sWS, 4), s(sT0)))
        for k in range(8 * cfg.nrep):
            A('s_add_u32 %s, %s, %d' % (s(sT0), s(sRem), k * 2 * KB))
            A('buffer_store_dwordx4 v[20:23], %s, %s, %s offen sc1' % (v(vT16), s(sWS, 4), s(sT0)))
        A('v_and_b32 v24, 0x3ff, %s' % v(vT16))
        A('buffer_store_dwordx4 v[20:23], v24, %s, %s offen sc1' % (s(sWS, 4), s(sSel)))
        A('v_mov_b32 v25, 0')
        A('buffer_store_dword v25, %s, %s, %s offen sc1' % (v(vOne), s(sWS, 4), s(sFlag)))
        A('buffer_store_dword v25, %s, %s, %s offen sc1' % (v(vOne), s(sWS, 4), s(sRing)))
        A('s_waitcnt vmcnt(%d)' % min(63, n + 3 + 4 + 8 * cfg.nrep + 3))
        A('v_min_u32 v28, -2, v28')
        A('v_min_u32 v29, -2, v29')
        A('buffer_store_dwordx2 v[28:29], %s, %s, %s offen sc1' % (v(vT8), s(sWS, 4), s(sMemW)))
        A('s_add_u32 %s, %s, %d' % (s(sMemW), s(sMemW), 16 * KB))
        publish_xcc(A, vOne)
    weight_loader(A, ops, vB, vSp, init, resident=32, vfin=vSamp, covered=lambda: grid_arrive(A, vT, vSamp))
    A('v_mov_b32 %s, %s' % (v(vB), v(vSamp)))
    gstamp(A, cfg, 1, vOne, True)
    A('v_lshlrev_b32 v16, 4, v0')
    A('s_lshl_b32 %s, %s, 12' % (s(sT0), s(sWAVE)))
    A('v_add_u32 %s, %s, v16' % (v(vPoll), s(sT0)))
    A('v_and_b32 %s, 7, v0' % v(vSamp))
    A('v_lshlrev_b32 %s, 2, %s' % (v(vSamp), v(vSamp)))
    A('v_and_b32 %s, 15, v0' % v(vSp))
    A('v_lshlrev_b32 %s, 2, %s' % (v(vSp), v(vSp)))
    A('s_add_u32 m0, %s, %d' % (s(sT0), MS))
    A('s_lshl_b32 %s, %s, 13' % (s(sT0), s(sWAVE)))
    A('v_add_u32 %s, %s, v16' % (v(vOp), s(sT0)))
    A('v_lshrrev_b32 v16, 5, v0')
    A('v_lshlrev_b32 v16, 4, v16')
    A('v_and_b32 v17, 15, v0')
    A('v_add_u32 v16, v16, v17')
    A('v_lshlrev_b32 v16, 2, v16')
    A('v_bfe_u32 v17, v0, 4, 1')
    A('v_mul_u32_u24 v17, 1280, v17')
    A('v_add_u32 v16, v17, v16')
    A('s_mul_i32 %s, %s, 2560' % (s(sT0), s(sWAVE)))
    A('s_add_u32 %s, %s, %d' % (s(sT0), s(sT0), RED))
    A('v_add_u32 %s, %s, v16' % (v(vRw), s(sT0)))
    A('v_add_u32 %s, 128, %s' % (v(vRw2), v(vRw)))
    grid_wait(A, 16, 18, cfg, [(192, cfg.nchain)])
    group_local(A, 16, 18)
    A('s_barrier')
    A('s_mov_b32 %s, 0' % s(sSTEP))
    A('s_mov_b32 %s, -1' % s(sVer))
    A('s_mov_b32 s98, 0')
    A('s_mov_b32 s97, 0')

    others = ((sO, 32 * KB), (sMemW, 16 * KB), (sVM, 2 * KB), (sPart, 2 * KB), (sRem, 2 * KB))
    sMask = 99

    def swap_in(base):
        for k in range(16):
            A('ds_read_b128 %s, %s offset:%d' % (v(SW + 4 * k, 4), v(vB), base + 1024 * k))

    def aread(ks):
        return 'ds_read_b128 %s, %s offset:%d' % (v(AR + 4 * (ks % 4), 4), v(vA), ks * 1024)

    def part_addr(base, hi, k):
        return (base if k < 1 else hi + k - 1), 0

    for reg, stepb in others:
        ring(A, sT0, reg, -1, stepb)
        A('s_mov_b32 %s, %s' % (s(reg), s(sT0)))
    A('s_lshr_b32 %s, %s, 1' % (s(sMask), s(sWAVE)))
    A('s_lshl_b32 %s, %s, 30' % (s(sMask), s(sMask)))
    gstamp(A, cfg, 2, vOne, True)
    A('s_cmp_eq_u32 %s, 1' % s(sLOCAL))
    A('s_cbranch_scc0 L_vo_step_g')
    for tag, sfx in (('l', ''), ('g', ' sc1')):
        step = 'L_vo_step_' + tag
        A.label(step)
        stamp(A, cfg, 0)
        wait_bell(A, vSamp, sBell, [32, 33, 34, 35][:cfg.vdepth], sSTEP)
        dma_mem(A, vPoll, sMem)
        stamp(A, cfg, 1)
        swap_in(0)
        for i in range(8):
            A('v_mov_b32 %s, 0' % v(ACC + i))
        for i in range(4):
            A('v_mov_b32 %s, -1' % v(ACC + 8 + i))
        A('v_mov_b32 %s, %s' % (v(ACC + 12), s(sSTEP)))
        A('v_or_b32 %s, %s, %s' % (v(ACC + 13), s(sMask), v(vT16)))
        A('s_mov_b32 %s, %s' % (s(sR1), s(sVM)))
        A('s_mov_b32 %s, %s' % (s(sR2), s(sRem)))
        for reg, stepb in others:
            ring_adv(A, reg, stepb)
        ring(A, sR0, sMemW, -2, 16 * KB)
        A('s_add_u32 %s, %s, 1' % (s(sNext), s(sSTEP)))
        A('s_waitcnt vmcnt(0) lgkmcnt(0)')
        A.label(step + '_go')
        A('s_barrier')
        for ks in range(4):
            A(aread(ks))
        house = ['buffer_store_dwordx2 %s, %s, %s, %s offen%s' % (v(ACC + 8, 2), v(vT8), s(sWS, 4), s(sR0), sfx),
                 'buffer_store_dwordx2 %s, %s, %s, %s offen%s' % (v(ACC + 8, 2), v(vVM), s(sWS, 4), s(sR1), sfx),
                 'buffer_store_dword %s, %s, %s, %s offen sc1' % (v(ACC + 12), v(vOne), s(sWS, 4), s(sFlag))]
        for k in range(cfg.nrep):
            house.append('s_add_u32 %s, %s, %d' % (s(sT1), s(sR2), 16 * KB * k))
            house.append('buffer_store_dwordx4 %s, %s, %s, %s offen sc1' % (v(ACC + 8, 4), v(ACC + 13), s(sWS, 4), s(sT1)))
        for ks in range(16):
            A('s_waitcnt lgkmcnt(%d)' % min(3, 15 - ks))
            Aop = v(AR + 4 * (ks % 4), 4)
            A('%s %s, %s, %s, %s' % (SMF, v(ACC, 4), Aop, v(WV0 + ks * 8, 8), v(vIdx)))
            if house:
                A(house.pop(0))
            A('%s %s, %s, %s, %s' % (SMF, v(ACC + 4, 4), Aop, a(WV1 + ks * 8, 8) if ks < 8 else v(SW + (ks - 8) * 8, 8), v(vIdx)))
            if ks + 4 < 16:
                A(aread(ks + 4))
        assert not house
        A('s_nop 7')
        for r in range(4):
            A('v_permlane32_swap_b32 %s, %s' % (v(ACC + r), v(ACC + 4 + r)))
        for r in (0, 2):
            A('v_pk_add_f32 %s, %s, %s' % (v(ACC + r, 2), v(ACC + r, 2), v(ACC + 4 + r, 2)))
        A('v_cmp_u_f32 vcc, %s, %s' % (v(ACC), v(ACC + 1)))
        A('v_cmp_u_f32 %s, %s, %s' % (s(sNan, 2), v(ACC + 2), v(ACC + 3)))
        A('v_cvt_pk_bf16_f32 %s, %s, %s' % (v(ACC + 4), v(ACC), v(ACC + 1)))
        A('v_cvt_pk_bf16_f32 %s, %s, %s' % (v(ACC + 5), v(ACC + 2), v(ACC + 3)))
        A('v_min_u32 %s, -2, %s' % (v(ACC + 4), v(ACC + 4)))
        A('s_or_b64 vcc, vcc, %s' % s(sNan, 2))
        A('s_cbranch_vccnz %s_nan' % step)
        A.label(step + '_ok')
        nan_net(A, cfg, step + '_nan', step + '_ok', ['v_mov_b32 %s, 0' % v(ACC + i) for i in range(8)], step + '_go', vA, vPoll, sMem, AR, vT, sNan, sVer)
        A('buffer_store_dwordx2 %s, %s, %s, %s offen%s' % (v(ACC + 4, 2), v(vVM), s(sWS, 4), s(sVM), sfx))
        if not cfg.nokm:
            A('buffer_store_dwordx2 %s, %s, %s, %s offen sc1' % (v(ACC + 4, 2), v(vVM), s(sWS, 4), s(sVMG)))
        A('s_add_u32 %s, %s, %d' % (s(sVMG), s(sVMG), 64 * KB))
        stamp(A, cfg, 2)
        A('s_cmp_eq_u32 %s, %d' % (s(sSTEP), cfg.nsteps - 1))
        A('s_cbranch_scc1 L_vo_last')
        swap_in(16 * KB)
        for i in range(16):
            A('v_mov_b32 %s, 0' % v(ACC + i))
        A('s_add_u32 %s, %s, 4096' % (s(sO2), s(sO)))
        for k in range(1, cfg.nrep):
            A('s_add_u32 %s, %s, %d' % (s(sR0 + k - 1), s(sPart), 16 * KB * k))

        def oload(p):
            return 'buffer_load_dwordx4 %s, %s, %s, %s offen offset:%d sc1' % (v(OP + 4 * p, 4), v(vOp), s(sWS, 4), s(sO if p < 4 else sO2), 1024 * (p & 3))

        def omf(p, t):
            B = a((p * 3 + t) * 8, 8) if t < 3 else v(SW + p * 8, 8)
            return '%s %s, %s, %s, %s' % (SMF, v(ACC + 4 * t, 4), v(OP + 4 * p, 4), B, v(vIdx))
        base = A.uid('op')
        if cfg.near:
            A('s_cmp_eq_u32 %s, 0' % s(sSTEP))
            A('s_cbranch_scc1 %s_probe' % base)
            A('s_cmp_eq_u32 %s, 4' % s(sSTEP))
            A('s_cbranch_scc1 %s_pick' % base)
            A.label(base + '_cal')
            main, A.lines = A.lines, []
            A.label(base + '_probe')
            A('s_waitcnt vmcnt(0) lgkmcnt(0)')
            A('s_mov_b32 s64, -1')
            for rep in range(3):
                A('s_memtime s[68:69]')
                A('s_waitcnt lgkmcnt(0)')
                A('s_mov_b32 s65, s68')
                A('buffer_load_dword v32, %s, %s, %s offen offset:%d sc1' % (v(vOne), s(sWS, 4), s(sSel), 256 * rep))
                A('s_waitcnt vmcnt(0)')
                A('s_memtime s[68:69]')
                A('s_waitcnt lgkmcnt(0)')
                A('s_sub_u32 s68, s68, s65')
                A('s_min_u32 s64, s64, s68')
            A('s_lshl_b32 %s, %s, 2' % (s(sT0), s(sWAVE)))
            A('v_mov_b32 v33, %d' % RED)
            A('v_add_u32 v34, %s, v33' % s(sT0))
            A('v_mov_b32 v32, s64')
            A('ds_write_b32 v34, v32')
            A('s_waitcnt lgkmcnt(0)')
            A('s_barrier')
            A('ds_read_b128 v[36:39], v33')
            A('s_waitcnt lgkmcnt(0)')
            A('s_barrier')
            A('v_min_u32 v36, v36, v38')
            A('v_min_u32 v37, v37, v39')
            A('v_cmp_lt_u32 vcc, v37, v36')
            A('s_lshl_b32 %s, %s, 3' % (s(sT0), s(sGRP)))
            A('s_lshl_b32 %s, 0x100, %s' % (s(sT0), s(sT0)))
            A('s_cmp_eq_u64 vcc, 0')
            A('s_cselect_b32 %s, 0, %s' % (s(sT0), s(sT0)))
            A('s_add_u32 %s, %s, 1' % (s(sT0), s(sT0)))
            A('s_cmp_lg_u32 %s, 0' % s(sWAVE))
            A('s_cbranch_scc1 %s_cal' % base)
            A('s_mov_b64 exec, 1')
            A('v_mov_b32 v32, 0')
            A('v_mov_b32 v33, %s' % s(sT0))
            A('global_atomic_add v32, v33, %s offset:196 sc1' % s(sDBG, 2))
            A('s_mov_b64 exec, -1')
            A('s_branch %s_cal' % base)
            A.label(base + '_pick')
            A('v_mov_b32 v32, 0')
            A('global_load_dword v33, v32, %s offset:196 sc1' % s(sDBG, 2))
            spin_fail(A)
            A('s_waitcnt vmcnt(0)')
            A('v_readfirstlane_b32 %s, v33' % s(sT1))
            A('s_and_b32 %s, %s, 0xff' % (s(sT0), s(sT1)))
            A('s_cmp_lt_u32 %s, 32' % s(sT0))
            A('s_cbranch_scc1 %s_pick' % base)
            for reg, flip in ((sRem, 0), (sPart, 1)):
                A('s_xor_b32 %s, %s, %d' % (s(sT0), s(sGRP), flip))
                A('s_lshl_b32 %s, %s, 3' % (s(sT0), s(sT0)))
                A('s_add_u32 %s, %s, 8' % (s(sT0), s(sT0)))
                A('s_lshr_b32 %s, %s, %s' % (s(sT0), s(sT1), s(sT0)))
                A('s_and_b32 %s, %s, 0xff' % (s(sT0), s(sT0)))
                A('s_cmp_gt_u32 %s, 8' % s(sT0))
                A('s_cselect_b32 %s, %d, 0' % (s(sT0), 8 * KB))
                A('s_add_u32 %s, %s, %s' % (s(reg), s(reg), s(sT0)))
            A('s_branch %s_cal' % base)
            A.tail += A.lines
            A.lines = main
        A('v_mov_b32 v0, %s' % s(sNext))
        A('s_waitcnt lgkmcnt(0)')
        wait_bell(A, vSp, sBellO, [OP, OP + 1, OP + 2, OP + 3][:cfg.odepth], sNext)
        for p in range(8):
            A(oload(p))
        stamp(A, cfg, 9)
        for p in range(-1, 8):
            if p >= 0:
                A.label('%s_c%d' % (base, p))
                A(omf(p, 0))
                A(omf(p, 1))
            if p < 7:
                A('s_waitcnt vmcnt(%d)' % (6 - p))
                A('v_cmp_eq_u32 vcc, -1, %s' % v(OP + 4 * (p + 1)))
            if p >= 0:
                A(omf(p, 2))
                A(omf(p, 3))
            if p < 7:
                fix = '%s_f%d' % (base, p + 1)
                A('s_cbranch_vccnz %s' % fix)
                A.ool(fix + ':')
                if cfg.profile:
                    A.ool('s_add_u32 s97, s97, 1')
                for k in range(p + 1, 8):
                    A.ool(oload(k))
                A.ool('s_sub_u32 %s, %s, 1\ns_cbranch_scc1 L_end' % (s(sBUD), s(sBUD)))
                A.ool('s_waitcnt vmcnt(%d)' % (6 - p))
                A.ool('v_cmp_eq_u32 vcc, -1, %s' % v(OP + 4 * (p + 1)))
                A.ool('s_cbranch_vccnz %s' % fix)
                A.ool('s_branch %s_c%d' % (base, p + 1))
        A.label('%s_done' % base)
        stamp(A, cfg, 3)
        for tp in range(2):
            for r in range(4):
                A('v_permlane32_swap_b32 %s, %s' % (v(ACC + 8 * tp + r), v(ACC + 8 * tp + 4 + r)))
            for r in (0, 2):
                A('v_pk_add_f32 %s, %s, %s' % (v(ACC + 8 * tp + r, 2), v(ACC + 8 * tp + r, 2), v(ACC + 8 * tp + 4 + r, 2)))
            for r in (0, 2):
                A('ds_write2_b32 %s, %s, %s offset0:%d offset1:%d' % (v(vRw2 if tp else vRw), v(ACC + 8 * tp + r), v(ACC + 8 * tp + r + 1), 80 * r, 80 * r + 80))
        A('s_cmp_ge_u32 %s, 2' % s(sWAVE))
        A('s_waitcnt lgkmcnt(0)')
        A('s_barrier')
        stamp(A, cfg, 7)
        for p in range(4):
            A('ds_read_b128 %s, %s offset:%d' % (v(ACC + 4 * p, 4), v(vRr), 2560 * p))
        A('s_waitcnt lgkmcnt(2)')
        for c in (0, 2):
            A('v_pk_add_f32 %s, %s, %s' % (v(ACC + c, 2), v(ACC + c, 2), v(ACC + 4 + c, 2)))
        A('s_waitcnt lgkmcnt(0)')
        for c in (0, 2):
            A('v_pk_add_f32 %s, %s, %s' % (v(ACC + 8 + c, 2), v(ACC + 8 + c, 2), v(ACC + 12 + c, 2)))
        for c in (0, 2):
            A('v_pk_add_f32 %s, %s, %s' % (v(ACC + c, 2), v(ACC + c, 2), v(ACC + 8 + c, 2)))
        A('s_cbranch_scc1 %s_ld' % step)
        A('v_min_u32 %s, -2, %s' % (v(ACC), v(ACC)))
        for k in range(cfg.nrep):
            r, o = part_addr(sPart, sR0, k)
            A('buffer_store_dwordx4 %s, %s, %s, %s offen offset:%d sc1' % (v(ACC, 4), v(vT16), s(sWS, 4), s(r), o))
        stamp(A, cfg, 4)
        A('s_branch %s_fin' % step)
        A.label(step + '_ld')
        for k in range(1, cfg.nrep):
            A('s_add_u32 %s, %s, %d' % (s(sR0 + k - 1), s(sRem), 16 * KB * k))

        def rload(k):
            r, o = part_addr(sRem, sR0, k)
            return 'buffer_load_dwordx4 %s, %s, %s, %s offen offset:%d sc1' % (v(OP + 4 * k, 4), v(vT16), s(sWS, 4), s(r), o)
        stamp(A, cfg, 10)
        if cfg.profile:
            A('s_mov_b32 %s, 0' % s(sSTAMP + 22))
        for k in range(cfg.nrep):
            if cfg.rsleep[k]:
                A('s_sleep %d' % cfg.rsleep[k])
            A(rload(k))
        stamp(A, cfg, 8)
        got = A.uid('got')
        for k in range(cfg.nrep):
            if k == cfg.nrep - 1:
                A.label(got + '_l')
            A('s_waitcnt vmcnt(%d)' % (cfg.nrep - 1 - k))
            A('v_cmp_eq_u32 vcc, -1, %s' % v(OP + 4 * k))
            if k == 0:
                A('s_cbranch_vccnz %s_%s' % (got, 'n1' if cfg.nrep > 1 else 'again'))
                break
        for c in (0, 2):
            A('v_pk_add_f32 %s, %s, %s' % (v(ACC + c, 2), v(ACC + c, 2), v(OP + c, 2)))
        if cfg.profile:
            A('s_mov_b32 %s, 0' % s(sSTAMP + 12))
        A.label(got + '_fin')
        if cfg.mring == 0:
            A('buffer_store_dword v0, %s, %s, %s offen%s' % (v(vOne), s(sWS, 4), s(sRing), sfx))
        A('v_cvt_pk_bf16_f32 %s, %s, %s' % (v(ACC + 12), v(ACC), v(ACC + 1)))
        A('v_cvt_pk_bf16_f32 %s, %s, %s' % (v(ACC + 13), v(ACC + 2), v(ACC + 3)))
        A('v_min_u32 %s, -2, %s' % (v(ACC + 12), v(ACC + 12)))
        A('v_min_u32 %s, -2, %s' % (v(ACC + 13), v(ACC + 13)))
        A('buffer_store_dwordx2 %s, %s, %s, %s offen%s' % (v(ACC + 12, 2), v(vT8), s(sWS, 4), s(sMemW), sfx))
        if cfg.mring == 1:
            A('buffer_store_dword v0, %s, %s, %s offen%s' % (v(vOne), s(sWS, 4), s(sRing), sfx))
        for k in range(1, cfg.nrep):
            A.ool('%s_n%d:' % (got, k))
            A.ool('s_waitcnt vmcnt(%d)' % (cfg.nrep - 1 - k))
            A.ool('v_cmp_eq_u32 vcc, -1, %s' % v(OP + 4 * k))
            if k < cfg.nrep - 1:
                A.ool('s_cbranch_vccnz %s_n%d' % (got, k + 1))
            else:
                A.ool('s_cbranch_vccnz %s_again' % got)
            for c in (0, 2):
                A.ool('v_pk_add_f32 %s, %s, %s' % (v(ACC + c, 2), v(ACC + c, 2), v(OP + 4 * k + c, 2)))
            if cfg.profile:
                A.ool('s_mov_b32 %s, %d' % (s(sSTAMP + 12), k))
            A.ool('s_branch %s_fin' % got)
        A.ool(got + '_again:')
        if cfg.profile:
            A.ool('s_add_u32 %s, %s, 1' % (s(sSTAMP + 22), s(sSTAMP + 22)))
        A.ool(rload(cfg.nrep - 1))
        A.ool('s_sub_u32 %s, %s, 1\ns_cbranch_scc1 L_end\ns_branch %s_%s' % (s(sBUD), s(sBUD), got, 'n%d' % (cfg.nrep - 1) if cfg.nrep > 1 else 'l'))
        stamp(A, cfg, 5)
        A.label(step + '_fin')
        stamp_flush(A, cfg, 15, vT, vOne, wave=cfg.pwave)
        ring_adv(A, sMem, 16 * KB)
        A('s_add_u32 %s, %s, 1' % (s(sSTEP), s(sSTEP)))
        A('s_branch %s' % step)
        A.flush_tail()
    A.label('L_vo_last')
    A('s_waitcnt vmcnt(0)')
    A('s_barrier')
    gstamp(A, cfg, 3, vOne, True)
    A('v_mov_b32 v40, %d' % cfg.nsteps)
    A('buffer_store_dword v40, %s, %s, %s offen sc1' % (v(vOne), s(sWS, 4), s(sFlag)))
    A('s_branch L_end')
```

```python
from asmlib import *
from layout import *

sWG, sXCC = 2, 3
sX, sMEM0, sWQ, sWK, sWV, sWO, sW1, sW2, sOUT, sDBG, sWSP = 4, 6, 8, 10, 12, 14, 16, 18, 20, 22, 24
sBUD = 26
sWS = 28
sSA, sSB = 32, 36
sWAVE, sGRP, sJ, sSTEP, sLOCAL = 40, 41, 42, 43, 44
sRES, sSPARE = 45, 46
sT0, sT1, sT2 = 47, 48, 49
sSTAMP = 70

LDS_SPARE = 128 * KB
MS = 128 * KB
QT = 144 * KB
RED = 144 * KB

SC = 0.12751743


def f2u(x):
    import struct
    return struct.unpack('<I', struct.pack('<f', x))[0]


def srd(A, d, base, nbytes):
    A('s_mov_b32 %s, %s' % (s(d), s(base)))
    A('s_and_b32 %s, %s, 0xffff' % (s(d + 1), s(base + 1)))
    A('s_mov_b32 %s, %s' % (s(d + 2), hx(nbytes)))
    A('s_mov_b32 %s, 0x20000' % s(d + 3))


def spin_fail(A):
    A('s_sub_u32 %s, %s, 1' % (s(sBUD), s(sBUD)))
    A('s_cbranch_scc1 L_end')


def weight_loader(A, ops, vres, vspare, after_first=None, lag=3, nslots=40, resident=0, tmp=16, vfin=None, pre=None, covered=None):
    ns = len(ops)
    off = (nslots - 1 - (ns - 1)) % nslots
    slot = lambda i: (i + off) % nslots
    issued = []
    NT = 28

    def issue(i):
        o, sl = ops[i], slot(i)
        base, so = (sRES, sl * 1024) if sl < 32 else (sSPARE, (sl - 32) * 1024)
        if so:
            A('s_add_u32 m0, %s, %d' % (s(base), so))
        else:
            A('s_mov_b32 m0, %s' % s(base))
        A('s_mov_b32 %s, %s' % (s(sT0), hx(o['soff'])))
        A('buffer_load_dwordx4 %s, %s, %s offen lds' % (v(o['voff']), s(o['srd'], 4), s(sT0)))
        issued.append(i)

    first = min(nslots, ns)
    for i in range(first):
        if pre and i == pre[0]:
            pre[1](i)
        issue(i)
    if after_first:
        n0 = len(A.lines)
        after_first(first)
        if covered:
            issued += ['x'] * sum(1 for x in A.lines[n0:] if x.startswith('buffer_store'))

    def flush(lo, hi):
        A('s_waitcnt lgkmcnt(0)')
        for f in range(lo, hi):
            A('ds_write_b128 %s, %s offset:%d' % (v(vfin), v(tmp + 4 * (f % NT), 4), f * 1024))
        A('s_waitcnt lgkmcnt(0)')

    for i in range(ns):
        if resident and i == ns - 8:
            A('v_lshlrev_b32 %s, 4, v0' % v(vfin))
            A('v_add_u32 %s, %s, %s' % (v(vfin), s(sRES), v(vfin)))
            flush(0, resident - 4)
        later = len(issued) - 1 - issued.index(i)
        A('s_waitcnt vmcnt(%d)' % min(later, 63))
        if covered and i == first:
            covered()
        sl = slot(i)
        for dst, o in ops[i]['reads']:
            if isinstance(dst, tuple):
                assert (dst[1] < resident - 4) == (i < ns - 8)
                dst = v(tmp + 4 * (dst[1] % NT) + 2 * dst[2], 2)
            if sl < 32:
                A('ds_read_b64_tr_b16 %s, %s offset:%d' % (dst, v(vres), sl * 1024 + o))
            else:
                A('ds_read_b64_tr_b16 %s, %s offset:%d' % (dst, v(vspare), (sl - 32) * 1024 + o))
        if i >= lag and i - lag + nslots < ns:
            A('s_waitcnt lgkmcnt(%d)' % (2 * lag))
            issue(i - lag + nslots)
    assert len(issued) - issued.count('x') == ns
    if resident:
        flush(resident - 4, resident)
    else:
        A('s_waitcnt lgkmcnt(0)')


def grid_arrive(A, vz, vt):
    A('s_barrier')
    l = A.uid('arr')
    A('s_cmp_lg_u32 %s, 0' % s(sWAVE))
    A('s_cbranch_scc1 %s' % l)
    A('s_mov_b64 exec, 1')
    A('v_mov_b32 %s, 0' % v(vz))
    A('v_mov_b32 %s, 1' % v(vt))
    A('global_atomic_add %s, %s, %s offset:192 sc1' % (v(vz), v(vt), s(sDBG, 2)))
    A('s_mov_b64 exec, -1')
    A.label(l)


def grid_wait(A, vz, vt, cfg, which):
    for off, n in which:
        if n == 0:
            continue
        l, d = A.uid('gw'), A.uid('gwd')
        A('v_mov_b32 %s, 0' % v(vz))
        A.label(l)
        A('global_load_dword %s, %s, %s offset:%d sc1' % (v(vt), v(vz), s(sDBG, 2), off))
        A('s_waitcnt vmcnt(0)')
        A('v_readfirstlane_b32 %s, %s' % (s(sT1), v(vt)))
        A('s_cmp_ge_u32 %s, %d' % (s(sT1), n))
        A('s_cbranch_scc1 %s' % d)
        spin_fail(A)
        A('s_sleep 2')
        A('s_branch %s' % l)
        A.label(d)


def group_local(A, vt, vt2, stride_note=None):
    A('v_and_b32 %s, 31, v0' % v(vt))
    A('v_lshlrev_b32 %s, 5, %s' % (v(vt), v(vt)))
    A('s_and_b32 %s, %s, 7' % (s(sT0), s(sWG)))
    A('s_lshl_b32 %s, %s, 2' % (s(sT0), s(sT0)))
    A('s_add_u32 %s, %s, %d' % (s(sT0), s(sT0), CT_XCC))
    A('buffer_load_dword %s, %s, %s, %s offen sc1' % (v(vt2), v(vt), s(sWS, 4), s(sT0)))
    A('s_waitcnt vmcnt(0)')
    A('v_cmp_ne_u32 vcc, %s, %s' % (s(sXCC), v(vt2)))
    A('s_cmp_eq_u64 vcc, 0')
    A('s_cselect_b32 %s, 1, 0' % s(sLOCAL))


def xstore(A, instr):
    slow, back = A.uid('xs'), A.uid('xb')
    A('s_cmp_eq_u32 %s, 1' % s(sLOCAL))
    A('s_cbranch_scc0 %s' % slow)
    for i in instr:
        A(i)
    A.label(back)
    A.ool(slow + ':')
    for i in instr:
        A.ool(i + ' sc1')
    A.ool('s_branch %s' % back)


def stamp(A, cfg, k):
    if cfg.profile == 1 or (cfg.profile and (k == 0 or k in cfg.stamps)):
        A('%s %s' % ('s_memrealtime' if cfg.rt else 's_memtime', s(sSTAMP + 2 * k, 2)))
        A('s_waitcnt lgkmcnt(0)')


def stamp_flush(A, cfg, n, vt, vone, wave=0):
    if not cfg.profile:
        return
    l = A.uid('sf')
    A('s_lshl_b32 %s, %s, 2' % (s(sT0), s(sWG)))
    A('s_add_u32 %s, %s, %s' % (s(sT0), s(sT0), s(sWAVE)))
    A('s_lshl_b32 %s, %s, 12' % (s(sT0), s(sT0)))
    A('s_lshl_b32 %s, %s, 6' % (s(sT1), s(sSTEP)))
    A('s_add_u32 %s, %s, %s' % (s(sT0), s(sT0), s(sT1)))
    A('s_add_u32 %s, %s, %s' % (s(sT0), s(sT0), hx(STAMP)))
    for k in range(n):
        if cfg.profile != 1 and k not in (0, 6, 11, 13, 14) and k not in cfg.stamps:
            continue
        A('v_mov_b32 %s, %s' % (v(vt), s(97 if k == 13 else sSTAMP + 2 * k)))
        A('buffer_store_dword %s, %s, %s, %s offen offset:%d' % (v(vt), v(vone), s(sWS, 4), s(sT0), 4 * k))
        A('s_nop 1')
    A.label(l)


def check_regs(A, regs, vt):
    regs = list(regs)
    cur = None
    while regs:
        if cur is None:
            if len(regs) >= 3:
                A('v_max3_u32 %s, %s, %s, %s' % (v(vt), v(regs[0]), v(regs[1]), v(regs[2])))
                regs = regs[3:]
            elif len(regs) == 2:
                A('v_max_u32 %s, %s, %s' % (v(vt), v(regs[0]), v(regs[1])))
                regs = []
            else:
                A('v_cmp_eq_u32 vcc, -1, %s' % v(regs[0]))
                return
            cur = vt
        elif len(regs) >= 2:
            A('v_max3_u32 %s, %s, %s, %s' % (v(vt), v(vt), v(regs[0]), v(regs[1])))
            regs = regs[2:]
        else:
            A('v_max_u32 %s, %s, %s' % (v(vt), v(vt), v(regs[0])))
            regs = []
    A('v_cmp_eq_u32 vcc, -1, %s' % v(vt))


def poll_mem(A, cfg, P, vpoll, smem, vt):
    def rnd():
        for i in range(4):
            A('buffer_load_dwordx4 %s, %s, %s, %s offen offset:%d sc1' % (v(P + 4 * i, 4), v(vpoll), s(sWS, 4), s(smem), 1024 * i))
    l, d = A.uid('pm'), A.uid('pmd')
    rnd()
    if cfg.poll2:
        rnd()
    A.label(l)
    A('s_waitcnt vmcnt(%d)' % (4 if cfg.poll2 else 0))
    check_regs(A, range(P, P + 16), vt)
    A('s_cbranch_vccz %s' % d)
    rnd()
    spin_fail(A)
    A('s_branch %s' % l)
    A.label(d)


def lane_consts(A, vg, vr, vc):
    A('v_bfe_u32 %s, v0, 3, 2' % v(vg))
    A('v_bfe_u32 %s, v0, 1, 2' % v(vr))
    A('v_and_b32 %s, 1, v0' % v(vc))


def sparse_rowlane_mem(A, vd, vg, vr, vt):
    A('v_lshrrev_b32 %s, 1, %s' % (v(vd), v(vg)))
    A('v_lshlrev_b32 %s, 4, %s' % (v(vd), v(vd)))
    A('v_and_b32 %s, 1, %s' % (v(vt), v(vg)))
    A('v_lshl_add_u32 %s, %s, 2, %s' % (v(vd), v(vt), v(vd)))
    A('v_lshrrev_b32 %s, 1, %s' % (v(vt), v(vr)))
    A('v_lshl_add_u32 %s, %s, 3, %s' % (v(vd), v(vt), v(vd)))
    A('v_and_b32 %s, 1, %s' % (v(vt), v(vr)))
    A('v_add_u32 %s, %s, %s' % (v(vd), v(vt), v(vd)))


def sparse_rowlane_o(A, vd, vg, vr, vt):
    A('v_lshrrev_b32 %s, 1, %s' % (v(vd), v(vr)))
    A('v_lshlrev_b32 %s, 5, %s' % (v(vd), v(vd)))
    A('v_and_b32 %s, 1, %s' % (v(vt), v(vg)))
    A('v_lshl_add_u32 %s, %s, 4, %s' % (v(vd), v(vt), v(vd)))
    A('v_lshrrev_b32 %s, 1, %s' % (v(vt), v(vg)))
    A('v_lshl_add_u32 %s, %s, 2, %s' % (v(vd), v(vt), v(vd)))
    A('v_and_b32 %s, 1, %s' % (v(vt), v(vr)))
    A('v_add_u32 %s, %s, %s' % (v(vd), v(vt), v(vd)))


def dma_offsets(A, vpair, vrow, vc, vt, lgstride, scol):
    A('v_lshlrev_b32 %s, %d, %s' % (v(vpair), lgstride, v(vrow)))
    A('v_lshl_add_u32 %s, %s, 4, %s' % (v(vpair), v(vc), v(vpair)))
    A('v_add_u32 %s, %s, %s' % (v(vpair), s(scol), v(vpair)))
    A('v_lshrrev_b32 %s, 5, v0' % v(vt))
    A('v_lshl_add_u32 %s, %s, 5, %s' % (v(vpair), v(vt), v(vpair)))


def common_chain_init(A, vB, vSp, vA, vOne, vIdx):
    A('s_lshl_b32 %s, %s, 15' % (s(sRES), s(sWAVE)))
    A('s_lshl_b32 %s, %s, 13' % (s(sSPARE), s(sWAVE)))
    A('s_add_u32 %s, %s, %d' % (s(sSPARE), s(sSPARE), LDS_SPARE))
    A('v_lshlrev_b32 %s, 3, v0' % v(vB))
    A('v_add_u32 %s, %s, %s' % (v(vSp), s(sSPARE), v(vB)))
    A('v_add_u32 %s, %s, %s' % (v(vB), s(sRES), v(vB)))
    A('v_lshlrev_b32 %s, 4, v0' % v(vA))
    A('v_add_u32 %s, %d, %s' % (v(vA), MS, v(vA)))
    A('v_cmp_eq_u32 vcc, 0, v0')
    A('v_mov_b32 %s, %s' % (v(vOne), hx(OOB)))
    A('s_nop 0')
    A('v_cndmask_b32 %s, %s, 0, vcc' % (v(vOne), v(vOne)))
    A('v_and_b32 %s, 8, v0' % v(vIdx))
    A('v_cmp_eq_u32 vcc, 0, %s' % v(vIdx))
    A('v_mov_b32 %s, 0xeeee' % v(vIdx))
    A('v_mov_b32 v1, 0x4444')
    A('v_cndmask_b32 %s, %s, v1, vcc' % (v(vIdx), v(vIdx)))


def publish_xcc(A, vOne):
    A('s_lshl_b32 %s, %s, 2' % (s(sT0), s(sWG)))
    A('s_add_u32 %s, %s, %d' % (s(sT0), s(sT0), CT_XCC))
    A('v_mov_b32 v1, %s' % s(sXCC))
    A('buffer_store_dword v1, %s, %s, %s offen sc1' % (v(vOne), s(sWS, 4), s(sT0)))


def gstamp(A, cfg, k, vone, chainrole=False, vtmp=31, vd=1):
    if cfg.dbgt:
        k2 = k + (0 if chainrole else 4)
        if k2 - 4 in (1, 2, 4, 5):
            return
        k2 = {4: 4, 7: 5, 10: 6, 11: 7}.get(k2, k2)
        A('s_memrealtime s[70:71]')
        A('s_waitcnt lgkmcnt(0)')
        A('s_mov_b64 exec, 1')
        A('v_mov_b32 %s, s70' % v(vd))
        A('v_mov_b32 %s, 0' % v(vtmp))
        if k == 0:
            A('v_not_b32 %s, %s' % (v(vd), v(vd)))
        A('global_atomic_umax %s, %s, %s offset:%d sc1' % (v(vtmp), v(vd), s(sDBG, 2), 4 * (4 + k2)))
        A('s_mov_b64 exec, -1')
        return
    if not cfg.profile:
        return
    A('s_memrealtime s[70:71]')
    A('s_memtime s[72:73]')
    A('s_lshl_b32 s74, %s, 2' % s(sWG))
    A('s_add_u32 s74, s74, %s' % s(sWAVE))
    A('s_lshl_b32 s74, s74, 12')
    A('s_add_u32 s74, s74, %s' % hx(STAMP + 63 * 64 + 8 * k))
    A('s_waitcnt lgkmcnt(0)')
    A('v_mov_b32 %s, s70' % v(vd))
    A('buffer_store_dword %s, %s, %s, s74 offen' % (v(vd), v(vone), s(sWS, 4)))
    A('s_nop 1')
    A('v_mov_b32 %s, s72' % v(vd))
    A('buffer_store_dword %s, %s, %s, s74 offen offset:4' % (v(vd), v(vone), s(sWS, 4)))
    A('s_nop 1')
```

```python
from common import *

MF = 'v_mfma_f32_16x16x32_bf16'
sC_, sGX, sGI = 50, 51, 52
sSrc, sDst, sDst2, sDstep, sIt, sSstep, sFlagA, sRelu, sM0, sProg = 53, 54, 55, 56, 57, 58, 59, 60, 61, 64
vOne, vL16, vRes, vSp, vPair, vA = 2, 3, 4, 5, 6, 7


def allred_g(A, op, x, y):
    for sw in ('v_permlane32_swap_b32', 'v_permlane16_swap_b32'):
        A('v_mov_b32 %s, %s' % (v(y), v(x)))
        A('s_nop 1')
        A('%s %s, %s' % (sw, v(x), v(y)))
        A('%s %s, %s, %s' % (op, v(x), v(x), v(y)))


def dense_offsets(A, vdst, natural, stride, scol):
    A('v_bfe_u32 v16, v0, 3, 2')
    A('v_bfe_u32 v17, v0, 1, 2')
    A('v_lshl_add_u32 v16, v16, %d, v17' % (3 if natural else 2))
    A('v_mul_u32_u24 v16, %d, v16' % stride)
    A('v_and_b32 v17, 1, v0')
    A('v_lshl_add_u32 v16, v17, 4, v16')
    A('v_lshrrev_b32 v17, 5, v0')
    A('v_lshl_add_u32 v16, v17, 5, v16')
    A('v_add_u32 %s, %s, v16' % (v(vdst), s(scol)))


def layernorm(A, cfg, sTile):
    X, F, T = 32, 64, 16
    LNS = LDS_SPARE + 7 * KB
    for i in range(32):
        A('v_lshlrev_b32 %s, 16, %s' % (v(F + 2 * i), v(X + i)))
        A('v_and_b32 %s, 0xffff0000, %s' % (v(F + 2 * i + 1), v(X + i)))
    A('v_and_b32 v20, 15, v0')
    A('v_lshlrev_b32 v20, 4, v20')
    A('v_add_u32 v20, %d, v20' % LNS)
    A('s_lshl_b32 %s, %s, 2' % (s(sT0), s(sWAVE)))
    A('v_add_u32 v21, %s, v20' % s(sT0))

    def total(off):
        A('v_add_f32 v16, v16, v17')
        allred_g(A, 'v_add_f32', 16, 17)
        A('ds_write_b32 v21, v16 offset:%d' % off)
        A('s_waitcnt lgkmcnt(0)')
        A('s_barrier')
        A('ds_read_b128 v[16:19], v20 offset:%d' % off)
        A('s_waitcnt lgkmcnt(0)')
        A('v_add_f32 v16, v16, v17')
        A('v_add_f32 v18, v18, v19')
        A('v_add_f32 v16, v16, v18')
        A('v_mul_f32 v16, 0x3a800000, v16')
    A('v_pk_add_f32 v[16:17], %s, %s' % (v(F, 2), v(F + 2, 2)))
    for i in range(2, 32):
        A('v_pk_add_f32 v[16:17], v[16:17], %s' % v(F + 2 * i, 2))
    total(0)
    A('v_mov_b32 v22, v16')
    A('v_cvt_pk_bf16_f32 v24, v16, v16')
    A('v_and_b32 v24, 0xffff0000, v24')
    for i in range(32):
        A('v_pk_add_f32 v[18:19], %s, v[22:23] op_sel_hi:[1,0] neg_lo:[0,1] neg_hi:[0,1]' % v(F + 2 * i, 2))
        if i == 0:
            A('v_pk_mul_f32 v[16:17], v[18:19], v[18:19]')
        else:
            A('v_pk_fma_f32 v[16:17], v[18:19], v[18:19], v[16:17]')
    total(256)
    A('v_cvt_pk_bf16_f32 v16, v16, v16')
    A('v_and_b32 v16, 0xffff0000, v16')
    A('v_add_f32 v16, 0x3727c5ac, v16')
    A('v_cvt_pk_bf16_f32 v16, v16, v16')
    A('v_and_b32 v16, 0xffff0000, v16')
    A('v_sqrt_f32 v16, v16')
    A('s_nop 0')
    A('v_cvt_pk_bf16_f32 v16, v16, v16')
    A('v_and_b32 v16, 0xffff0000, v16')
    A('v_rcp_f32 v26, v16')
    for i in range(32):
        A('v_pk_add_f32 v[18:19], %s, v[24:25] op_sel_hi:[1,0] neg_lo:[0,1] neg_hi:[0,1]' % v(F + 2 * i, 2))
        A('v_cvt_pk_bf16_f32 v17, v18, v19')
        A('v_lshlrev_b32 v18, 16, v17')
        A('v_and_b32 v19, 0xffff0000, v17')
        A('v_pk_mul_f32 v[18:19], v[18:19], v[26:27] op_sel_hi:[1,0]')
        A('v_cvt_pk_bf16_f32 %s, v18, v19' % v(X + i))
    A('s_lshl_b32 %s, %s, 15' % (s(sT0), s(sTile)))
    A('s_lshl_b32 %s, %s, 13' % (s(sT1), s(sWAVE)))
    A('s_add_u32 %s, %s, %s' % (s(sT0), s(sT0), s(sT1)))
    A('s_add_u32 %s, %s, %s' % (s(sT0), s(sT0), hx(XNF)))
    for i in range(8):
        if i == 4:
            A('s_add_u32 %s, %s, 4096' % (s(sT0), s(sT0)))
        A('buffer_store_dwordx4 %s, %s, %s, %s offen offset:%d sc1' % (v(X + 4 * i, 4), v(vL16), s(sWS, 4), s(sT0), 1024 * (i & 3)))


def proj_ops(stride):
    return [dict(srd=sSA, voff=vPair, soff=(32 * ks + 4 * u) * stride,
                 reads=[(a((ks * 2 + t) * 4 + 2 * u, 2), 512 * t) for t in range(2)])
            for ks in range(32) for u in range(2)]


def proj_loop(A, cfg, tag, swapped, flag):
    ACC, AR, PK = (16, 32), 48, 80

    def piece(c, i):
        out = []
        if i == 0:
            out = ['s_add_u32 m0, %s, %d' % (s(sM0), (c % 8) * 16 * KB) if c % 8 else 's_mov_b32 m0, %s' % s(sM0), 's_nop 0']
        out.append(('vm', ('dma', c), 'buffer_load_dwordx4 %s, %s, %s offen offset:%d sc1 lds' % (v(vL16), s(sWS, 4), s(sSrc), 1024 * i)))
        if i == 3:
            out.append('s_add_u32 %s, %s, %s' % (s(sSrc), s(sSrc), '8192' if c % 4 != 3 else s(sSstep)))
        return out

    def aread(c, j):
        base = (c % 8) * 16 * KB + j * 1024
        reg, off = (vA, base) if base < 64 * KB else (vA + 1, base - 64 * KB)
        return ['ds_read_b128 %s, %s offset:%d' % (v(AR + 8 * (j % 4) + 4 * rt, 4), v(reg), off + 8192 * rt) for rt in range(2)]

    def epilogue(acc):
        out = []
        for x in range(2):
            for h in range(4):
                out.append('v_cvt_pk_bf16_f32 %s, %s, %s' % (v(PK + 4 * x + h), v(acc + 8 * x + 2 * h), v(acc + 8 * x + 2 * h + 1)))
            if swapped:
                for h in range(4):
                    out.append('v_pk_max_i16 %s, %s, %s' % (v(PK + 4 * x + h), v(PK + 4 * x + h), s(sRelu)))
            out.append(('vm', 'st', 'buffer_store_dwordx4 %s, %s, %s, %s offen sc1' % (v(PK + 4 * x, 4), v(vL16), s(sWS, 4), s(sDst2 if x else sDst))))
            out.append('s_add_u32 %s, %s, %s' % (s(sDst2 if x else sDst), s(sDst2 if x else sDst), s(sDstep)))
        return out

    def iteration(n):
        out = []
        acc, prev = ACC[n % 2], ACC[1 - n % 2]
        ep = epilogue(prev) if n else []
        for q in range(4):
            c = 4 * n + q
            for j in range(8):
                ks = 8 * q + j
                fill, late = [], []
                if j == 6:
                    fill = [('wait', 'st' if flag and n == 1 and q == 1 else ('dma', c + 1)), 's_barrier']
                    late = piece(c + 7, 0)
                elif j in (0, 2, 4) and c > 0:
                    late = piece(c + 6, j // 2 + 1)
                elif q == 0 and ep:
                    k = (len(ep) + 3) // 4
                    late = ep[k * (j // 2):k * (j // 2 + 1)]
                elif flag and (n > 2 and q == 3 or n == 1 and q == 2) and j == 1:
                    late = ['s_add_u32 %s, %s, 2' % (s(sProg), s(sProg)), 'v_mov_b32 v1, %s' % s(sProg),
                            ('vm', 'flag', 'buffer_store_dword v1, %s, %s, %s offen sc1' % (v(vOne), s(sWS, 4), s(sFlagA)))]
                rd = aread(c, j + 2) if j < 6 else aread(c + 1, j - 6)
                h = (len(late) + 1) // 2
                per = [fill + rd[:1], rd[1:], late[:h], late[h:]]
                out.append('s_waitcnt lgkmcnt(2)')
                m = 0
                for x in range(2):
                    for y in range(2):
                        rt, ct = (x, y) if swapped else (y, x)
                        W, Xf = a((ks * 2 + ct) * 4, 4), v(AR + 8 * (j % 4) + 4 * rt, 4)
                        D = v(acc + 8 * x + 4 * y, 4)
                        out.append('%s %s, %s, %s, %s' % ((MF, D) + ((W, Xf) if swapped else (Xf, W)) + (D if ks else '0',)))
                        out += per[m]
                        m += 1
        out += ['s_sub_u32 %s, %s, 1' % (s(sIt), s(sIt)), 's_cbranch_scc1 L_%s_end%d' % (tag, n % 2)]
        return out

    pro = []
    for c in range(7):
        for i in range(4):
            pro += piece(c, i)
    pro += [('wait', ('dma', 0)), 's_barrier'] + aread(0, 0) + aread(0, 1)
    runs = [pro] + [iteration(n) for n in range(10)]
    queue, counts = [], []
    for r in runs:
        cs = []
        for x in r:
            if isinstance(x, tuple) and x[0] == 'vm':
                queue.append(x[1])
            elif isinstance(x, tuple):
                last = max(i for i, y in enumerate(queue) if y == x[1])
                cs.append(len(queue) - 1 - last)
        counts.append(cs)
    NP = 4 if flag else 2
    for k in (NP, NP + 1):
        counts[k] = [min(t) for t in zip(counts[k], counts[k + 2], counts[k + 4])]

    def emit(r, cs):
        cs = list(cs)
        for x in r:
            if isinstance(x, tuple):
                A(x[2] if x[0] == 'vm' else 's_waitcnt vmcnt(%d)' % cs.pop(0))
            else:
                A(x)
    A('s_lshl_b32 %s, %s, 12' % (s(sM0), s(sWAVE)))
    for k in range(NP):
        if flag and k == 3:
            grid_wait(A, 1, 9, cfg, [(4, 128)])
        emit(runs[k], counts[k])
    A.label('L_%s_top' % tag)
    for k in (NP, NP + 1):
        emit(runs[k], counts[k])
    A('s_branch L_%s_top' % tag)
    for half in range(2):
        A.label('L_%s_end%d' % (tag, half))
        A('s_nop 7')
        emit(epilogue(ACC[half]), [])
        if half == 0:
            A('s_branch L_%s_done' % tag)
    A.label('L_%s_done' % tag)
    A('s_waitcnt vmcnt(0) lgkmcnt(0)')
    A('s_barrier')
    if flag:
        A('v_mov_b32 v1, 64')
        A('buffer_store_dword v1, %s, %s, %s offen sc1' % (v(vOne), s(sWS, 4), s(sFlagA)))


def counter_arrive(A, off, soff=None):
    l = A.uid('arr')
    A('s_cmp_lg_u32 %s, 0' % s(sWAVE))
    A('s_cbranch_scc1 %s' % l)
    A('s_mov_b64 exec, 1')
    A('v_mov_b32 v16, %s' % (s(soff) if soff else '0'))
    A('v_mov_b32 v17, 1')
    A('global_atomic_add v16, v17, %s offset:%d sc1' % (s(sDBG, 2), off))
    A('s_mov_b64 exec, -1')
    A.label(l)


def wait_ge(A, voff, sbase, vt, sval, sleep=2):
    l = A.uid('wg')
    A.label(l)
    A('buffer_load_dword %s, %s, %s, %s offen sc1' % (v(vt), v(voff), s(sWS, 4), s(sbase)))
    spin_fail(A)
    A('s_waitcnt vmcnt(0)')
    A('v_cmp_gt_u32 vcc, %s, %s' % (s(sval), v(vt)))
    A('s_cbranch_vccz %s_ok' % l)
    if sleep:
        A('s_sleep %d' % sleep)
    A('s_branch %s' % l)
    A.label(l + '_ok')


def final_phase(A, cfg):
    W2V = 160
    ACC, BB, RING, NR, XR = 16, 32, 48, 25, 148
    vMask, vRw, vRr, vXo, vKm, vVm, vBell, vFl = 152, 8, 9, 10, 11, 12, 13, 14
    sSeg, sH, sOT, sOTw, sQ, sKMa, sCnt, sBellA, sFlK, sC, sNC, sXo, sH1, sH2, sH3, sNeed = 53, 54, 55, 56, 57, 58, 59, 60, 61, 62, 64, 65, 66, 67, 68, 69
    RED2 = LDS_SPARE
    srd(A, sSA, sW2, 3584 * 2048)
    srd(A, sSB, sWO, 8 * MB)
    A('s_lshl_b32 %s, %s, 6' % (s(sT1), s(sGI)))
    A('s_mul_i32 %s, %s, %d' % (s(sT2), s(sWAVE), 28 * 32 * 2048))
    A('s_add_u32 %s, %s, %s' % (s(sT2), s(sT2), s(sT1)))
    dense_offsets(A, vPair, False, 2048, sT2)
    A('s_lshl_b32 %s, %s, 21' % (s(sT2), s(sWAVE)))
    A('s_add_u32 %s, %s, %s' % (s(sT2), s(sT2), s(sT1)))
    dense_offsets(A, vA, False, 2048, sT2)
    ops = []
    for kk in range(12):
        for u in range(2):
            ops.append(dict(srd=sSA, voff=vPair, soff=(32 * kk + 16 * u) * 2048,
                            reads=[(v(W2V + (kk * 2 + t) * 4 + 2 * u, 2), 512 * t) for t in range(2)]))
    for kk in range(32):
        for u in range(2):
            ops.append(dict(srd=sSB, voff=vA, soff=(32 * kk + 16 * u) * 2048,
                            reads=[(a((kk * 2 + t) * 4 + 2 * u, 2), 512 * t) for t in range(2)]))
    for kk in range(12, 28):
        for u in range(2):
            ops.append(dict(srd=sSA, voff=vPair, soff=(32 * kk + 16 * u) * 2048,
                            reads=[(('res', 2 * (kk - 12) + t, u), 512 * t) for t in range(2)]))
    ops = ops[:84] + ops[88:116] + ops[84:88] + ops[116:]
    A('v_lshlrev_b32 %s, 3, v0' % v(vRes))
    A('v_add_u32 %s, %s, %s' % (v(vRes), s(sRES), v(vRes)))
    weight_loader(A, ops, vRes, vSp, resident=32, vfin=vRw)
    A('v_mov_b32 %s, %s' % (v(vRes), v(vRw)))
    gstamp(A, cfg, 5, vOne)
    A('s_and_b32 %s, %s, 1' % (s(sT0), s(sWAVE)))
    A('s_lshl_b32 %s, %s, 4' % (s(sT0), s(sT0)))
    A('v_and_b32 v16, 15, v0')
    A('v_add_u32 v16, %s, v16' % s(sT0))
    A('v_lshrrev_b32 v17, 4, v0')
    A('v_lshlrev_b32 v17, 2, v17')
    A('v_mov_b32 v19, 0xff800000')
    for jt in range(2):
        for r in range(4):
            A('v_add_u32 v18, %d, v17' % (16 * jt + r))
            A('v_cmp_gt_u32 vcc, v18, v16')
            A('s_nop 1')
            A('v_cndmask_b32 %s, 0, v19, vcc' % v(vMask + 4 * jt + r))
    A('v_and_b32 v16, 15, v0')
    A('v_mul_u32_u24 v16, 144, v16')
    A('v_lshl_add_u32 v16, v17, 2, v16')
    A('s_mul_i32 %s, %s, 4608' % (s(sT0), s(sWAVE)))
    A('s_add_u32 %s, %s, %d' % (s(sT0), s(sT0), RED2))
    A('v_add_u32 %s, %s, v16' % (v(vRw), s(sT0)))
    A('s_lshl_b32 %s, %s, 3' % (s(sT0), s(sWAVE)))
    A('v_lshrrev_b32 v16, 3, v0')
    A('v_add_u32 v16, %s, v16' % s(sT0))
    A('v_and_b32 v18, 7, v0')
    A('v_mul_u32_u24 v19, 144, v16')
    A('v_lshl_add_u32 v19, v18, 4, v19')
    A('v_add_u32 %s, %d, v19' % (v(vRr), RED2))
    A('v_lshlrev_b32 v16, 11, v16')
    A('v_lshl_add_u32 v16, v18, 3, v16')
    A('s_lshl_b32 %s, %s, 6' % (s(sT0), s(sGI)))
    A('v_add_u32 %s, %s, v16' % (v(vXo), s(sT0)))
    A('v_and_b32 v16, 7, v0')
    A('v_lshlrev_b32 v16, 4, v16')
    A('v_lshl_add_u32 %s, v17, 5, v16' % v(vKm))
    A('v_and_b32 v16, 31, v0')
    A('v_lshlrev_b32 %s, 3, v16' % v(vVm))
    A('v_lshlrev_b32 %s, 2, v16' % v(vBell))
    A('v_and_b32 v16, 1, v0')
    A('v_lshlrev_b32 %s, 12, v16' % v(vFl))
    A('v_cmp_gt_u32 vcc, 32, v0')
    A('v_mov_b32 v15, 0xff800000')
    A('s_nop 0')
    A('v_cndmask_b32 v15, v15, 0, vcc')
    srd(A, sSA, sX, 4 * MB)
    srd(A, sSB, sOUT, 4 * MB)
    A('s_mov_b32 %s, %s' % (s(sC), hx(f2u(SC))))
    A('s_mov_b32 %s, %s' % (s(sC + 1), hx(f2u(SC))))
    A('s_mov_b32 %s, %s' % (s(sNC), hx(f2u(-SC))))
    A('s_lshl_b32 %s, %s, 7' % (s(sFlK), s(sGI)))
    A('s_add_u32 %s, %s, %d' % (s(sFlK), s(sFlK), CT_KM))
    A('s_lshl_b32 %s, %s, 8' % (s(sBellA), s(sGX)))
    A('s_add_u32 %s, %s, %d' % (s(sBellA), s(sBellA), CT_OT))
    A('s_mov_b32 %s, %s' % (s(sSeg), s(sGX)))
    A('s_mov_b32 %s, 1' % s(sCnt))
    A('s_lshl_b32 %s, %s, 19' % (s(sOT), s(sGX)))
    A('s_add_u32 %s, %s, %s' % (s(sOT), s(sOT), hx(OT)))
    grid_wait(A, 16, 17, cfg, [(128, 192), (192, cfg.nchain)])
    group_local(A, 16, 17)
    A('s_barrier')
    gstamp(A, cfg, 6, vOne)

    class Q_:
        def __init__(self, pend=()):
            self.q = list(pend)

        def add(self, tag, instr):
            self.q.append(tag)
            A(instr)

        def wait(self, tag):
            n = len(self.q) - 1 - max(i for i, x in enumerate(self.q) if x == tag)
            A('s_waitcnt vmcnt(%d)' % n)

    def ringld(i, sl, base):
        out = [('buffer_load_dwordx4 %s, %s, %s, %s offen offset:%d sc1' % (v(RING + 4 * sl, 4), v(vL16), s(sWS, 4), s(base), 1024 * (i % 4)))]
        if i % 4 == 3:
            out.append('s_add_u32 %s, %s, 4096' % (s(base), s(base)))
        return out

    OFF = 64 % NR
    hslot = lambda i: (i + OFF) % NR
    lds = lambda b: b[0] == 'l'

    def steps(Q, name, lo, hi, n, slot, bsrc, nxt, first):
        def bread(kk):
            return ['ds_read_b128 %s, %s offset:%d' % (v(BB + 8 * (kk % 2) + 4 * t, 4), v(vRes), (bsrc(kk)[1] * 2 + t) * 1024) for t in range(2)]
        for kk in range(lo, hi):
            pre = bread(kk + 1) if kk + 1 < n and lds(bsrc(kk + 1)) else []
            Q.wait((name, 2 * kk + 1))
            if lds(bsrc(kk)):
                A('s_waitcnt lgkmcnt(0)')
            for rt in range(2):
                for ct in range(2):
                    k, b = bsrc(kk)
                    W = v(BB + 8 * (kk % 2) + 4 * ct, 4) if k == 'l' else R((k, b), 4 * ct, 4)
                    D = v(ACC + 8 * rt + 4 * ct, 4)
                    A('%s %s, %s, %s, %s' % (MF, D, W, v(RING + 4 * slot(2 * kk + rt), 4), '0' if first and kk == 0 else D))
                    if ct == 0 and pre:
                        A(pre[rt])
                r = nxt(2 * kk + rt)
                if r:
                    Q.add(r[0], r[1][0])
                    for x in r[1][1:]:
                        A(x)

    def h_base(seg_off):
        A('s_add_u32 %s, %s, %d' % (s(sT1), s(sSeg), seg_off))
        A('s_mul_i32 %s, %s, %d' % (s(sH), s(sT1), 224 * KB))
        A('s_mul_i32 %s, %s, %d' % (s(sT0), s(sWAVE), 56 * KB))
        A('s_add_u32 %s, %s, %s' % (s(sH), s(sH), s(sT0)))
        A('s_add_u32 %s, %s, %s' % (s(sH), s(sH), hx(HF)))

    free = [RING + 4 * hslot(i) for i in range(56 - NR, 56)]
    Kf, Qf, Vf, KM, VM = free[0:8], free[8:12], free[12:16], free[16:20], free[20:24]
    S, M = 32, 44
    O, LS, ONES, PT, PM = Kf[0:4], Kf[4], Kf[5], Kf[6], Kf[7]
    sQa, sKa, sKb, sVa, sVMa = sH1, sH2, sH3, sQ, sOTw
    att = [(('k', i), ['buffer_load_dwordx4 %s, %s, %s, %s offen offset:%d sc1' % (v(Kf[i], 4), v(vL16), s(sWS, 4), s(sKa if i < 4 else sKb), 1024 * (i & 3))]) for i in range(8)]
    att += [(('q', i), ['buffer_load_dwordx4 %s, %s, %s, %s offen offset:%d sc1' % (v(Qf[i], 4), v(vL16), s(sWS, 4), s(sQa), 1024 * i)]) for i in range(4)]
    att += [(('v', i), ['buffer_load_dwordx4 %s, %s, %s, %s offen offset:%d sc1' % (v(Vf[i], 4), v(vL16), s(sWS, 4), s(sVa), 1024 * i)]) for i in range(4)]
    mem = [(('km', i), ['buffer_load_dwordx4 %s, %s, %s, %s offen offset:%d sc1' % (v(KM[i], 4), v(vKm), s(sWS, 4), s(sKMa), 512 * i)]) for i in range(4)]
    mem += [(('vm', i), ['buffer_load_dwordx2 %s, %s, %s, %s offen offset:%d sc1' % (v(VM[i], 2), v(vVm), s(sWS, 4), s(sVMa), 256 * i)]) for i in range(4)]
    w2src = lambda kk: ('v', W2V + 8 * kk) if kk < 12 else ('l', kk - 12)
    KSPLIT = (56 - NR + 16 + 1) // 2

    h_base(0)
    for i in range(NR):
        for x in ringld(i, hslot(i), sH):
            A(x)
    A('s_cmp_eq_u32 %s, 1' % s(sLOCAL))
    A('s_cbranch_scc0 L_fin_g')
    for tag, sfx in (('l', ''), ('g', ' sc1')):
        top = 'L_fin_' + tag
        A.label(top)
        stamp(A, cfg, 0)
        Q = Q_([('h', i) for i in range(NR)])
        A('s_lshl_b32 %s, %s, 5' % (s(sT2), s(sSeg)))
        A('s_add_u32 %s, %s, %s' % (s(sT2), s(sT2), s(sGI)))
        A('s_lshl_b32 %s, %s, 11' % (s(sKMa), s(sT2)))
        A('s_lshl_b32 %s, %s, 13' % (s(sT2), s(sT2)))
        A('s_and_b32 %s, %s, 1' % (s(sT0), s(sWAVE)))
        A('s_lshl_b32 %s, %s, 12' % (s(sT0), s(sT0)))
        A('s_add_u32 %s, %s, %s' % (s(sQa), s(sT2), s(sT0)))
        A('s_add_u32 %s, %s, %s' % (s(sQa), s(sQa), hx(QF)))
        A('s_add_u32 %s, %s, %s' % (s(sKa), s(sT2), hx(KF)))
        A('s_add_u32 %s, %s, 4096' % (s(sKb), s(sKa)))
        A('s_lshr_b32 %s, %s, 1' % (s(sT0), s(sWAVE)))
        A('s_lshl_b32 %s, %s, 12' % (s(sT1), s(sT0)))
        A('s_add_u32 %s, %s, %s' % (s(sVa), s(sT2), s(sT1)))
        A('s_add_u32 %s, %s, %s' % (s(sVa), s(sVa), hx(VF)))
        A('s_lshl_b32 %s, %s, 10' % (s(sT0), s(sT0)))
        A('s_add_u32 %s, %s, %s' % (s(sVMa), s(sKMa), s(sT0)))
        A('s_add_u32 %s, %s, %s' % (s(sVMa), s(sVMa), hx(VMG)))
        A('s_add_u32 %s, %s, %s' % (s(sKMa), s(sKMa), hx(KMG)))
        A('s_add_u32 %s, %s, 1' % (s(sNeed), s(sSeg)))
        A('s_lshl_b32 %s, %s, 16' % (s(sXo), s(sSeg)))
        Q.add('flag', 'buffer_load_dword v1, %s, %s, %s offen sc1' % (v(vFl), s(sWS, 4), s(sFlK)))
        Q.add('x', 'buffer_load_dwordx2 %s, %s, %s, %s offen' % (v(XR, 2), v(vXo), s(sSA, 4), s(sXo)))

        def nxt(extra):
            def f(i):
                j = i + NR
                if j < 56:
                    return ('h', j), ringld(j, hslot(j), sH)
                return extra[j - 56] if j - 56 < len(extra) else None
            return f
        steps(Q, 'h', 0, KSPLIT, 28, hslot, w2src, nxt(att), True)
        Q.wait('flag')
        A('v_cmp_gt_u32 vcc, %s, v1' % s(sNeed))
        A('s_cbranch_vccnz %s_late' % top)
        Q2 = Q_(Q.q)
        shift = 2 * KSPLIT + NR - 56 - 16
        steps(Q, 'h', KSPLIT, 28, 28, hslot, w2src, nxt(att + [None] * shift + mem), False)
        for t, x in mem:
            if t not in Q.q:
                Q.add(t, x[0])
        main, A.lines = A.lines, []
        A.label(top + '_late')
        steps(Q2, 'h', KSPLIT, 28, 28, hslot, w2src, nxt(att), False)
        wait_ge(A, vFl, sFlK, 1, sNeed)
        for t, x in mem:
            A(x[0])
        A('s_branch %s_att' % top)
        A.tail += A.lines
        A.lines = main
        A.label(top + '_att')
        stamp(A, cfg, 1)
        assert Q.q[-8:] == [t for t, x in mem]
        for i in range(4):
            A('v_mov_b32 %s, 0' % v(VM[i] + 2))
            A('v_mov_b32 %s, 0' % v(VM[i] + 3))
        Q.wait(('v', 3))
        for ks in range(4):
            for jt in range(2):
                A('%s %s, %s, %s, %s' % (MF, v(S + 4 * jt, 4), v(Kf[4 * jt + ks], 4), v(Qf[ks], 4), v(S + 4 * jt, 4) if ks else '0'))
        Q.wait(('km', 3))
        stamp(A, cfg, 2)
        for ks in range(4):
            A('%s %s, %s, %s, %s' % (MF, v(S + 8, 4), v(KM[ks], 4), v(Qf[ks], 4), v(S + 8, 4) if ks else '0'))
        for i in range(0, 8, 2):
            A('v_pk_add_f32 %s, %s, %s' % (v(S + i, 2), v(S + i, 2), v(vMask + i, 2)))
        for i in range(4):
            A('v_mov_b32 %s, 0x3f803f80' % v(ONES + i))
        A('v_mov_b32 %s, 0' % v(PM + 2))
        A('v_mov_b32 %s, 0' % v(PM + 3))
        A('v_max3_f32 %s, %s, %s, %s' % (v(M), v(S), v(S + 1), v(S + 2)))
        for i in range(3, 11, 2):
            A('v_max3_f32 %s, %s, %s, %s' % (v(M), v(M), v(S + i), v(S + i + 1)))
        A('v_max_f32 %s, %s, %s' % (v(M), v(M), v(S + 11)))
        allred_g(A, 'v_max_f32', M, M + 1)
        A('v_mul_f32 %s, %s, %s' % (v(M), s(sNC), v(M)))
        A('v_add_f32 %s, %s, v15' % (v(M + 2), v(M)))
        for i in range(0, 12, 2):
            A('v_pk_fma_f32 %s, %s, %s, %s op_sel_hi:[1,1,0]' % (v(S + i, 2), v(S + i, 2), s(sC, 2), v(M if i < 8 else M + 2, 2)))
        for i in range(12):
            A('v_exp_f32 %s, %s' % (v(S + i), v(S + i)))
        for i in range(6):
            A('v_cvt_pk_bf16_f32 %s, %s, %s' % (v(PT + i if i < 4 else PM + i - 4), v(S + 2 * i), v(S + 2 * i + 1)))
        A('s_waitcnt vmcnt(0)')
        A('s_nop 0')
        A('%s %s, %s, %s, 0' % (MF, v(LS, 4), v(ONES, 4), v(PT, 4)))
        for t in range(4):
            A('%s %s, %s, %s, 0' % (MF, v(O[t], 4), v(Vf[t], 4), v(PT, 4)))
        A('%s %s, %s, %s, %s' % (MF, v(LS, 4), v(ONES, 4), v(PM, 4), v(LS, 4)))
        for t in range(4):
            A('%s %s, %s, %s, %s' % (MF, v(O[t], 4), v(VM[t], 4), v(PM, 4), v(O[t], 4)))
        A('s_lshl_b32 %s, %s, 13' % (s(sOTw), s(sGI)))
        A('s_lshr_b32 %s, %s, 1' % (s(sT0), s(sWAVE)))
        A('s_lshl_b32 %s, %s, 12' % (s(sT0), s(sT0)))
        A('s_add_u32 %s, %s, %s' % (s(sOTw), s(sOTw), s(sT0)))
        A('s_and_b32 %s, %s, 1' % (s(sT0), s(sWAVE)))
        A('s_lshl_b32 %s, %s, 10' % (s(sT0), s(sT0)))
        A('s_add_u32 %s, %s, %s' % (s(sOTw), s(sOTw), s(sT0)))
        A('s_add_u32 %s, %s, %s' % (s(sOTw), s(sOTw), s(sOT)))
        A('v_rcp_f32 %s, %s' % (v(M), v(LS)))
        A('s_nop 1')
        for t in range(4):
            for i in (0, 2):
                A('v_pk_mul_f32 %s, %s, %s op_sel_hi:[1,0]' % (v(O[t] + i, 2), v(O[t] + i, 2), v(M, 2)))
        for i in range(8):
            A('v_cvt_pk_bf16_f32 %s, %s, %s' % (v(S + i), v(O[i // 2] + 2 * (i & 1)), v(O[i // 2] + 2 * (i & 1) + 1)))
        for p in range(2):
            A('buffer_store_dwordx4 %s, %s, %s, %s offen offset:%d%s' % (v(S + 4 * p, 4), v(vL16), s(sWS, 4), s(sOTw), 2048 * p, sfx))
        A('s_lshl_b32 %s, %s, 2' % (s(sT0), s(sGI)))
        A('s_add_u32 %s, %s, %s' % (s(sT0), s(sT0), s(sBellA)))
        A('v_mov_b32 v1, %s' % s(sCnt))
        stamp(A, cfg, 3)
        A('s_waitcnt vmcnt(0)')
        A('s_barrier')
        A('buffer_store_dword v1, %s, %s, %s offen%s' % (v(vOne), s(sWS, 4), s(sT0), sfx))
        A('s_lshl_b32 %s, %s, 16' % (s(sH1), s(sWAVE)))
        A('s_add_u32 %s, %s, %s' % (s(sH1), s(sH1), s(sOT)))
        h_base(6)
        wait_ge(A, vBell, sBellA, 44, sCnt, sleep=0)
        stamp(A, cfg, 4)
        Q = Q_()
        for i in range(NR):
            r = ringld(i, i, sH1)
            Q.add(('o', i), r[0])
            for x in r[1:]:
                A(x)

        def nxto(i):
            j = i + NR
            return (('o', j), ringld(j, j % NR, sH1)) if j < 64 else (('h', j - 64), ringld(j - 64, hslot(j - 64), sH))
        steps(Q, 'o', 0, 32, 32, lambda i: i % NR, lambda kk: ('a', 8 * kk), nxto, False)
        stamp(A, cfg, 5)
        A('s_nop 7')
        for rt in range(2):
            for ct in range(2):
                A('ds_write_b128 %s, %s offset:%d' % (v(vRw), v(ACC + 8 * rt + 4 * ct, 4), 16 * 144 * rt + 64 * ct))
        A('v_lshlrev_b32 %s, 16, %s' % (v(XR + 2), v(XR + 1)))
        A('v_and_b32 %s, 0xffff0000, %s' % (v(XR + 3), v(XR + 1)))
        A('v_and_b32 %s, 0xffff0000, %s' % (v(XR + 1), v(XR)))
        A('v_lshlrev_b32 %s, 16, %s' % (v(XR), v(XR)))
        A('s_waitcnt lgkmcnt(0)')
        A('s_barrier')
        for p in range(4):
            A('ds_read_b128 %s, %s offset:%d' % (v(32 + 4 * p, 4), v(vRr), 4608 * p))
        A('s_xor_b32 %s, %s, %d' % (s(sOT), s(sOT), 256 * KB))
        A('s_add_u32 %s, %s, 1' % (s(sCnt), s(sCnt)))
        A('s_add_u32 %s, %s, 6' % (s(sSeg), s(sSeg)))
        A('s_waitcnt lgkmcnt(0)')
        for c in (0, 2):
            A('v_pk_add_f32 %s, %s, %s' % (v(32 + c, 2), v(32 + c, 2), v(36 + c, 2)))
            A('v_pk_add_f32 %s, %s, %s' % (v(40 + c, 2), v(40 + c, 2), v(44 + c, 2)))
        for c in (0, 2):
            A('v_pk_add_f32 %s, %s, %s' % (v(32 + c, 2), v(32 + c, 2), v(40 + c, 2)))
        for c in (0, 2):
            A('v_pk_add_f32 %s, %s, %s' % (v(32 + c, 2), v(32 + c, 2), v(XR + c, 2)))
        A('v_cvt_pk_bf16_f32 v36, v32, v33')
        A('v_cvt_pk_bf16_f32 v37, v34, v35')
        A('buffer_store_dwordx2 v[36:37], %s, %s, %s offen' % (v(vXo), s(sSB, 4), s(sXo)))
        if cfg.profile == 1:
            stamp(A, cfg, 7)
            A('s_mov_b32 %s, %s' % (s(sSTEP), s(sCnt)))
            stamp_flush(A, cfg, 8, 1, vOne)
        A('s_cmp_lt_u32 %s, 64' % s(sSeg))
        A('s_cbranch_scc1 %s' % top)
        gstamp(A, cfg, 7, vOne)
        A('s_branch L_end')
        A.flush_tail()


def gen_gemm(A, cfg):
    sTile = 62
    A('s_sub_u32 %s, %s, 2' % (s(sGX), s(sGRP)))
    A('s_mov_b32 %s, %s' % (s(sGI), s(sJ)))
    A('s_lshl_b32 %s, %s, 5' % (s(sC_), s(sGX)))
    A('s_add_u32 %s, %s, %s' % (s(sC_), s(sC_), s(sGI)))
    A('s_lshl_b32 %s, %s, 15' % (s(sRES), s(sWAVE)))
    A('s_lshl_b32 %s, %s, 13' % (s(sSPARE), s(sWAVE)))
    A('s_add_u32 %s, %s, %d' % (s(sSPARE), s(sSPARE), LDS_SPARE))
    A('v_lshlrev_b32 %s, 4, v0' % v(vL16))
    A('v_lshlrev_b32 %s, 3, v0' % v(vRes))
    A('v_add_u32 %s, %s, %s' % (v(vSp), s(sSPARE), v(vRes)))
    A('v_add_u32 %s, %s, %s' % (v(vRes), s(sRES), v(vRes)))
    A('v_cmp_eq_u32 vcc, 0, v0')
    A('v_mov_b32 %s, %s' % (v(vOne), hx(OOB)))
    A('s_nop 0')
    A('v_cndmask_b32 %s, %s, 0, vcc' % (v(vOne), v(vOne)))
    gstamp(A, cfg, 0, vOne)
    A('s_mul_i32 %s, %s, 6' % (s(sTile), s(sGI)))
    A('s_add_u32 %s, %s, %s' % (s(sTile), s(sTile), s(sGX)))
    A('s_cmp_lt_u32 %s, 128' % s(sTile))
    A('s_cselect_b32 s63, 1, 0')
    A('s_cselect_b32 %s, 127, %d' % (s(sT0), cfg.dupmask))
    A('s_and_b32 %s, %s, %s' % (s(sTile), s(sTile), s(sT0)))
    srd(A, sSB, sX, 4 * MB)
    A('v_and_b32 v16, 15, v0')
    A('v_lshlrev_b32 v16, 11, v16')
    A('v_lshrrev_b32 v17, 4, v0')
    A('v_lshl_add_u32 v16, v17, 4, v16')
    A('s_lshl_b32 %s, %s, 15' % (s(sT0), s(sTile)))
    A('s_lshl_b32 %s, %s, 9' % (s(sT1), s(sWAVE)))
    A('s_add_u32 %s, %s, %s' % (s(sT0), s(sT0), s(sT1)))
    for i in range(8):
        A('buffer_load_dwordx4 %s, v16, %s, %s offen offset:%d' % (v(32 + 4 * i, 4), s(sSB, 4), s(sT0), 64 * i))
    A('s_lshl_b32 %s, %s, 2' % (s(sT0), s(sWG)))
    A('s_add_u32 %s, %s, %d' % (s(sT0), s(sT0), CT_XCC))
    A('v_mov_b32 v1, %s' % s(sXCC))
    A('buffer_store_dword v1, %s, %s, %s offen sc1' % (v(vOne), s(sWS, 4), s(sT0)))
    A('s_lshl_b32 %s, %s, 7' % (s(sFlagA), s(sC_)))
    A('s_add_u32 %s, %s, %d' % (s(sFlagA), s(sFlagA), CT_G1))
    A('v_mov_b32 v18, 0')
    A('buffer_store_dword v18, %s, %s, %s offen sc1' % (v(vOne), s(sWS, 4), s(sFlagA)))
    A('s_lshl_b32 %s, %s, 8' % (s(sT0), s(sGX)))
    A('s_lshl_b32 %s, %s, 2' % (s(sT1), s(sGI)))
    A('s_add_u32 %s, %s, %s' % (s(sT0), s(sT0), s(sT1)))
    A('s_add_u32 %s, %s, %d' % (s(sT0), s(sT0), CT_OT))
    A('buffer_store_dword v18, %s, %s, %s offen sc1' % (v(vOne), s(sWS, 4), s(sT0)))
    A('s_lshr_b32 %s, %s, 6' % (s(sT0), s(sC_)))
    A('s_cmp_eq_u32 %s, 1' % s(sT0))
    A('s_cselect_b32 %s, %s, %s' % (s(sSA), s(sWK), s(sWQ)))
    A('s_cselect_b32 %s, %s, %s' % (s(sSA + 1), s(sWK + 1), s(sWQ + 1)))
    A('s_cmp_eq_u32 %s, 2' % s(sT0))
    A('s_cselect_b32 %s, %s, %s' % (s(sSA), s(sWV), s(sSA)))
    A('s_cselect_b32 %s, %s, %s' % (s(sSA + 1), s(sWV + 1), s(sSA + 1)))
    A('s_and_b32 %s, %s, 0xffff' % (s(sSA + 1), s(sSA + 1)))
    A('s_mov_b32 %s, %s' % (s(sSA + 2), hx(8 * MB)))
    A('s_mov_b32 %s, 0x20000' % s(sSA + 3))
    A('s_bfe_u32 %s, %s, 0x50001' % (s(sT1), s(sC_)))
    A('s_lshl_b32 %s, %s, 8' % (s(sT1), s(sT1)))
    A('s_lshl_b32 %s, %s, 6' % (s(sT2), s(sWAVE)))
    A('s_add_u32 %s, %s, %s' % (s(sT2), s(sT2), s(sT1)))
    dense_offsets(A, vPair, True, 8192, sT2)

    def ln(n):
        A('s_waitcnt vmcnt(%d)' % n)
        A('s_barrier')
        counter_arrive(A, 8)
        layernorm(A, cfg, sTile)

    def arrive(n):
        A('s_waitcnt vmcnt(%d)' % (n - cfg.prewin))
        A('s_barrier')
        A('s_lshl_b32 %s, 1, %s' % (s(sT0), s(sTile)))
        A('s_cmp_lt_u32 %s, 16' % s(sTile))
        A('s_cselect_b32 %s, %s, 0' % (s(sT0), s(sT0)))
        A('s_cmp_lg_u32 %s, 0' % s(sWAVE))
        A('s_cbranch_scc1 L_lnarr')
        A('s_mov_b64 exec, 1')
        A('v_mov_b32 v16, 0')
        A('v_mov_b32 v17, %s' % s(sT0))
        A('v_mov_b32 v18, s63')
        A('s_cmp_eq_u32 %s, 0' % s(sT0))
        A('s_cbranch_scc1 L_lnarr1')
        A('global_atomic_or v16, v17, %s sc1' % s(sDBG, 2))
        A.label('L_lnarr1')
        A('s_cmp_eq_u32 s63, 0')
        A('s_cbranch_scc1 L_lnarr2')
        A('global_atomic_add v16, v18, %s offset:4 sc1' % s(sDBG, 2))
        A.label('L_lnarr2')
        A('s_mov_b64 exec, -1')
        A.label('L_lnarr')
        gstamp(A, cfg, 1, vOne)
    weight_loader(A, proj_ops(8192), vRes, vSp, arrive, nslots=39, pre=(cfg.prewin, ln))
    A('s_and_b32 %s, %s, 1' % (s(sProg), s(sC_)))
    A('s_lshr_b32 %s, %s, 6' % (s(sT0), s(sC_)))
    A('s_lshl_b32 %s, %s, 24' % (s(sDst), s(sT0)))
    A('s_add_u32 %s, %s, %s' % (s(sDst), s(sDst), hx(QF)))
    A('s_lshl_b32 %s, %s, 18' % (s(sT1), s(sProg)))
    A('s_add_u32 %s, %s, %s' % (s(sDst), s(sDst), s(sT1)))
    A('s_bfe_u32 %s, %s, 0x50001' % (s(sT1), s(sC_)))
    A('s_lshl_b32 %s, %s, 13' % (s(sT1), s(sT1)))
    A('s_add_u32 %s, %s, %s' % (s(sDst), s(sDst), s(sT1)))
    A('s_mov_b32 %s, %d' % (s(sDstep), 512 * KB))

    def src(sseg):
        A('s_lshl_b32 %s, %s, 16' % (s(sSrc), s(sseg)))
        A('s_lshr_b32 %s, %s, 1' % (s(sT1), s(sWAVE)))
        A('s_lshl_b32 %s, %s, 15' % (s(sT1), s(sT1)))
        A('s_add_u32 %s, %s, %s' % (s(sSrc), s(sSrc), s(sT1)))
        A('s_and_b32 %s, %s, 1' % (s(sT1), s(sWAVE)))
        A('s_lshl_b32 %s, %s, 12' % (s(sT1), s(sT1)))
        A('s_add_u32 %s, %s, %s' % (s(sSrc), s(sSrc), s(sT1)))
        A('s_add_u32 %s, %s, %s' % (s(sSrc), s(sSrc), hx(XNF)))
    src(sProg)
    A('s_mov_b32 %s, %d' % (s(sSstep), 128 * KB - 24 * KB))
    A('s_mov_b32 %s, 31' % s(sIt))
    A('s_mov_b32 %s, 0x80008000' % s(sRelu))
    A('v_mov_b32 %s, %s' % (v(vA), v(vL16)))
    A('v_add_u32 %s, %d, %s' % (v(vA + 1), 64 * KB, v(vA)))
    grid_wait(A, 16, 17, cfg, [(0, 0xffff)])
    A('s_barrier')
    gstamp(A, cfg, 2, vOne)
    A('s_cmp_ge_u32 %s, 128' % s(sC_))
    A('s_cbranch_scc1 L_projv')
    A('s_lshl_b32 %s, %s, 10' % (s(sT1), s(sWAVE)))
    A('s_add_u32 %s, %s, %s' % (s(sDst), s(sDst), s(sT1)))
    A('s_add_u32 %s, %s, 4096' % (s(sDst2), s(sDst)))
    proj_loop(A, cfg, 'qk', True, 1)
    A('s_branch L_ffn1')
    A.label('L_projv')
    A('s_lshl_b32 %s, %s, 11' % (s(sT1), s(sWAVE)))
    A('s_add_u32 %s, %s, %s' % (s(sDst), s(sDst), s(sT1)))
    A('s_add_u32 %s, %s, 1024' % (s(sDst2), s(sDst)))
    proj_loop(A, cfg, 'v', False, 1)
    A.label('L_ffn1')
    gstamp(A, cfg, 3, vOne)
    A('s_cmp_ge_u32 %s, 168' % s(sC_))
    A('s_cbranch_scc1 L_final')
    A('s_mul_i32 s63, %s, 171' % s(sC_))
    A('s_lshr_b32 s63, s63, 10')
    A('s_mul_i32 %s, s63, 6' % s(sT1))
    A('s_sub_u32 %s, %s, %s' % (s(sProg), s(sC_), s(sT1)))
    A('s_cmp_lt_u32 %s, 4' % s(sProg))
    A('s_cselect_b32 %s, 10, 9' % s(sIt))
    srd(A, sSA, sW1, 1024 * 7168)
    A('s_lshl_b32 %s, s63, 8' % s(sT1))
    A('s_lshl_b32 %s, %s, 6' % (s(sT2), s(sWAVE)))
    A('s_add_u32 %s, %s, %s' % (s(sT2), s(sT2), s(sT1)))
    dense_offsets(A, vPair, True, 7168, sT2)
    weight_loader(A, proj_ops(7168), vRes, vSp)
    A('s_mul_i32 %s, %s, %d' % (s(sDst), s(sProg), 224 * KB))
    A('s_lshl_b32 %s, s63, 13' % s(sT1))
    A('s_add_u32 %s, %s, %s' % (s(sDst), s(sDst), s(sT1)))
    A('s_lshl_b32 %s, %s, 11' % (s(sT1), s(sWAVE)))
    A('s_add_u32 %s, %s, %s' % (s(sDst), s(sDst), s(sT1)))
    A('s_add_u32 %s, %s, %s' % (s(sDst), s(sDst), hx(HF)))
    A('s_add_u32 %s, %s, 1024' % (s(sDst2), s(sDst)))
    A('s_mov_b32 %s, %d' % (s(sDstep), 6 * 224 * KB))
    src(sProg)
    A('s_mov_b32 %s, %d' % (s(sSstep), 384 * KB - 24 * KB))
    A('s_mov_b32 %s, 0' % s(sRelu))
    A('s_barrier')
    proj_loop(A, cfg, 'h', True, 0)
    A.label('L_final')
    gstamp(A, cfg, 4, vOne)
    A('s_waitcnt vmcnt(0)')
    A('s_barrier')
    counter_arrive(A, 128)
    final_phase(A, cfg)
```

```python
import sys
from asmlib import *
from layout import *
import chain
from chain import *

NAME = 'parallel_sum__memory_aug_recurrent_mem_tr__dense_activation_relu__prompt_kernel'
HDR = open('parallel_sum__memory_aug_recurrent_mem_tr__dense_activation_relu__prompt.s.ref').read().split('; Override launch')[0]


class Cfg:
    chain_only = False
    gemm_only = False
    profile = False
    dbgt = False
    stamps = ()
    nsteps = 64
    nchain = 64
    ngemm = 192
    poll2 = True
    hint = True
    osleep = 0
    rsleep = (5,)
    dupmask = 31
    nrep = 1
    near = True
    depth = 3
    vdepth = 2
    odepth = 3
    ringat = 2
    mring = 1
    vmat = 1
    prewin = 0
    codepf = True
    adelay = (0, 1, 5, 9)
    nokv = False
    nokm = False
    resetsleep = 2
    rt = False
    pwave = 2


def build(cfg):
    A = Asm()
    A('s_cmp_ge_u32 s2, 256')
    A('s_cbranch_scc1 L_end')
    A('s_load_dwordx8 s[4:11], s[0:1], 0')
    A('s_load_dwordx4 s[12:15], s[0:1], 32')
    A('s_load_dwordx4 s[16:19], s[0:1], 64')
    A('s_load_dwordx4 s[20:23], s[0:1], 80')
    A('s_load_dwordx2 s[24:25], s[0:1], 96')
    A('v_lshrrev_b32 v1, 6, v0')
    A('v_and_b32 v0, 63, v0')
    A('s_getreg_b32 %s, hwreg(HW_REG_XCC_ID, 0, 4)' % s(sXCC))
    A('v_readfirstlane_b32 %s, v1' % s(sWAVE))
    A('s_mov_b32 %s, 0x100000' % s(sBUD))
    if cfg.codepf:
        A('s_getpc_b64 s[34:35]')
        A.label('L_pc')
        A('s_lshr_b32 s32, s2, 3')
        A('s_lshl_b32 s32, s32, 2')
        A('s_add_u32 s32, s32, %s' % s(sWAVE))
        A('s_lshl_b32 s32, s32, 10')
        A('s_min_u32 s32, s32, L_end-L_pc-1024')
        A('v_lshl_add_u32 v1, v0, 4, s32')
        A('global_load_dwordx4 v[252:255], v1, s[34:35]')
    A('s_waitcnt lgkmcnt(0)')
    srd(A, sWS, sWSP, WS_BYTES)
    A('s_and_b32 %s, s2, 7' % s(sGRP))
    A('s_lshr_b32 %s, s2, 3' % s(sJ))
    A('s_cmp_ge_u32 %s, 2' % s(sGRP))
    A('s_cbranch_scc1 L_gemm')
    if cfg.gemm_only:
        A('s_branch L_end')
    else:
        A('s_cmp_lt_u32 %s, 16' % s(sJ))
        A('s_cbranch_scc1 L_qk')
        A('s_sub_u32 %s, %s, 16' % (s(sJ), s(sJ)))
        gen_vo(A, cfg)
        gen_qk(A, cfg)
    A.label('L_gemm')
    if not cfg.chain_only:
        import gemm
        gemm.gen_gemm(A, cfg)
    A.label('L_end')
    A('s_endpgm')
    txt = HDR + '; @launch grid=(256,1,1) block=(256,1,1) lds=163840\n'
    txt += '.amdgcn_target "amdgcn-amd-amdhsa--gfx950"\n.text\n.globl %s\n.p2align 8\n.type %s,@function\n%s:\n' % (NAME, NAME, NAME)
    txt += A.text()
    txt += '''.section .rodata,"a"
.p2align 6
.amdhsa_kernel %s
  .amdhsa_next_free_vgpr 512
  .amdhsa_next_free_sgpr 102
  .amdhsa_accum_offset 256
  .amdhsa_group_segment_fixed_size 0
  .amdhsa_kernarg_size 104
  .amdhsa_user_sgpr_count 2
  .amdhsa_user_sgpr_kernarg_segment_ptr 1
  .amdhsa_system_sgpr_workgroup_id_x 1
  .amdhsa_float_denorm_mode_32 3
.end_amdhsa_kernel
''' % NAME
    return txt


if __name__ == '__main__':
    cfg = Cfg()
    out = sys.argv[1]
    for kv in sys.argv[2:]:
        k, val = kv.split('=')
        setattr(cfg, k, eval(val))
    if cfg.chain_only:
        cfg.ngemm = 0
    if cfg.gemm_only:
        cfg.nchain = 0
    open(out, 'w').write(build(cfg))
```

```python
from common import *

SMF = 'v_smfmac_f32_16x16x64_bf16'
MF = 'v_mfma_f32_16x16x32_bf16'


def wait_bell(A, vbell, sbell, regs, sval):
    l = A.uid('wb')
    d = len(regs)
    ld = lambda k: A('buffer_load_dword %s, %s, %s, %s offen sc1' % (v(regs[k]), v(vbell), s(sWS, 4), s(sbell)))
    for k in range(d):
        ld(k)
    A.label(l)
    for k in range(d):
        A('s_waitcnt vmcnt(%d)' % (d - 1))
        A('v_cmp_gt_u32 vcc, %s, %s' % (s(sval), v(regs[k])))
        A('s_cbranch_vccz %s_ok' % l)
        ld(k)
    spin_fail(A)
    A('s_branch %s' % l)
    A.label(l + '_ok')


def dma_mem(A, vpoll, smem):
    for i in range(4):
        A('buffer_load_dwordx4 %s, %s, %s offen offset:%d sc1 lds' % (v(vpoll), s(sWS, 4), s(smem), 1024 * i))


def nan_net(A, cfg, lbl, back, pre, resume, vA, vpoll, smem, tmp, vt, snan, sver):
    o = A.ool
    o(lbl + ':')
    o('s_mov_b64 %s, 0' % s(snan, 2))
    o('s_mov_b64 vcc, 0')
    o('s_cmp_eq_u32 %s, %s' % (s(sver), s(sSTEP)))
    o('s_cbranch_scc1 %s' % back)
    o('s_mov_b32 %s, %s' % (s(sver), s(sSTEP)))
    if cfg.profile:
        o('s_add_u32 s98, s98, 1')
    o(lbl + '_again:')
    o('s_waitcnt vmcnt(0) lgkmcnt(0)')
    o('s_barrier')
    for i in range(4):
        o('buffer_load_dwordx4 %s, %s, %s offen offset:%d sc1 lds' % (v(vpoll), s(sWS, 4), s(smem), 1024 * i))
    o('s_sub_u32 %s, %s, 1\ns_cbranch_scc1 L_end' % (s(sBUD), s(sBUD)))
    o('s_waitcnt vmcnt(0)')
    o('s_barrier')
    o('v_mov_b32 %s, 0' % v(vt))
    for f in range(16):
        o('ds_read_b128 %s, %s offset:%d' % (v(tmp, 4), v(vA), 1024 * f))
        o('s_waitcnt lgkmcnt(0)')
        o('v_max3_u32 %s, %s, %s, %s' % (v(vt), v(vt), v(tmp), v(tmp + 1)))
        o('v_max3_u32 %s, %s, %s, %s' % (v(vt), v(vt), v(tmp + 2), v(tmp + 3)))
    o('v_cmp_eq_u32 vcc, -1, %s' % v(vt))
    o('s_cbranch_vccnz %s_again' % lbl)
    for x in pre:
        o(x)
    o('s_waitcnt lgkmcnt(0)')
    o('s_branch %s' % resume)


def ring(A, dst, reg, delta, stepb):
    mask = 3 * stepb
    A('s_add_u32 %s, %s, %d' % (s(dst), s(reg), (delta % 4) * stepb))
    A('s_and_b32 %s, %s, %d' % (s(dst), s(dst), mask))
    A('s_andn2_b32 %s, %s, %d' % (s(sT2), s(reg), mask))
    A('s_or_b32 %s, %s, %s' % (s(dst), s(dst), s(sT2)))


def ring_adv(A, reg, stepb):
    mask = 3 * stepb
    A('s_add_u32 %s, %s, %d' % (s(sT2), s(reg), stepb))
    A('s_and_b32 %s, %s, %d' % (s(sT2), s(sT2), mask))
    A('s_andn2_b32 %s, %s, %d' % (s(reg), s(reg), mask))
    A('s_or_b32 %s, %s, %s' % (s(reg), s(reg), s(sT2)))


FR = lambda n: 4 * (n & 3) + (n >> 2)


def gen_qk(A, cfg):
    vT = 1; vA = 2; vB = 3; vPoll = 4; vSamp = 5; vQTw = 6; vQTr = 7; vIdx = 8; vBias = 9; vO = 10
    vVM = 11; vL16 = 12; vOne = 13; vKMr = 14; vKMo = 15
    AR, BR, ACC, KX, VX = 16, 32, 56, 72, 104
    ONES, VM, LS = 112, 116, 124
    WK0 = 128
    sMem, sO, sVM, sKF, sVF, sKM, sSeen, sFlag, sG1, sBell = range(50, 60)
    sC, sNC, sRing = 60, 62, 63
    sNan, sVer, sNext = 64, 66, 67
    A.label('L_qk')
    A('s_lshl_b32 %s, %s, 4' % (s(sT1), s(sGRP)))
    A('s_add_u32 %s, %s, %s' % (s(sT1), s(sT1), s(sJ)))
    common_chain_init(A, vB, vKMr, vA, vOne, vIdx)
    gstamp(A, cfg, 0, vOne, True)
    srd(A, sSA, sWK, 8 * MB)
    srd(A, sSB, sWQ, 8 * MB)
    A('s_lshr_b32 %s, %s, 1' % (s(sT0), s(sWAVE)))
    A('s_lshl_b32 %s, %s, 1' % (s(sT2), s(sJ)))
    A('s_add_u32 %s, %s, %s' % (s(sT0), s(sT0), s(sT2)))
    A('s_lshl_b32 %s, %s, 10' % (s(sT0), s(sT0)))
    A('s_and_b32 %s, %s, 1' % (s(sT2), s(sWAVE)))
    A('s_lshl_b32 %s, %s, 7' % (s(sT2), s(sT2)))
    A('s_add_u32 %s, %s, %s' % (s(sT0), s(sT0), s(sT2)))
    A('v_lshlrev_b32 %s, 4, v0' % v(vL16))
    A('v_add_u32 %s, %s, %s' % (v(vO), s(sT0), v(vL16)))
    A('v_and_b32 v16, 8, v0')
    A('v_lshlrev_b32 v16, 27, v16')
    A('v_or_b32 %s, %s, v16' % (v(vO), v(vO)))
    A('v_lshrrev_b32 v17, 4, v0')
    A('v_lshlrev_b32 v17, 7, v17')
    A('v_and_b32 v18, 7, v0')
    A('v_lshl_add_u32 v17, v18, 4, v17')
    A('s_lshl_b32 %s, %s, 9' % (s(sT0), s(sWAVE)))
    A('v_add_u32 v17, %s, v17' % s(sT0))
    A('v_or_b32 %s, v17, v16' % v(vKMo))
    A('s_lshl_b32 %s, %s, 17' % (s(sO), s(sGRP)))
    A('s_add_u32 %s, %s, %d' % (s(sO), s(sO), OR_))
    A('s_lshl_b32 %s, %s, 16' % (s(sMem), s(sGRP)))
    A('s_add_u32 %s, %s, %d' % (s(sMem), s(sMem), MEMR))
    A('s_lshl_b32 %s, %s, 13' % (s(sVM), s(sT1)))
    A('s_add_u32 %s, %s, %d' % (s(sVM), s(sVM), VMR))
    A('s_lshl_b32 %s, %s, 13' % (s(sKF), s(sT1)))
    A('s_add_u32 %s, %s, %s' % (s(sVF), s(sKF), hx(VF)))
    A('s_add_u32 %s, %s, %s' % (s(sKF), s(sKF), hx(KF)))
    A('s_lshl_b32 %s, %s, 11' % (s(sT0), s(sWAVE)))
    A('s_add_u32 %s, %s, %s' % (s(sVF), s(sVF), s(sT0)))
    A('s_lshl_b32 %s, %s, 11' % (s(sKM), s(sT1)))
    A('s_add_u32 %s, %s, %s' % (s(sKM), s(sKM), hx(KMG)))
    A('s_lshl_b32 %s, %s, 7' % (s(sFlag), s(sT1)))
    A('s_add_u32 %s, %s, %d' % (s(sFlag), s(sFlag), CT_KM))
    A('s_lshl_b32 %s, %s, 10' % (s(sRing), s(sGRP)))
    A('s_lshl_b32 %s, %s, 8' % (s(sBell), s(sWAVE)))
    A('s_add_u32 %s, %s, %s' % (s(sBell), s(sBell), s(sRing)))
    A('s_add_u32 %s, %s, %d' % (s(sBell), s(sBell), CT_BELL))
    A('s_lshr_b32 %s, %s, 2' % (s(sT0), s(sJ)))
    A('s_lshl_b32 %s, %s, 8' % (s(sT0), s(sT0)))
    A('s_add_u32 %s, %s, %s' % (s(sRing), s(sRing), s(sT0)))
    A('s_and_b32 %s, %s, 3' % (s(sT0), s(sJ)))
    A('s_lshl_b32 %s, %s, 4' % (s(sT0), s(sT0)))
    A('s_add_u32 %s, %s, %s' % (s(sRing), s(sRing), s(sT0)))
    A('s_lshl_b32 %s, %s, 2' % (s(sT0), s(sWAVE)))
    A('s_add_u32 %s, %s, %s' % (s(sRing), s(sRing), s(sT0)))
    A('s_add_u32 %s, %s, %d' % (s(sRing), s(sRing), CT_BELL + 2048))
    A('s_lshl_b32 %s, %s, 8' % (s(sG1), s(sT1)))
    A('s_add_u32 %s, %s, %d' % (s(sG1), s(sG1), CT_G1 + 64 * 128))
    A('s_mov_b32 %s, %s' % (s(sC), hx(f2u(SC))))
    A('s_mov_b32 %s, %s' % (s(sC + 1), hx(f2u(SC))))
    A('s_mov_b32 %s, %s' % (s(sNC), hx(f2u(-SC))))
    lane_consts(A, 16, 17, 18)
    sparse_rowlane_mem(A, 19, 16, 17, 25)
    A('s_lshl_b32 %s, %s, 8' % (s(sT0), s(sT1)))
    A('s_lshl_b32 %s, %s, 6' % (s(sT2), s(sWAVE)))
    A('s_add_u32 %s, %s, %s' % (s(sT2), s(sT2), s(sT0)))
    vPair = vPoll
    dma_offsets(A, vPair, 19, 18, 25, 13, sT2)
    ops = []
    for m in range(2):
        for ks in range(16):
            for hb in range(2):
                for u in range(2):
                    q = 4 * hb + 2 * u
                    ops.append(dict(srd=sSB if m else sSA, voff=vPair, soff=(64 * ks + 32 * hb + 2 * u) * 8192,
                                    reads=[(v(WK0 + ks * 8 + q, 2), 0), (('res', 2 * ks + hb, u), 512)] if m else
                                    [(a((ks * 2 + t) * 8 + q, 2), 512 * t) for t in range(2)]))

    def init(n):
        publish_xcc(A, vOne)
        for i in range(4):
            A('v_mov_b32 %s, -1' % v(20 + i))
        for sl in range(4):
            A('s_add_u32 %s, %s, %d' % (s(sT0), s(sO), sl * 32 * KB))
            A('buffer_store_dwordx4 v[20:23], %s, %s, %s offen sc1' % (v(vO), s(sWS, 4), s(sT0)))
        A('v_mov_b32 v24, 0')
        A('buffer_store_dword v24, %s, %s, %s offen sc1' % (v(vOne), s(sWS, 4), s(sFlag)))
        A('buffer_store_dword v24, %s, %s, %s offen sc1' % (v(vOne), s(sWS, 4), s(sRing)))
    weight_loader(A, ops, vB, vKMr, init, resident=32, vfin=vSamp, covered=lambda: grid_arrive(A, vT, vSamp))
    A('v_mov_b32 %s, %s' % (v(vB), v(vSamp)))
    gstamp(A, cfg, 1, vOne, True)
    A('s_lshl_b32 %s, %s, 12' % (s(sT0), s(sWAVE)))
    A('v_add_u32 %s, %s, %s' % (v(vPoll), s(sT0), v(vL16)))
    A('v_and_b32 %s, 7, v0' % v(vSamp))
    A('v_lshlrev_b32 %s, 2, %s' % (v(vSamp), v(vSamp)))
    A('s_add_u32 m0, %s, %d' % (s(sT0), MS))
    A('v_lshrrev_b32 v16, 5, v0')
    A('v_lshlrev_b32 v16, 4, v16')
    A('v_and_b32 v17, 15, v0')
    A('v_add_u32 v16, v16, v17')
    A('v_lshlrev_b32 v16, 4, v16')
    A('v_bfe_u32 v17, v0, 4, 1')
    A('v_lshl_add_u32 v16, v17, 3, v16')
    A('s_lshl_b32 %s, %s, 9' % (s(sT0), s(sWAVE)))
    A('s_add_u32 %s, %s, %d' % (s(sT0), s(sT0), QT))
    A('v_add_u32 %s, %s, v16' % (v(vQTw), s(sT0)))
    A('v_lshrrev_b32 v16, 2, v0')
    A('v_lshlrev_b32 v16, 4, v16')
    A('v_and_b32 v17, 1, v0')
    A('v_lshl_add_u32 v16, v17, 3, v16')
    A('v_add_u32 %s, %d, v16' % (v(vQTr), QT))
    A('v_add_u32 %s, %s, v16' % (v(vKMr), s(sT0)))
    A('v_cmp_gt_u32 vcc, 32, v0')
    A('v_mov_b32 %s, 0xff800000' % v(vBias))
    A('s_nop 0')
    A('v_cndmask_b32 %s, %s, 0, vcc' % (v(vBias), v(vBias)))
    A('v_and_b32 v16, 31, v0')
    A('v_lshlrev_b32 v16, 3, v16')
    A('s_lshl_b32 %s, %s, 9' % (s(sT0), s(sWAVE)))
    A('v_add_u32 %s, %s, v16' % (v(vVM), s(sT0)))
    for i in range(4):
        A('v_mov_b32 %s, 0x3f803f80' % v(ONES + i))
    for t in range(2):
        A('v_mov_b32 %s, 0' % v(VM + 4 * t + 2))
        A('v_mov_b32 %s, 0' % v(VM + 4 * t + 3))
    grid_wait(A, 16, 17, cfg, [(192, cfg.nchain), (8, cfg.ngemm)])
    group_local(A, 16, 17)
    A('s_barrier')
    A('s_mov_b32 %s, 0' % s(sSTEP))
    A('s_mov_b32 %s, 0' % s(sSeen))
    A('s_mov_b32 %s, -1' % s(sVer))
    A('s_mov_b32 s98, 0')

    def prefetch_kv(nxt):
        ok, l = A.uid('kvok'), A.uid('kvp')
        A('s_add_u32 %s, %s, %d' % (s(sT1), s(sSTEP), nxt))
        A.label(l)
        A('s_cmp_lt_u32 %s, %s' % (s(sT1), s(sSeen)))
        A('s_cbranch_scc1 %s' % ok)
        A('v_and_b32 v16, 1, v0')
        A('v_bfe_u32 v17, v0, 1, 1')
        A('v_lshlrev_b32 v16, 7, v16')
        A('v_lshl_add_u32 v16, v17, 13, v16')
        A('buffer_load_dword v17, v16, %s, %s offen sc1' % (s(sWS, 4), s(sG1)))
        A('s_waitcnt vmcnt(0)')
        A('v_readlane_b32 %s, v17, 0' % s(sSeen))
        for k in range(1, 4):
            A('v_readlane_b32 %s, v17, %d' % (s(sT0), k))
            A('s_min_u32 %s, %s, %s' % (s(sSeen), s(sSeen), s(sT0)))
        spin_fail(A)
        A('s_branch %s' % l)
        A.label(ok)
        for i in range(8):
            if i == 4:
                A('s_add_u32 %s, %s, 4096' % (s(sT0), s(sKF)))
            A('buffer_load_dwordx4 %s, %s, %s, %s offen offset:%d sc1' % (v(KX + 4 * i, 4), v(vL16), s(sWS, 4), s(sKF if i < 4 else sT0), 1024 * (i & 3)))
        for i in range(2):
            A('buffer_load_dwordx4 %s, %s, %s, %s offen offset:%d sc1' % (v(VX + 4 * i, 4), v(vL16), s(sWS, 4), s(sVF), 1024 * i))
        A('s_add_u32 %s, %s, %d' % (s(sKF), s(sKF), 256 * KB))
        A('s_add_u32 %s, %s, %d' % (s(sVF), s(sVF), 256 * KB))

    def bread(n):
        return ['ds_read_b128 %s, %s offset:%d' % (v(BR + 8 * (n % 3) + 4 * q, 4), v(vB), FR(n) * 2048 + 1024 * q) for q in range(2)]

    def aread(n):
        return 'ds_read_b128 %s, %s offset:%d' % (v(AR + 4 * (n % 4), 4), v(vA), FR(n) * 1024)

    prefetch_kv(0)
    gstamp(A, cfg, 2, vOne, True)
    A('s_cmp_eq_u32 %s, 1' % s(sLOCAL))
    A('s_cbranch_scc0 L_qk_step_g')
    for tag, sfx in (('l', ''), ('g', ' sc1')):
        step = 'L_qk_step_' + tag
        A.label(step)
        stamp(A, cfg, 0)
        pre = ['v_mov_b32 %s, 0' % v(ACC + i) for i in range(16)] + bread(0) + bread(1) + bread(2)
        RB = 'buffer_store_dword v71, %s, %s, %s offen%s' % (v(vOne), s(sWS, 4), s(sRing), sfx)
        for x in pre:
            A(x)
        if cfg.profile == 1 or 12 in cfg.stamps:
            A('s_waitcnt vmcnt(0)')
            stamp(A, cfg, 12)
        A('s_add_u32 %s, %s, 1' % (s(sNext), s(sSTEP)))
        A('s_waitcnt lgkmcnt(0)')
        stamp(A, cfg, 10)
        wait_bell(A, vSamp, sBell, [124, 125, 126, 127][:cfg.depth], sSTEP)
        dm = ['buffer_load_dwordx4 %s, %s, %s offen offset:%d sc1 lds' % (v(vPoll), s(sWS, 4), s(sMem), 1024 * i) for i in range(4)]
        A(dm[0])
        stamp(A, cfg, 1)
        if cfg.dmagap:
            A('s_sleep %d' % cfg.dmagap)
        for x in dm[1:]:
            A(x)
        A('s_waitcnt vmcnt(3)')
        A.label(step + '_go')
        A('s_barrier')
        stamp(A, cfg, 4)
        for n in range(4):
            A(aread(n))
        q = ['a0', 'a1', 'a2', 'a3']
        when = {n: max(n - 3, cfg.adelay[n // 4]) for n in range(4, 16)}
        for n in range(16):
            ks = FR(n)
            need = max(q.index('a%d' % n), max([i for i, x in enumerate(q) if x == 'b%d' % n] + [0]))
            A('s_waitcnt lgkmcnt(%d)' % (len(q) - 1 - need))
            Aop = v(AR + 4 * (n % 4), 4)
            mq1 = '%s %s, %s, %s, %s' % (SMF, v(ACC + 4, 4), Aop, v(BR + 8 * (n % 3), 8), v(vIdx))
            mk0 = '%s %s, %s, %s, %s' % (SMF, v(ACC + 8, 4), Aop, a(ks * 16, 8), v(vIdx))
            mk1 = '%s %s, %s, %s, %s' % (SMF, v(ACC + 12, 4), Aop, a(ks * 16 + 8, 8), v(vIdx))
            mq0 = '%s %s, %s, %s, %s' % (SMF, v(ACC, 4), Aop, v(WK0 + ks * 8, 8), v(vIdx))
            if n + 3 < 16:
                br = bread(n + 3)
                ar = [m for m in range(4, 16) if when[m] == n]
                A(mq1)
                for m in ar:
                    assert m - 4 < n
                    if m % 4 == 0:
                        A('s_waitcnt vmcnt(%d)' % (3 - m // 4))
                        A('s_barrier')
                    A(aread(m))
                    q.append('a%d' % m)
                A(mq0)
                A(br[0])
                A(mk0)
                A(br[1])
                A(mk1)
                q += ['b%d' % (n + 3)] * 2
            else:
                A(mq0); A(mq1); A(mk0); A(mk1)
        stamp(A, cfg, 5)
        for base, off in ((ACC, 0), (ACC + 8, 2048)):
            for r in range(4):
                A('v_permlane32_swap_b32 %s, %s' % (v(base + r), v(base + 4 + r)))
            for r in (0, 2):
                A('v_pk_add_f32 %s, %s, %s' % (v(base + r, 2), v(base + r, 2), v(base + 4 + r, 2)))
            A('v_cvt_pk_bf16_f32 %s, %s, %s' % (v(base + 4), v(base), v(base + 1)))
            A('v_cvt_pk_bf16_f32 %s, %s, %s' % (v(base + 5), v(base + 2), v(base + 3)))
            A('ds_write_b64 %s, %s offset:%d' % (v(vQTw), v(base + 4, 2), off))
        A('v_cmp_u_f32 vcc, %s, %s' % (v(ACC), v(ACC + 1)))
        A('v_cmp_u_f32 %s, %s, %s' % (s(sNan, 2), v(ACC + 2), v(ACC + 3)))
        A('s_waitcnt lgkmcnt(0)')
        A('s_barrier')
        stamp(A, cfg, 2)
        QFR, KFR = 16, 32
        A.label(step + '_ok')
        for ks in range(4):
            for u in range(2):
                A('ds_read_b64_tr_b16 %s, %s offset:%d' % (v(QFR + 4 * ks + 2 * u, 2), v(vQTr), (32 * ks + 16 * u) * 16))
        A('s_or_b64 vcc, vcc, %s' % s(sNan, 2))
        A('s_cmp_eq_u32 %s, %d' % (s(sSTEP), cfg.nsteps - 1))
        for ks in range(3):
            for u in range(2):
                A('ds_read_b64_tr_b16 %s, %s offset:%d' % (v(KFR + 4 * ks + 2 * u, 2), v(vQTr), 2048 + (32 * ks + 16 * u) * 16))
            if ks == 0:
                A('s_cbranch_vccnz %s_nan' % step)
            if ks == 1:
                A('s_cbranch_scc1 L_qk_last')
        nan_net(A, cfg, step + '_nan', step + '_ok', pre, step + '_go', vA, vPoll, sMem, AR, vT, sNan, sVer)
        S = ACC
        vml = ['buffer_load_dwordx2 %s, %s, %s, %s offen offset:%d sc1' % (v(VM + 4 * t, 2), v(vVM), s(sWS, 4), s(sVM), 256 * t) for t in range(2)]
        for ks in range(4):
            A('s_waitcnt lgkmcnt(%d)' % ((12, 12, 10, 8)[ks]))
            for jt in range(2):
                A('%s %s, %s, %s, %s' % (MF, v(S + 4 * jt, 4), v(KX + 16 * jt + 4 * ks, 4), v(QFR + 4 * ks, 4), v(S + 4 * jt, 4) if ks else '0'))
                if ks == 0:
                    A('ds_read_b64_tr_b16 %s, %s offset:%d' % (v(KFR + 12 + 2 * jt, 2), v(vQTr), 2048 + (96 + 16 * jt) * 16))
                if ks == 1 and cfg.vmat == 0:
                    A(vml[jt])
        A('s_waitcnt lgkmcnt(0)')
        stamp(A, cfg, 9)
        M, M2 = 68, 69
        PT, PM = 48, 52
        for ks in range(4):
            A('%s %s, %s, %s, %s' % (MF, v(S + 8, 4), v(KFR + 4 * ks, 4), v(QFR + 4 * ks, 4), v(S + 8, 4) if ks else '0'))
            if cfg.vmat == 2 and ks in (1, 3):
                A(vml[ks // 2])
            if ks == 0:
                A('v_mov_b32 %s, 0' % v(PM + 2))
                A('v_mov_b32 %s, 0' % v(PM + 3))
                A('v_mov_b32 v71, %s' % s(sNext))
            if ks == 2:
                A('v_max3_f32 %s, %s, %s, %s' % (v(M), v(S), v(S + 1), v(S + 2)))
                A('v_max3_f32 %s, %s, %s, %s' % (v(M), v(M), v(S + 3), v(S + 4)))
        A('v_max3_f32 %s, %s, %s, %s' % (v(M), v(M), v(S + 5), v(S + 6)))
        A('v_max_f32 %s, %s, %s' % (v(M), v(M), v(S + 7)))
        n = 6 if cfg.vmat != 2 else 5
        if cfg.vmat == 1:
            A(vml[0]); A(vml[1])
            n -= 2
        if cfg.ringat == 0:
            A(RB)
            n -= 1
        A('s_nop %d' % (n - 1))
        A('v_max3_f32 %s, %s, %s, %s' % (v(M), v(M), v(S + 8), v(S + 9)))
        A('v_max3_f32 %s, %s, %s, %s' % (v(M2), v(M), v(S + 10), v(S + 11)))
        A('v_max3_f32 %s, %s, %s, %s' % (v(M), v(M), v(S + 10), v(S + 11)))
        A('s_nop 1')
        A('v_permlane32_swap_b32 %s, %s' % (v(M), v(M2)))
        A('v_max_f32 %s, %s, %s' % (v(70), v(M), v(M2)))
        A('v_max_f32 %s, %s, %s' % (v(M), v(M), v(M2)))
        A('s_nop 1')
        A('v_permlane16_swap_b32 %s, %s' % (v(M), v(70)))
        A('v_max_f32 %s, %s, %s' % (v(M), v(M), v(70)))
        A('v_mul_f32 %s, %s, %s' % (v(M), s(sNC), v(M)))
        for i in range(0, 8, 2):
            A('v_pk_fma_f32 %s, %s, %s, %s op_sel_hi:[1,1,0]' % (v(S + i, 2), v(S + i, 2), s(sC, 2), v(M, 2)))
        A('v_add_f32 %s, %s, %s' % (v(70), v(M), v(vBias)))
        if cfg.ringat == 1:
            A(RB)
        for i in range(8):
            A('v_exp_f32 %s, %s' % (v(S + i), v(S + i)))
            if i in (2, 4, 6):
                A('v_cvt_pk_bf16_f32 %s, %s, %s' % (v(PT + i // 2 - 1), v(S + i - 2), v(S + i - 1)))
        A('v_pk_fma_f32 %s, %s, %s, %s op_sel_hi:[1,1,0]' % (v(S + 8, 2), v(S + 8, 2), s(sC, 2), v(70, 2)))
        A('v_cvt_pk_bf16_f32 %s, %s, %s' % (v(PT + 3), v(S + 6), v(S + 7)))
        A('v_pk_fma_f32 %s, %s, %s, %s op_sel_hi:[1,1,0]' % (v(S + 10, 2), v(S + 10, 2), s(sC, 2), v(70, 2)))
        A('v_exp_f32 %s, %s' % (v(S + 8), v(S + 8)))
        OA = 24
        A('%s %s, %s, %s, 0' % (MF, v(LS, 4), v(ONES, 4), v(PT, 4)))
        if cfg.ringat == 5:
            A(RB)
        A('v_exp_f32 %s, %s' % (v(S + 9), v(S + 9)))
        A('%s %s, %s, %s, 0' % (MF, v(OA, 4), v(VX, 4), v(PT, 4)))
        A('v_exp_f32 %s, %s' % (v(S + 10), v(S + 10)))
        A('%s %s, %s, %s, 0' % (MF, v(OA + 4, 4), v(VX + 4, 4), v(PT, 4)))
        if cfg.ringat == 4:
            A(RB)
        A('v_exp_f32 %s, %s' % (v(S + 11), v(S + 11)))
        l, d = A.uid('vm'), A.uid('vmd')
        stamp(A, cfg, 7)
        A('s_waitcnt vmcnt(%d)' % (0 if cfg.ringat in (2, 3) else 1))
        A.label(l)
        A('v_max_u32 %s, %s, %s' % (v(vT), v(VM), v(VM + 4)))
        A('v_cmp_eq_u32 vcc, -1, %s' % v(vT))
        A('v_cvt_pk_bf16_f32 %s, %s, %s' % (v(PM), v(S + 8), v(S + 9)))
        A('v_cvt_pk_bf16_f32 %s, %s, %s' % (v(PM + 1), v(S + 10), v(S + 11)))
        A('s_nop 0')
        A('s_cbranch_vccnz %s' % d)
        A.ool(d + ':')
        for t in range(2):
            A.ool('buffer_load_dwordx2 %s, %s, %s, %s offen offset:%d sc1' % (v(VM + 4 * t, 2), v(vVM), s(sWS, 4), s(sVM), 256 * t))
        A.ool('s_sub_u32 %s, %s, 1\ns_cbranch_scc1 L_end\ns_waitcnt vmcnt(0)\ns_branch %s' % (s(sBUD), s(sBUD), l))
        stamp(A, cfg, 8)
        A('%s %s, %s, %s, %s' % (MF, v(LS, 4), v(ONES, 4), v(PM, 4), v(LS, 4)))
        for t in range(2):
            A('%s %s, %s, %s, %s' % (MF, v(OA + 4 * t, 4), v(VM + 4 * t, 4), v(PM, 4), v(OA + 4 * t, 4)))
        A(RB if cfg.ringat == 2 else 's_nop 0')
        A('v_rcp_f32 %s, %s' % (v(M), v(LS)))
        A('s_nop 1')
        for i in range(0, 4, 2):
            A('v_pk_mul_f32 %s, %s, %s op_sel_hi:[1,0]' % (v(OA + i, 2), v(OA + i, 2), v(M, 2)))
        A('v_cvt_pk_bf16_f32 %s, %s, %s' % (v(OA), v(OA), v(OA + 1)))
        A('v_cvt_pk_bf16_f32 %s, %s, %s' % (v(OA + 1), v(OA + 2), v(OA + 3)))
        for i in range(4, 8, 2):
            A('v_pk_mul_f32 %s, %s, %s op_sel_hi:[1,0]' % (v(OA + i, 2), v(OA + i, 2), v(M, 2)))
        A('v_min_u32 %s, -2, %s' % (v(OA), v(OA)))
        A('v_cvt_pk_bf16_f32 %s, %s, %s' % (v(OA + 2), v(OA + 4), v(OA + 5)))
        A('v_cvt_pk_bf16_f32 %s, %s, %s' % (v(OA + 3), v(OA + 6), v(OA + 7)))
        A('buffer_store_dwordx4 %s, %s, %s, %s offen%s' % (v(OA, 4), v(vO), s(sWS, 4), s(sO), sfx))
        if cfg.ringat == 3:
            A(RB)
        stamp(A, cfg, 3)
        for u in range(2):
            A('ds_read_b64_tr_b16 %s, %s offset:%d' % (v(32 + 2 * u, 2), v(vKMr), 2048 + 256 * u))
        for i in range(4):
            A('v_mov_b32 %s, -1' % v(36 + i))
        ring(A, sT0, sO, -1, 32 * KB)
        A('buffer_store_dwordx4 v[36:39], %s, %s, %s offen%s' % (v(vO), s(sWS, 4), s(sT0), sfx))
        A('v_mov_b32 %s, %s' % (v(40), s(sSTEP)))
        A('buffer_store_dword v40, %s, %s, %s offen sc1' % (v(vOne), s(sWS, 4), s(sFlag)))
        A('s_waitcnt lgkmcnt(0)')
        if not cfg.nokm:
            A('buffer_store_dwordx4 v[32:35], %s, %s, %s offen sc1' % (v(vKMo), s(sWS, 4), s(sKM)))
        A('s_add_u32 %s, %s, %d' % (s(sKM), s(sKM), 64 * KB))
        if not cfg.nokv:
            prefetch_kv(1)
        stamp_flush(A, cfg, 15, vT, vOne)
        for reg, stepb in ((sO, 32 * KB), (sMem, 16 * KB), (sVM, 2 * KB)):
            ring_adv(A, reg, stepb)
        A('s_add_u32 %s, %s, 1' % (s(sSTEP), s(sSTEP)))
        A('s_branch %s' % step)
        A.flush_tail()
    A.label('L_qk_last')
    for u in range(2):
        A('ds_read_b64_tr_b16 %s, %s offset:%d' % (v(32 + 2 * u, 2), v(vKMr), 2048 + 256 * u))
    A('s_waitcnt lgkmcnt(0)')
    A('buffer_store_dwordx4 v[32:35], %s, %s, %s offen sc1' % (v(vKMo), s(sWS, 4), s(sKM)))
    A('s_waitcnt vmcnt(0)')
    A('s_barrier')
    gstamp(A, cfg, 3, vOne, True)
    A('v_mov_b32 v40, %d' % cfg.nsteps)
    A('buffer_store_dword v40, %s, %s, %s offen sc1' % (v(vOne), s(sWS, 4), s(sFlag)))
    A('s_branch L_end')


def gen_vo(A, cfg):
    vT = 1; vA = 2; vB = 3; vPoll = 4; vSamp = 5; vRw = 6; vRr = 7; vIdx = 8; vT16 = 9; vT8 = 10
    vVM = 11; vOp = 12; vOne = 13; vSp = 14; vRw2 = 15
    ACC, AR, SW = 16, 48, 64
    OP = 32
    WV0 = 128
    WV1 = 192
    sMem, sO, sVM, sVMG, sPart, sRem, sFlag, sO2, sMemW, sBell, sR0, sR1, sR2, sSel = range(50, 64)
    sNan, sVer, sNext, sRing, sBellO = 64, 66, 67, 26 + 1, 96
    A.label('L_vo')
    A('s_lshl_b32 %s, %s, 4' % (s(sT1), s(sGRP)))
    A('s_add_u32 %s, %s, %s' % (s(sT1), s(sT1), s(sJ)))
    common_chain_init(A, vB, vSp, vA, vOne, vIdx)
    gstamp(A, cfg, 0, vOne, True)
    srd(A, sSA, sWV, 8 * MB)
    srd(A, sSB, sWO, 8 * MB)
    A('s_and_b32 %s, %s, 1' % (s(sT0), s(sWAVE)))
    A('s_lshl_b32 %s, %s, 6' % (s(sT0), s(sT0)))
    A('v_add_u32 v16, %s, v0' % s(sT0))
    A('v_lshlrev_b32 %s, 4, v16' % v(vT16))
    A('v_lshlrev_b32 %s, 3, v16' % v(vT8))
    A('s_lshl_b32 %s, %s, 16' % (s(sMem), s(sGRP)))
    A('s_add_u32 %s, %s, %d' % (s(sMem), s(sMem), MEMR))
    A('s_lshl_b32 %s, %s, 10' % (s(sT0), s(sJ)))
    A('s_add_u32 %s, %s, %s' % (s(sMemW), s(sMem), s(sT0)))
    A('s_lshl_b32 %s, %s, 17' % (s(sO), s(sGRP)))
    A('s_add_u32 %s, %s, %d' % (s(sO), s(sO), OR_))
    A('s_lshl_b32 %s, %s, 13' % (s(sVM), s(sT1)))
    A('s_add_u32 %s, %s, %d' % (s(sVM), s(sVM), VMR))
    A('s_lshl_b32 %s, %s, 11' % (s(sVMG), s(sT1)))
    A('s_add_u32 %s, %s, %s' % (s(sVMG), s(sVMG), hx(VMG)))
    A('s_lshl_b32 %s, %s, 16' % (s(sRem), s(sT1)))
    A('s_xor_b32 %s, %s, %d' % (s(sPart), s(sRem), 16 << 16))
    A('s_add_u32 %s, %s, %s' % (s(sPart), s(sPart), hx(PART)))
    A('s_add_u32 %s, %s, %s' % (s(sRem), s(sRem), hx(PART)))
    A('s_lshl_b32 %s, %s, 7' % (s(sFlag), s(sT1)))
    A('s_add_u32 %s, %s, %d' % (s(sFlag), s(sFlag), CT_VM))
    A('s_and_b32 %s, %s, 1' % (s(sSel), s(sWAVE)))
    A('s_lshl_b32 %s, %s, 13' % (s(sSel), s(sSel)))
    A('s_lshr_b32 %s, %s, 1' % (s(sT0), s(sWAVE)))
    A('s_lshl_b32 %s, %s, 10' % (s(sT0), s(sT0)))
    A('s_add_u32 %s, %s, %s' % (s(sSel), s(sSel), s(sT0)))
    A('s_add_u32 %s, %s, %s' % (s(sSel), s(sSel), s(sRem)))
    A('s_add_u32 %s, %s, %d' % (s(sSel), s(sSel), 32 * KB))
    A('s_lshl_b32 %s, %s, 10' % (s(sRing), s(sGRP)))
    A('s_lshl_b32 %s, %s, 8' % (s(sBell), s(sWAVE)))
    A('s_add_u32 %s, %s, %s' % (s(sBell), s(sBell), s(sRing)))
    A('s_add_u32 %s, %s, %d' % (s(sBell), s(sBell), CT_BELL))
    A('s_add_u32 %s, %s, 2048' % (s(sBellO), s(sBell)))
    A('s_lshr_b32 %s, %s, 2' % (s(sT0), s(sJ)))
    A('s_lshl_b32 %s, %s, 8' % (s(sT0), s(sT0)))
    A('s_add_u32 %s, %s, %s' % (s(sRing), s(sRing), s(sT0)))
    A('s_and_b32 %s, %s, 3' % (s(sT0), s(sJ)))
    A('s_lshl_b32 %s, %s, 3' % (s(sT0), s(sT0)))
    A('s_add_u32 %s, %s, %s' % (s(sRing), s(sRing), s(sT0)))
    A('s_and_b32 %s, %s, 1' % (s(sT0), s(sWAVE)))
    A('s_lshl_b32 %s, %s, 2' % (s(sT0), s(sT0)))
    A('s_add_u32 %s, %s, %s' % (s(sRing), s(sRing), s(sT0)))
    A('s_add_u32 %s, %s, %d' % (s(sRing), s(sRing), CT_BELL))
    A('s_lshl_b32 %s, %s, 9' % (s(sT0), s(sWAVE)))
    A('v_lshlrev_b32 %s, 3, v0' % v(vVM))
    A('v_add_u32 %s, %s, %s' % (v(vVM), s(sT0), v(vVM)))
    A('v_lshrrev_b32 v17, 4, v16')
    A('v_lshlrev_b32 v17, 3, v17')
    A('v_and_b32 v18, 1, v0')
    A('v_lshl_add_u32 v17, v18, 2, v17')
    A('v_bfe_u32 v18, v0, 1, 3')
    A('v_mul_u32_u24 v19, 320, v18')
    A('v_lshl_add_u32 v19, v17, 2, v19')
    A('v_add_u32 %s, %d, v19' % (v(vRr), RED))
    A('v_lshlrev_b32 v18, 11, v18')
    A('v_lshl_add_u32 v17, v17, 1, v18')
    A('s_lshl_b32 %s, %s, 7' % (s(sT0), s(sJ)))
    A('v_add_u32 v17, %s, v17' % s(sT0))
    A('global_load_dwordx2 v[28:29], v17, %s' % s(sMEM0, 2))
    lane_consts(A, 16, 17, 24)
    sparse_rowlane_mem(A, 22, 16, 17, 25)
    A('s_lshl_b32 %s, %s, 8' % (s(sT0), s(sT1)))
    A('s_lshl_b32 %s, %s, 6' % (s(sT2), s(sWAVE)))
    A('s_add_u32 %s, %s, %s' % (s(sT2), s(sT2), s(sT0)))
    vPair, vPairO = vPoll, vOp
    dma_offsets(A, vPair, 22, 24, 25, 13, sT2)
    sparse_rowlane_o(A, 22, 16, 17, 25)
    A('s_lshl_b32 %s, %s, 22' % (s(sT0), s(sGRP)))
    A('s_lshl_b32 %s, %s, 20' % (s(sT2), s(sWAVE)))
    A('s_add_u32 %s, %s, %s' % (s(sT0), s(sT0), s(sT2)))
    A('s_lshl_b32 %s, %s, 7' % (s(sT2), s(sJ)))
    A('s_add_u32 %s, %s, %s' % (s(sT2), s(sT2), s(sT0)))
    dma_offsets(A, vPairO, 22, 24, 25, 11, sT2)
    ops = []
    for ks in range(16):
        for hb in range(2):
            for u in range(2):
                q = 4 * hb + 2 * u
                ops.append(dict(srd=sSA, voff=vPair, soff=(64 * ks + 32 * hb + 2 * u) * 8192,
                                reads=[(v(WV0 + ks * 8 + q, 2), 0),
                                       (a(WV1 + ks * 8 + q, 2) if ks < 8 else ('res', 2 * (ks - 8) + hb, u), 512)]))
    lo, hi = [], []
    for ks in range(8):
        for hb in range(2):
            for u in range(2):
                q, so = 4 * hb + 2 * u, (64 * ks + 8 * hb + 2 * u) * 2048
                lo.append(dict(srd=sSB, voff=vPairO, soff=so, reads=[(a((ks * 3 + t) * 8 + q, 2), 512 * t) for t in range(2)]))
                hi.append(dict(srd=sSB, voff=vPairO, soff=so + 64, reads=[(a((ks * 3 + 2) * 8 + q, 2), 0), (('res', 16 + 2 * ks + hb, u), 512)]))
    for i in range(0, 32, 8):
        ops += lo[i:i + 8] + hi[i:i + 8]

    def init(n):
        for i in range(4):
            A('v_mov_b32 %s, -1' % v(20 + i))
        for sl in range(1, 4):
            A('s_add_u32 %s, %s, %d' % (s(sT0), s(sMemW), sl * 16 * KB))
            A('buffer_store_dwordx2 v[20:21], %s, %s, %s offen sc1' % (v(vT8), s(sWS, 4), s(sT0)))
        for sl in range(4):
            A('s_add_u32 %s, %s, %d' % (s(sT0), s(sVM), sl * 2 * KB))
            A('buffer_store_dwordx2 v[20:21], %s, %s, %s offen sc1' % (v(vVM), s(sWS, 4), s(sT0)))
        for k in range(8 * cfg.nrep):
            A('s_add_u32 %s, %s, %d' % (s(sT0), s(sRem), k * 2 * KB))
            A('buffer_store_dwordx4 v[20:23], %s, %s, %s offen sc1' % (v(vT16), s(sWS, 4), s(sT0)))
        A('v_and_b32 v24, 0x3ff, %s' % v(vT16))
        A('buffer_store_dwordx4 v[20:23], v24, %s, %s offen sc1' % (s(sWS, 4), s(sSel)))
        A('v_mov_b32 v25, 0')
        A('buffer_store_dword v25, %s, %s, %s offen sc1' % (v(vOne), s(sWS, 4), s(sFlag)))
        A('buffer_store_dword v25, %s, %s, %s offen sc1' % (v(vOne), s(sWS, 4), s(sRing)))
        A('s_waitcnt vmcnt(%d)' % min(63, n + 3 + 4 + 8 * cfg.nrep + 3))
        A('v_min_u32 v28, -2, v28')
        A('v_min_u32 v29, -2, v29')
        A('buffer_store_dwordx2 v[28:29], %s, %s, %s offen sc1' % (v(vT8), s(sWS, 4), s(sMemW)))
        A('s_add_u32 %s, %s, %d' % (s(sMemW), s(sMemW), 16 * KB))
        publish_xcc(A, vOne)
    weight_loader(A, ops, vB, vSp, init, resident=32, vfin=vSamp, covered=lambda: grid_arrive(A, vT, vSamp))
    A('v_mov_b32 %s, %s' % (v(vB), v(vSamp)))
    gstamp(A, cfg, 1, vOne, True)
    A('v_lshlrev_b32 v16, 4, v0')
    A('s_lshl_b32 %s, %s, 12' % (s(sT0), s(sWAVE)))
    A('v_add_u32 %s, %s, v16' % (v(vPoll), s(sT0)))
    A('v_and_b32 %s, 7, v0' % v(vSamp))
    A('v_lshlrev_b32 %s, 2, %s' % (v(vSamp), v(vSamp)))
    A('v_and_b32 %s, 15, v0' % v(vSp))
    A('v_lshlrev_b32 %s, 2, %s' % (v(vSp), v(vSp)))
    A('s_add_u32 m0, %s, %d' % (s(sT0), MS))
    A('s_lshl_b32 %s, %s, 13' % (s(sT0), s(sWAVE)))
    A('v_add_u32 %s, %s, v16' % (v(vOp), s(sT0)))
    A('v_lshrrev_b32 v16, 5, v0')
    A('v_lshlrev_b32 v16, 4, v16')
    A('v_and_b32 v17, 15, v0')
    A('v_add_u32 v16, v16, v17')
    A('v_lshlrev_b32 v16, 2, v16')
    A('v_bfe_u32 v17, v0, 4, 1')
    A('v_mul_u32_u24 v17, 1280, v17')
    A('v_add_u32 v16, v17, v16')
    A('s_mul_i32 %s, %s, 2560' % (s(sT0), s(sWAVE)))
    A('s_add_u32 %s, %s, %d' % (s(sT0), s(sT0), RED))
    A('v_add_u32 %s, %s, v16' % (v(vRw), s(sT0)))
    A('v_add_u32 %s, 128, %s' % (v(vRw2), v(vRw)))
    grid_wait(A, 16, 18, cfg, [(192, cfg.nchain)])
    group_local(A, 16, 18)
    A('s_barrier')
    A('s_mov_b32 %s, 0' % s(sSTEP))
    A('s_mov_b32 %s, -1' % s(sVer))
    A('s_mov_b32 s98, 0')
    A('s_mov_b32 s97, 0')

    others = ((sO, 32 * KB), (sMemW, 16 * KB), (sVM, 2 * KB), (sPart, 2 * KB), (sRem, 2 * KB))
    sMask = 99

    def swap_in(base):
        for k in range(16):
            A('ds_read_b128 %s, %s offset:%d' % (v(SW + 4 * k, 4), v(vB), base + 1024 * k))

    def aread(ks):
        return 'ds_read_b128 %s, %s offset:%d' % (v(AR + 4 * (ks % 4), 4), v(vA), ks * 1024)

    def part_addr(base, hi, k):
        return (base if k < 1 else hi + k - 1), 0

    for reg, stepb in others:
        ring(A, sT0, reg, -1, stepb)
        A('s_mov_b32 %s, %s' % (s(reg), s(sT0)))
    A('s_lshr_b32 %s, %s, 1' % (s(sMask), s(sWAVE)))
    A('s_lshl_b32 %s, %s, 30' % (s(sMask), s(sMask)))
    gstamp(A, cfg, 2, vOne, True)
    A('s_cmp_eq_u32 %s, 1' % s(sLOCAL))
    A('s_cbranch_scc0 L_vo_step_g')
    for tag, sfx in (('l', ''), ('g', ' sc1')):
        step = 'L_vo_step_' + tag
        A.label(step)
        stamp(A, cfg, 0)
        wait_bell(A, vSamp, sBell, [32, 33, 34, 35][:cfg.vdepth], sSTEP)
        dma_mem(A, vPoll, sMem)
        stamp(A, cfg, 1)
        swap_in(0)
        for i in range(8):
            A('v_mov_b32 %s, 0' % v(ACC + i))
        for i in range(4):
            A('v_mov_b32 %s, -1' % v(ACC + 8 + i))
        A('v_mov_b32 %s, %s' % (v(ACC + 12), s(sSTEP)))
        A('v_or_b32 %s, %s, %s' % (v(ACC + 13), s(sMask), v(vT16)))
        A('s_mov_b32 %s, %s' % (s(sR1), s(sVM)))
        A('s_mov_b32 %s, %s' % (s(sR2), s(sRem)))
        for reg, stepb in others:
            ring_adv(A, reg, stepb)
        ring(A, sR0, sMemW, -2, 16 * KB)
        A('s_add_u32 %s, %s, 1' % (s(sNext), s(sSTEP)))
        A('s_waitcnt vmcnt(0) lgkmcnt(0)')
        A.label(step + '_go')
        A('s_barrier')
        for ks in range(4):
            A(aread(ks))
        house = ['buffer_store_dwordx2 %s, %s, %s, %s offen%s' % (v(ACC + 8, 2), v(vT8), s(sWS, 4), s(sR0), sfx),
                 'buffer_store_dwordx2 %s, %s, %s, %s offen%s' % (v(ACC + 8, 2), v(vVM), s(sWS, 4), s(sR1), sfx),
                 'buffer_store_dword %s, %s, %s, %s offen sc1' % (v(ACC + 12), v(vOne), s(sWS, 4), s(sFlag))]
        for k in range(cfg.nrep):
            house.append('s_add_u32 %s, %s, %d' % (s(sT1), s(sR2), 16 * KB * k))
            house.append('buffer_store_dwordx4 %s, %s, %s, %s offen sc1' % (v(ACC + 8, 4), v(ACC + 13), s(sWS, 4), s(sT1)))
        for ks in range(16):
            A('s_waitcnt lgkmcnt(%d)' % min(3, 15 - ks))
            Aop = v(AR + 4 * (ks % 4), 4)
            A('%s %s, %s, %s, %s' % (SMF, v(ACC, 4), Aop, v(WV0 + ks * 8, 8), v(vIdx)))
            if house:
                A(house.pop(0))
            A('%s %s, %s, %s, %s' % (SMF, v(ACC + 4, 4), Aop, a(WV1 + ks * 8, 8) if ks < 8 else v(SW + (ks - 8) * 8, 8), v(vIdx)))
            if ks + 4 < 16:
                A(aread(ks + 4))
        assert not house
        A('s_nop 7')
        for r in range(4):
            A('v_permlane32_swap_b32 %s, %s' % (v(ACC + r), v(ACC + 4 + r)))
        for r in (0, 2):
            A('v_pk_add_f32 %s, %s, %s' % (v(ACC + r, 2), v(ACC + r, 2), v(ACC + 4 + r, 2)))
        A('v_cmp_u_f32 vcc, %s, %s' % (v(ACC), v(ACC + 1)))
        A('v_cmp_u_f32 %s, %s, %s' % (s(sNan, 2), v(ACC + 2), v(ACC + 3)))
        A('v_cvt_pk_bf16_f32 %s, %s, %s' % (v(ACC + 4), v(ACC), v(ACC + 1)))
        A('v_cvt_pk_bf16_f32 %s, %s, %s' % (v(ACC + 5), v(ACC + 2), v(ACC + 3)))
        A('v_min_u32 %s, -2, %s' % (v(ACC + 4), v(ACC + 4)))
        A('s_or_b64 vcc, vcc, %s' % s(sNan, 2))
        A('s_cbranch_vccnz %s_nan' % step)
        A.label(step + '_ok')
        nan_net(A, cfg, step + '_nan', step + '_ok', ['v_mov_b32 %s, 0' % v(ACC + i) for i in range(8)], step + '_go', vA, vPoll, sMem, AR, vT, sNan, sVer)
        A('buffer_store_dwordx2 %s, %s, %s, %s offen%s' % (v(ACC + 4, 2), v(vVM), s(sWS, 4), s(sVM), sfx))
        if not cfg.nokm:
            A('buffer_store_dwordx2 %s, %s, %s, %s offen sc1' % (v(ACC + 4, 2), v(vVM), s(sWS, 4), s(sVMG)))
        A('s_add_u32 %s, %s, %d' % (s(sVMG), s(sVMG), 64 * KB))
        stamp(A, cfg, 2)
        A('s_cmp_eq_u32 %s, %d' % (s(sSTEP), cfg.nsteps - 1))
        A('s_cbranch_scc1 L_vo_last')
        swap_in(16 * KB)
        for i in range(16):
            A('v_mov_b32 %s, 0' % v(ACC + i))
        A('s_add_u32 %s, %s, 4096' % (s(sO2), s(sO)))
        for k in range(1, cfg.nrep):
            A('s_add_u32 %s, %s, %d' % (s(sR0 + k - 1), s(sPart), 16 * KB * k))

        def oload(p):
            return 'buffer_load_dwordx4 %s, %s, %s, %s offen offset:%d sc1' % (v(OP + 4 * p, 4), v(vOp), s(sWS, 4), s(sO if p < 4 else sO2), 1024 * (p & 3))

        def omf(p, t):
            B = a((p * 3 + t) * 8, 8) if t < 3 else v(SW + p * 8, 8)
            return '%s %s, %s, %s, %s' % (SMF, v(ACC + 4 * t, 4), v(OP + 4 * p, 4), B, v(vIdx))
        base = A.uid('op')
        if cfg.near:
            A('s_cmp_eq_u32 %s, 0' % s(sSTEP))
            A('s_cbranch_scc1 %s_probe' % base)
            A('s_cmp_eq_u32 %s, 4' % s(sSTEP))
            A('s_cbranch_scc1 %s_pick' % base)
            A.label(base + '_cal')
            main, A.lines = A.lines, []
            A.label(base + '_probe')
            A('s_waitcnt vmcnt(0) lgkmcnt(0)')
            A('s_mov_b32 s64, -1')
            for rep in range(3):
                A('s_memtime s[68:69]')
                A('s_waitcnt lgkmcnt(0)')
                A('s_mov_b32 s65, s68')
                A('buffer_load_dword v32, %s, %s, %s offen offset:%d sc1' % (v(vOne), s(sWS, 4), s(sSel), 256 * rep))
                A('s_waitcnt vmcnt(0)')
                A('s_memtime s[68:69]')
                A('s_waitcnt lgkmcnt(0)')
                A('s_sub_u32 s68, s68, s65')
                A('s_min_u32 s64, s64, s68')
            A('s_lshl_b32 %s, %s, 2' % (s(sT0), s(sWAVE)))
            A('v_mov_b32 v33, %d' % RED)
            A('v_add_u32 v34, %s, v33' % s(sT0))
            A('v_mov_b32 v32, s64')
            A('ds_write_b32 v34, v32')
            A('s_waitcnt lgkmcnt(0)')
            A('s_barrier')
            A('ds_read_b128 v[36:39], v33')
            A('s_waitcnt lgkmcnt(0)')
            A('s_barrier')
            A('v_min_u32 v36, v36, v38')
            A('v_min_u32 v37, v37, v39')
            A('v_cmp_lt_u32 vcc, v37, v36')
            A('s_lshl_b32 %s, %s, 3' % (s(sT0), s(sGRP)))
            A('s_lshl_b32 %s, 0x100, %s' % (s(sT0), s(sT0)))
            A('s_cmp_eq_u64 vcc, 0')
            A('s_cselect_b32 %s, 0, %s' % (s(sT0), s(sT0)))
            A('s_add_u32 %s, %s, 1' % (s(sT0), s(sT0)))
            A('s_cmp_lg_u32 %s, 0' % s(sWAVE))
            A('s_cbranch_scc1 %s_cal' % base)
            A('s_mov_b64 exec, 1')
            A('v_mov_b32 v32, 0')
            A('v_mov_b32 v33, %s' % s(sT0))
            A('global_atomic_add v32, v33, %s offset:196 sc1' % s(sDBG, 2))
            A('s_mov_b64 exec, -1')
            A('s_branch %s_cal' % base)
            A.label(base + '_pick')
            A('v_mov_b32 v32, 0')
            A('global_load_dword v33, v32, %s offset:196 sc1' % s(sDBG, 2))
            spin_fail(A)
            A('s_waitcnt vmcnt(0)')
            A('v_readfirstlane_b32 %s, v33' % s(sT1))
            A('s_and_b32 %s, %s, 0xff' % (s(sT0), s(sT1)))
            A('s_cmp_lt_u32 %s, 32' % s(sT0))
            A('s_cbranch_scc1 %s_pick' % base)
            for reg, flip in ((sRem, 0), (sPart, 1)):
                A('s_xor_b32 %s, %s, %d' % (s(sT0), s(sGRP), flip))
                A('s_lshl_b32 %s, %s, 3' % (s(sT0), s(sT0)))
                A('s_add_u32 %s, %s, 8' % (s(sT0), s(sT0)))
                A('s_lshr_b32 %s, %s, %s' % (s(sT0), s(sT1), s(sT0)))
                A('s_and_b32 %s, %s, 0xff' % (s(sT0), s(sT0)))
                A('s_cmp_gt_u32 %s, 8' % s(sT0))
                A('s_cselect_b32 %s, %d, 0' % (s(sT0), 8 * KB))
                A('s_add_u32 %s, %s, %s' % (s(reg), s(reg), s(sT0)))
            A('s_branch %s_cal' % base)
            A.tail += A.lines
            A.lines = main
        A('v_mov_b32 v0, %s' % s(sNext))
        A('s_waitcnt lgkmcnt(0)')
        wait_bell(A, vSp, sBellO, [OP, OP + 1, OP + 2, OP + 3][:cfg.odepth], sNext)
        NU = cfg.oup
        for p in range(NU):
            A(oload(p))
        stamp(A, cfg, 9)
        for p in range(-1, 8):
            issued = min(8, NU + p + 1)
            if p >= 0:
                A.label('%s_c%d' % (base, p))
                A(omf(p, 0))
                if NU + p < 8:
                    A(oload(NU + p))
                A(omf(p, 1))
            if p < 7:
                A('s_waitcnt vmcnt(%d)' % (issued - p - 2))
                A('v_cmp_eq_u32 vcc, -1, %s' % v(OP + 4 * (p + 1)))
            if p >= 0:
                A(omf(p, 2))
                A(omf(p, 3))
            if p < 7:
                fix = '%s_f%d' % (base, p + 1)
                A('s_cbranch_vccnz %s' % fix)
                A.ool(fix + ':')
                if cfg.profile:
                    A.ool('s_add_u32 s97, s97, 1')
                for k in range(p + 1, issued):
                    A.ool(oload(k))
                A.ool('s_sub_u32 %s, %s, 1\ns_cbranch_scc1 L_end' % (s(sBUD), s(sBUD)))
                A.ool('s_waitcnt vmcnt(%d)' % (issued - p - 2))
                A.ool('v_cmp_eq_u32 vcc, -1, %s' % v(OP + 4 * (p + 1)))
                A.ool('s_cbranch_vccnz %s' % fix)
                A.ool('s_branch %s_c%d' % (base, p + 1))
        A.label('%s_done' % base)
        stamp(A, cfg, 3)
        for tp in range(2):
            for r in range(4):
                A('v_permlane32_swap_b32 %s, %s' % (v(ACC + 8 * tp + r), v(ACC + 8 * tp + 4 + r)))
            for r in (0, 2):
                A('v_pk_add_f32 %s, %s, %s' % (v(ACC + 8 * tp + r, 2), v(ACC + 8 * tp + r, 2), v(ACC + 8 * tp + 4 + r, 2)))
            for r in (0, 2):
                A('ds_write2_b32 %s, %s, %s offset0:%d offset1:%d' % (v(vRw2 if tp else vRw), v(ACC + 8 * tp + r), v(ACC + 8 * tp + r + 1), 80 * r, 80 * r + 80))
        A('s_cmp_ge_u32 %s, 2' % s(sWAVE))
        A('s_waitcnt lgkmcnt(0)')
        A('s_barrier')
        stamp(A, cfg, 7)
        for p in range(4):
            A('ds_read_b128 %s, %s offset:%d' % (v(ACC + 4 * p, 4), v(vRr), 2560 * p))
        A('s_waitcnt lgkmcnt(2)')
        for c in (0, 2):
            A('v_pk_add_f32 %s, %s, %s' % (v(ACC + c, 2), v(ACC + c, 2), v(ACC + 4 + c, 2)))
        A('s_waitcnt lgkmcnt(0)')
        for c in (0, 2):
            A('v_pk_add_f32 %s, %s, %s' % (v(ACC + 8 + c, 2), v(ACC + 8 + c, 2), v(ACC + 12 + c, 2)))
        for c in (0, 2):
            A('v_pk_add_f32 %s, %s, %s' % (v(ACC + c, 2), v(ACC + c, 2), v(ACC + 8 + c, 2)))
        A('s_cbranch_scc1 %s_ld' % step)
        A('v_min_u32 %s, -2, %s' % (v(ACC), v(ACC)))
        for k in range(cfg.nrep):
            r, o = part_addr(sPart, sR0, k)
            A('buffer_store_dwordx4 %s, %s, %s, %s offen offset:%d sc1' % (v(ACC, 4), v(vT16), s(sWS, 4), s(r), o))
        stamp(A, cfg, 4)
        A('s_branch %s_fin' % step)
        A.label(step + '_ld')
        for k in range(1, cfg.nrep):
            A('s_add_u32 %s, %s, %d' % (s(sR0 + k - 1), s(sRem), 16 * KB * k))

        def rload(k):
            r, o = part_addr(sRem, sR0, k)
            return 'buffer_load_dwordx4 %s, %s, %s, %s offen offset:%d sc1' % (v(OP + 4 * k, 4), v(vT16), s(sWS, 4), s(r), o)
        stamp(A, cfg, 10)
        if cfg.profile:
            A('s_mov_b32 %s, 0' % s(sSTAMP + 22))
        for k in range(cfg.nrep):
            if cfg.rsleep[k]:
                A('s_sleep %d' % cfg.rsleep[k])
            A(rload(k))
        stamp(A, cfg, 8)
        got = A.uid('got')
        for k in range(cfg.nrep):
            if k == cfg.nrep - 1:
                A.label(got + '_l')
            A('s_waitcnt vmcnt(%d)' % (cfg.nrep - 1 - k))
            A('v_cmp_eq_u32 vcc, -1, %s' % v(OP + 4 * k))
            if k == 0:
                A('s_cbranch_vccnz %s_%s' % (got, 'n1' if cfg.nrep > 1 else 'again'))
                break
        for c in (0, 2):
            A('v_pk_add_f32 %s, %s, %s' % (v(ACC + c, 2), v(ACC + c, 2), v(OP + c, 2)))
        if cfg.profile:
            A('s_mov_b32 %s, 0' % s(sSTAMP + 12))
        A.label(got + '_fin')
        if cfg.mring == 0:
            A('buffer_store_dword v0, %s, %s, %s offen%s' % (v(vOne), s(sWS, 4), s(sRing), sfx))
        A('v_cvt_pk_bf16_f32 %s, %s, %s' % (v(ACC + 12), v(ACC), v(ACC + 1)))
        A('v_cvt_pk_bf16_f32 %s, %s, %s' % (v(ACC + 13), v(ACC + 2), v(ACC + 3)))
        A('v_min_u32 %s, -2, %s' % (v(ACC + 12), v(ACC + 12)))
        A('v_min_u32 %s, -2, %s' % (v(ACC + 13), v(ACC + 13)))
        A('buffer_store_dwordx2 %s, %s, %s, %s offen%s' % (v(ACC + 12, 2), v(vT8), s(sWS, 4), s(sMemW), sfx))
        if cfg.mring == 1:
            A('buffer_store_dword v0, %s, %s, %s offen%s' % (v(vOne), s(sWS, 4), s(sRing), sfx))
        for k in range(1, cfg.nrep):
            A.ool('%s_n%d:' % (got, k))
            A.ool('s_waitcnt vmcnt(%d)' % (cfg.nrep - 1 - k))
            A.ool('v_cmp_eq_u32 vcc, -1, %s' % v(OP + 4 * k))
            if k < cfg.nrep - 1:
                A.ool('s_cbranch_vccnz %s_n%d' % (got, k + 1))
            else:
                A.ool('s_cbranch_vccnz %s_again' % got)
            for c in (0, 2):
                A.ool('v_pk_add_f32 %s, %s, %s' % (v(ACC + c, 2), v(ACC + c, 2), v(OP + 4 * k + c, 2)))
            if cfg.profile:
                A.ool('s_mov_b32 %s, %d' % (s(sSTAMP + 12), k))
            A.ool('s_branch %s_fin' % got)
        A.ool(got + '_again:')
        if cfg.profile:
            A.ool('s_add_u32 %s, %s, 1' % (s(sSTAMP + 22), s(sSTAMP + 22)))
        A.ool(rload(cfg.nrep - 1))
        A.ool('s_sub_u32 %s, %s, 1\ns_cbranch_scc1 L_end\ns_branch %s_%s' % (s(sBUD), s(sBUD), got, 'n%d' % (cfg.nrep - 1) if cfg.nrep > 1 else 'l'))
        stamp(A, cfg, 5)
        A.label(step + '_fin')
        stamp_flush(A, cfg, 15, vT, vOne, wave=cfg.pwave)
        ring_adv(A, sMem, 16 * KB)
        A('s_add_u32 %s, %s, 1' % (s(sSTEP), s(sSTEP)))
        A('s_branch %s' % step)
        A.flush_tail()
    A.label('L_vo_last')
    A('s_waitcnt vmcnt(0)')
    A('s_barrier')
    gstamp(A, cfg, 3, vOne, True)
    A('v_mov_b32 v40, %d' % cfg.nsteps)
    A('buffer_store_dword v40, %s, %s, %s offen sc1' % (v(vOne), s(sWS, 4), s(sFlag)))
    A('s_branch L_end')
```

```python
import sys
from asmlib import *
from layout import *
import chain
from chain import *

NAME = 'parallel_sum__memory_aug_recurrent_mem_tr__dense_activation_relu__prompt_kernel'
HDR = open('parallel_sum__memory_aug_recurrent_mem_tr__dense_activation_relu__prompt.s.ref').read().split('; Override launch')[0]


class Cfg:
    chain_only = False
    gemm_only = False
    profile = False
    dbgt = False
    stamps = ()
    nsteps = 64
    nchain = 64
    ngemm = 192
    poll2 = True
    hint = True
    osleep = 0
    rsleep = (6,)
    dupmask = 31
    nrep = 1
    near = True
    depth = 4
    vdepth = 2
    odepth = 4
    ringat = 4
    mring = 0
    vmat = 2
    dmagap = 0
    oup = 5
    prewin = 0
    codepf = False
    adelay = (0, 1, 5, 9)
    nokv = False
    nokm = False
    resetsleep = 2
    rt = False
    pwave = 2


def build(cfg):
    A = Asm()
    A('s_cmp_ge_u32 s2, 256')
    A('s_cbranch_scc1 L_end')
    A('s_load_dwordx8 s[4:11], s[0:1], 0')
    A('s_load_dwordx4 s[12:15], s[0:1], 32')
    A('s_load_dwordx4 s[16:19], s[0:1], 64')
    A('s_load_dwordx4 s[20:23], s[0:1], 80')
    A('s_load_dwordx2 s[24:25], s[0:1], 96')
    A('v_lshrrev_b32 v1, 6, v0')
    A('v_and_b32 v0, 63, v0')
    A('s_getreg_b32 %s, hwreg(HW_REG_XCC_ID, 0, 4)' % s(sXCC))
    A('v_readfirstlane_b32 %s, v1' % s(sWAVE))
    A('s_mov_b32 %s, 0x100000' % s(sBUD))
    if cfg.codepf:
        A('s_getpc_b64 s[34:35]')
        A.label('L_pc')
        A('s_lshr_b32 s32, s2, 3')
        A('s_lshl_b32 s32, s32, 2')
        A('s_add_u32 s32, s32, %s' % s(sWAVE))
        A('s_lshl_b32 s32, s32, 10')
        A('s_min_u32 s32, s32, L_end-L_pc-1024')
        A('v_lshl_add_u32 v1, v0, 4, s32')
        A('global_load_dwordx4 v[252:255], v1, s[34:35]')
    A('s_waitcnt lgkmcnt(0)')
    srd(A, sWS, sWSP, WS_BYTES)
    A('s_and_b32 %s, s2, 7' % s(sGRP))
    A('s_lshr_b32 %s, s2, 3' % s(sJ))
    A('s_cmp_ge_u32 %s, 2' % s(sGRP))
    A('s_cbranch_scc1 L_gemm')
    if cfg.gemm_only:
        A('s_branch L_end')
    else:
        A('s_cmp_lt_u32 %s, 16' % s(sJ))
        A('s_cbranch_scc1 L_qk')
        A('s_sub_u32 %s, %s, 16' % (s(sJ), s(sJ)))
        gen_vo(A, cfg)
        gen_qk(A, cfg)
    A.label('L_gemm')
    if not cfg.chain_only:
        import gemm
        gemm.gen_gemm(A, cfg)
    A.label('L_end')
    A('s_endpgm')
    txt = HDR + '; @launch grid=(256,1,1) block=(256,1,1) lds=163840\n'
    txt += '.amdgcn_target "amdgcn-amd-amdhsa--gfx950"\n.text\n.globl %s\n.p2align 8\n.type %s,@function\n%s:\n' % (NAME, NAME, NAME)
    txt += A.text()
    txt += '''.section .rodata,"a"
.p2align 6
.amdhsa_kernel %s
  .amdhsa_next_free_vgpr 512
  .amdhsa_next_free_sgpr 102
  .amdhsa_accum_offset 256
  .amdhsa_group_segment_fixed_size 0
  .amdhsa_kernarg_size 104
  .amdhsa_user_sgpr_count 2
  .amdhsa_user_sgpr_kernarg_segment_ptr 1
  .amdhsa_system_sgpr_workgroup_id_x 1
  .amdhsa_float_denorm_mode_32 3
.end_amdhsa_kernel
''' % NAME
    return txt


if __name__ == '__main__':
    cfg = Cfg()
    out = sys.argv[1]
    for kv in sys.argv[2:]:
        k, val = kv.split('=')
        setattr(cfg, k, eval(val))
    if cfg.chain_only:
        cfg.ngemm = 0
    if cfg.gemm_only:
        cfg.nchain = 0
    open(out, 'w').write(build(cfg))
```

```python
from common import *

SMF = 'v_smfmac_f32_16x16x64_bf16'
MF = 'v_mfma_f32_16x16x32_bf16'


def wait_bell(A, vbell, sbell, regs, sval, first=()):
    l = A.uid('wb')
    d = len(regs)
    ld = lambda k: A('buffer_load_dword %s, %s, %s, %s offen sc1' % (v(regs[k]), v(vbell), s(sWS, 4), s(sbell)))
    for k in range(d):
        ld(k)
    for k in range(d):
        A.label('%s_%d' % (l, k))
        A('s_waitcnt vmcnt(%d)' % (d - 1))
        A('v_cmp_gt_u32 vcc, %s, %s' % (s(sval), v(regs[k])))
        A('s_cbranch_vccnz %s_r%d' % (l, k))
        for x in first:
            A(x)
        if k < d - 1:
            A('s_branch %s_ok' % l)
            A.label('%s_r%d' % (l, k))
            ld(k)
    A.label(l + '_ok')
    A.ool('%s_r%d:' % (l, d - 1))
    A.ool('buffer_load_dword %s, %s, %s, %s offen sc1' % (v(regs[d - 1]), v(vbell), s(sWS, 4), s(sbell)))
    A.ool('s_sub_u32 %s, %s, 1\ns_cbranch_scc1 L_end\ns_branch %s_0' % (s(sBUD), s(sBUD), l))


def dma_mem(A, vpoll, smem):
    for i in range(4):
        A('buffer_load_dwordx4 %s, %s, %s offen offset:%d sc1 lds' % (v(vpoll), s(sWS, 4), s(smem), 1024 * i))


def nan_net(A, cfg, lbl, back, pre, resume, vA, vpoll, smem, tmp, vt, snan, sver, sm0=None):
    o = A.ool
    o(lbl + ':')
    o('s_mov_b64 %s, 0' % s(snan, 2))
    o('s_mov_b64 vcc, 0')
    o('s_cmp_eq_u32 %s, %s' % (s(sver), s(sSTEP)))
    o('s_cbranch_scc1 %s' % back)
    o('s_mov_b32 %s, %s' % (s(sver), s(sSTEP)))
    if cfg.profile:
        o('s_add_u32 s98, s98, 1')
    if sm0:
        o('s_mov_b32 m0, %s' % s(sm0))
    o(lbl + '_again:')
    o('s_waitcnt vmcnt(0) lgkmcnt(0)')
    o('s_barrier')
    for i in range(4):
        o('buffer_load_dwordx4 %s, %s, %s offen offset:%d sc1 lds' % (v(vpoll), s(sWS, 4), s(smem), 1024 * i))
    o('s_sub_u32 %s, %s, 1\ns_cbranch_scc1 L_end' % (s(sBUD), s(sBUD)))
    o('s_waitcnt vmcnt(0)')
    o('s_barrier')
    o('v_mov_b32 %s, 0' % v(vt))
    for f in range(16):
        o('ds_read_b128 %s, %s offset:%d' % (v(tmp, 4), v(vA), 1024 * f))
        o('s_waitcnt lgkmcnt(0)')
        o('v_max3_u32 %s, %s, %s, %s' % (v(vt), v(vt), v(tmp), v(tmp + 1)))
        o('v_max3_u32 %s, %s, %s, %s' % (v(vt), v(vt), v(tmp + 2), v(tmp + 3)))
    o('v_cmp_eq_u32 vcc, -1, %s' % v(vt))
    o('s_cbranch_vccnz %s_again' % lbl)
    for x in pre:
        o(x)
    o('s_waitcnt lgkmcnt(0)')
    o('s_branch %s' % resume)


def ring(A, dst, reg, delta, stepb):
    mask = 3 * stepb
    A('s_add_u32 %s, %s, %d' % (s(dst), s(reg), (delta % 4) * stepb))
    A('s_and_b32 %s, %s, %d' % (s(dst), s(dst), mask))
    A('s_andn2_b32 %s, %s, %d' % (s(sT2), s(reg), mask))
    A('s_or_b32 %s, %s, %s' % (s(dst), s(dst), s(sT2)))


def ring_adv(A, reg, stepb):
    mask = 3 * stepb
    A('s_add_u32 %s, %s, %d' % (s(sT2), s(reg), stepb))
    A('s_and_b32 %s, %s, %d' % (s(sT2), s(sT2), mask))
    A('s_andn2_b32 %s, %s, %d' % (s(reg), s(reg), mask))
    A('s_or_b32 %s, %s, %s' % (s(reg), s(reg), s(sT2)))


FR = lambda n: 4 * (n & 3) + (n >> 2)


def gen_qk(A, cfg):
    vT = 1; vA = 2; vB = 3; vPoll = 4; vSamp = 5; vQTw = 6; vQTr = 7; vIdx = 8; vBias = 9; vO = 10
    vVM = 11; vL16 = 12; vOne = 13; vKMr = 14; vKMo = 15
    AR, BR, ACC, KX, VX = 16, 32, 56, 72, 104
    ONES, VM, LS = 112, 116, 124
    WK0 = 128
    sMem, sO, sVM, sKF, sVF, sKM, sSeen, sFlag, sG1, sBell = range(50, 60)
    sC, sNC, sRing = 60, 62, 63
    sNan, sVer, sNext, sM0m, sM0k = 64, 66, 67, 68, 69
    KXL = QT + 4 * KB + 128
    QHALF = 2048 + 64
    A.label('L_qk')
    A('s_lshl_b32 %s, %s, 4' % (s(sT1), s(sGRP)))
    A('s_add_u32 %s, %s, %s' % (s(sT1), s(sT1), s(sJ)))
    common_chain_init(A, vB, vKMr, vA, vOne, vIdx)
    gstamp(A, cfg, 0, vOne, True)
    srd(A, sSA, sWK, 8 * MB)
    srd(A, sSB, sWQ, 8 * MB)
    A('s_lshr_b32 %s, %s, 1' % (s(sT0), s(sWAVE)))
    A('s_lshl_b32 %s, %s, 1' % (s(sT2), s(sJ)))
    A('s_add_u32 %s, %s, %s' % (s(sT0), s(sT0), s(sT2)))
    A('s_lshl_b32 %s, %s, 10' % (s(sT0), s(sT0)))
    A('s_and_b32 %s, %s, 1' % (s(sT2), s(sWAVE)))
    A('s_lshl_b32 %s, %s, 7' % (s(sT2), s(sT2)))
    A('s_add_u32 %s, %s, %s' % (s(sT0), s(sT0), s(sT2)))
    A('v_lshlrev_b32 %s, 4, v0' % v(vL16))
    A('v_add_u32 %s, %s, %s' % (v(vO), s(sT0), v(vL16)))
    A('v_and_b32 v16, 8, v0')
    A('v_lshlrev_b32 v16, 27, v16')
    A('v_or_b32 %s, %s, v16' % (v(vO), v(vO)))
    A('v_lshrrev_b32 v17, 4, v0')
    A('v_lshlrev_b32 v17, 7, v17')
    A('v_and_b32 v18, 7, v0')
    A('v_lshl_add_u32 v17, v18, 4, v17')
    A('s_lshl_b32 %s, %s, 9' % (s(sT0), s(sWAVE)))
    A('v_add_u32 v17, %s, v17' % s(sT0))
    A('v_or_b32 %s, v17, v16' % v(vKMo))
    A('s_lshl_b32 %s, %s, 17' % (s(sO), s(sGRP)))
    A('s_add_u32 %s, %s, %d' % (s(sO), s(sO), OR_))
    A('s_lshl_b32 %s, %s, 16' % (s(sMem), s(sGRP)))
    A('s_add_u32 %s, %s, %d' % (s(sMem), s(sMem), MEMR))
    A('s_lshl_b32 %s, %s, 13' % (s(sVM), s(sT1)))
    A('s_add_u32 %s, %s, %d' % (s(sVM), s(sVM), VMR))
    A('s_lshl_b32 %s, %s, 13' % (s(sKF), s(sT1)))
    A('s_add_u32 %s, %s, %s' % (s(sVF), s(sKF), hx(VF)))
    A('s_add_u32 %s, %s, %s' % (s(sKF), s(sKF), hx(KF)))
    A('s_lshl_b32 %s, %s, 11' % (s(sT0), s(sWAVE)))
    A('s_add_u32 %s, %s, %s' % (s(sVF), s(sVF), s(sT0)))
    A('s_lshl_b32 %s, %s, 11' % (s(sKM), s(sT1)))
    A('s_add_u32 %s, %s, %s' % (s(sKM), s(sKM), hx(KMG)))
    A('s_lshl_b32 %s, %s, 7' % (s(sFlag), s(sT1)))
    A('s_add_u32 %s, %s, %d' % (s(sFlag), s(sFlag), CT_KM))
    A('s_lshl_b32 %s, %s, 10' % (s(sRing), s(sGRP)))
    A('s_lshl_b32 %s, %s, 8' % (s(sBell), s(sWAVE)))
    A('s_add_u32 %s, %s, %s' % (s(sBell), s(sBell), s(sRing)))
    A('s_add_u32 %s, %s, %d' % (s(sBell), s(sBell), CT_BELL))
    A('s_lshr_b32 %s, %s, 2' % (s(sT0), s(sJ)))
    A('s_lshl_b32 %s, %s, 8' % (s(sT0), s(sT0)))
    A('s_add_u32 %s, %s, %s' % (s(sRing), s(sRing), s(sT0)))
    A('s_and_b32 %s, %s, 3' % (s(sT0), s(sJ)))
    A('s_lshl_b32 %s, %s, 4' % (s(sT0), s(sT0)))
    A('s_add_u32 %s, %s, %s' % (s(sRing), s(sRing), s(sT0)))
    A('s_lshl_b32 %s, %s, 2' % (s(sT0), s(sWAVE)))
    A('s_add_u32 %s, %s, %s' % (s(sRing), s(sRing), s(sT0)))
    A('s_add_u32 %s, %s, %d' % (s(sRing), s(sRing), CT_BELL + 2048))
    A('s_lshl_b32 %s, %s, 8' % (s(sG1), s(sT1)))
    A('s_add_u32 %s, %s, %d' % (s(sG1), s(sG1), CT_G1 + 64 * 128))
    A('s_mov_b32 %s, %s' % (s(sC), hx(f2u(SC))))
    A('s_mov_b32 %s, %s' % (s(sC + 1), hx(f2u(SC))))
    A('s_mov_b32 %s, %s' % (s(sNC), hx(f2u(-SC))))
    lane_consts(A, 16, 17, 18)
    sparse_rowlane_mem(A, 19, 16, 17, 25)
    A('s_lshl_b32 %s, %s, 8' % (s(sT0), s(sT1)))
    A('s_lshl_b32 %s, %s, 6' % (s(sT2), s(sWAVE)))
    A('s_add_u32 %s, %s, %s' % (s(sT2), s(sT2), s(sT0)))
    vPair = vPoll
    dma_offsets(A, vPair, 19, 18, 25, 13, sT2)
    ops = []
    for m in range(2):
        for ks in range(16):
            for hb in range(2):
                for u in range(2):
                    q = 4 * hb + 2 * u
                    ops.append(dict(nt='kq'[m] in cfg.nt, srd=sSB if m else sSA, voff=vPair, soff=(64 * ks + 32 * hb + 2 * u) * 8192,
                                    reads=[(v(WK0 + ks * 8 + q, 2), 0), (('res', 2 * ks + hb, u), 512)] if m else
                                    [(a((ks * 2 + t) * 8 + q, 2), 512 * t) for t in range(2)]))

    def init(n):
        publish_xcc(A, vOne)
        for i in range(4):
            A('v_mov_b32 %s, -1' % v(20 + i))
        for sl in range(4):
            A('s_add_u32 %s, %s, %d' % (s(sT0), s(sO), sl * 32 * KB))
            A('buffer_store_dwordx4 v[20:23], %s, %s, %s offen sc1' % (v(vO), s(sWS, 4), s(sT0)))
        A('v_mov_b32 v24, 0')
        A('buffer_store_dword v24, %s, %s, %s offen sc1' % (v(vOne), s(sWS, 4), s(sFlag)))
        A('buffer_store_dword v24, %s, %s, %s offen sc1' % (v(vOne), s(sWS, 4), s(sRing)))
    weight_loader(A, ops, vB, vKMr, init, resident=32, vfin=vSamp, covered=lambda: grid_arrive(A, vT, vSamp))
    A('v_mov_b32 %s, %s' % (v(vB), v(vSamp)))
    gstamp(A, cfg, 1, vOne, True)
    A('s_lshl_b32 %s, %s, 12' % (s(sT0), s(sWAVE)))
    A('v_add_u32 %s, %s, %s' % (v(vPoll), s(sT0), v(vL16)))
    A('v_and_b32 %s, 7, v0' % v(vSamp))
    A('v_lshlrev_b32 %s, 2, %s' % (v(vSamp), v(vSamp)))
    A('s_add_u32 %s, %s, %d' % (s(sM0m), s(sT0), MS))
    A('s_lshr_b32 %s, %s, 1' % (s(sT0), s(sT0)))
    A('s_add_u32 %s, %s, %d' % (s(sM0k), s(sT0), KXL))
    A('s_add_u32 %s, %s, %s' % (s(sKF), s(sKF), s(sT0)))
    A('v_lshrrev_b32 v16, 5, v0')
    A('v_lshlrev_b32 v16, 4, v16')
    A('v_and_b32 v17, 15, v0')
    A('v_add_u32 v16, v16, v17')
    A('v_lshlrev_b32 v16, 3, v16')
    A('v_bfe_u32 v17, v0, 4, 1')
    A('v_mul_u32_u24 v17, %d, v17' % QHALF)
    A('v_add_u32 v16, v17, v16')
    A('s_lshl_b32 %s, %s, 8' % (s(sT0), s(sWAVE)))
    A('s_add_u32 %s, %s, %d' % (s(sT0), s(sT0), QT))
    A('v_add_u32 %s, %s, v16' % (v(vQTw), s(sT0)))
    A('v_lshrrev_b32 v16, 2, v0')
    A('v_lshlrev_b32 v16, 3, v16')
    A('v_and_b32 v17, 1, v0')
    A('v_mul_u32_u24 v17, %d, v17' % QHALF)
    A('v_add_u32 v16, v17, v16')
    A('v_add_u32 %s, %d, v16' % (v(vQTr), QT))
    A('v_add_u32 %s, %s, v16' % (v(vKMr), s(sT0)))
    A('v_cmp_gt_u32 vcc, 32, v0')
    A('v_mov_b32 %s, 0xff800000' % v(vBias))
    A('s_nop 0')
    A('v_cndmask_b32 %s, %s, 0, vcc' % (v(vBias), v(vBias)))
    A('v_and_b32 v16, 31, v0')
    A('v_lshlrev_b32 v16, 3, v16')
    A('s_lshl_b32 %s, %s, 9' % (s(sT0), s(sWAVE)))
    A('v_add_u32 %s, %s, v16' % (v(vVM), s(sT0)))
    for i in range(4):
        A('v_mov_b32 %s, 0x3f803f80' % v(ONES + i))
    for t in range(2):
        A('v_mov_b32 %s, 0' % v(VM + 4 * t + 2))
        A('v_mov_b32 %s, 0' % v(VM + 4 * t + 3))
    grid_wait(A, 16, 17, cfg, [(192, cfg.nchain), (8, cfg.ngemm)])
    group_local(A, 16, 17)
    A('s_barrier')
    A('s_mov_b32 %s, 0' % s(sSTEP))
    A('s_mov_b32 %s, 0' % s(sSeen))
    A('s_mov_b32 %s, -1' % s(sVer))
    A('s_mov_b32 s98, 0')

    def kv_ready(nxt):
        ok, l = A.uid('kvok'), A.uid('kvp')
        A('s_add_u32 %s, %s, %d' % (s(sT1), s(sSTEP), nxt))
        A('s_min_u32 %s, %s, 63' % (s(sT1), s(sT1)))
        A.label(l)
        A('s_cmp_lt_u32 %s, %s' % (s(sT1), s(sSeen)))
        A('s_cbranch_scc1 %s' % ok)
        A('v_and_b32 v16, 1, v0')
        A('v_bfe_u32 v17, v0, 1, 1')
        A('v_lshlrev_b32 v16, 7, v16')
        A('v_lshl_add_u32 v16, v17, 13, v16')
        A('buffer_load_dword v17, v16, %s, %s offen sc1' % (s(sWS, 4), s(sG1)))
        A('s_waitcnt vmcnt(0)')
        A('v_readlane_b32 %s, v17, 0' % s(sSeen))
        for k in range(1, 4):
            A('v_readlane_b32 %s, v17, %d' % (s(sT0), k))
            A('s_min_u32 %s, %s, %s' % (s(sSeen), s(sSeen), s(sT0)))
        spin_fail(A)
        A('s_branch %s' % l)
        A.label(ok)

    kdma = ['buffer_load_dwordx4 %s, %s, %s offen offset:%d sc1 lds' % (v(vL16), s(sWS, 4), s(sKF), 1024 * i) for i in range(2)]

    def fetch_kv():
        for i in range(2):
            A('buffer_load_dwordx4 %s, %s, %s, %s offen offset:%d sc1' % (v(VX + 4 * i, 4), v(vL16), s(sWS, 4), s(sVF), 1024 * i))
        A('s_mov_b32 m0, %s' % s(sM0m))
        A('s_barrier')
        A('v_add_u32 v16, %d, %s' % (KXL, v(vL16)))
        for i in range(8):
            A('ds_read_b128 %s, v16 offset:%d' % (v(KX + 4 * i, 4), 1024 * i))
        A('s_add_u32 %s, %s, %d' % (s(sKF), s(sKF), 256 * KB))
        A('s_add_u32 %s, %s, %d' % (s(sVF), s(sVF), 256 * KB))

    def bread(n):
        return ['ds_read_b128 %s, %s offset:%d' % (v(BR + 8 * (n % 3) + 4 * q, 4), v(vB), FR(n) * 2048 + 1024 * q) for q in range(2)]

    def aread(n):
        return 'ds_read_b128 %s, %s offset:%d' % (v(AR + 4 * (n % 4), 4), v(vA), FR(n) * 1024)

    kv_ready(1)
    A('s_mov_b32 m0, %s' % s(sM0k))
    A('s_nop 0')
    A(kdma[0]); A(kdma[1])
    A('s_waitcnt vmcnt(0)')
    fetch_kv()
    gstamp(A, cfg, 2, vOne, True)
    A('s_cmp_eq_u32 %s, 1' % s(sLOCAL))
    A('s_cbranch_scc0 L_qk_step_g')
    for tag, sfx in (('l', ''), ('g', ' sc1')):
        step = 'L_qk_step_' + tag
        A.label(step)
        stamp(A, cfg, 0)
        pre = ['v_mov_b32 %s, 0' % v(ACC + i) for i in range(16)] + bread(0) + bread(1) + bread(2)
        RB = 'buffer_store_dword v71, %s, %s, %s offen%s' % (v(vOne), s(sWS, 4), s(sRing), sfx)
        for x in pre:
            A(x)
        if cfg.profile == 1 or 12 in cfg.stamps:
            A('s_waitcnt vmcnt(0)')
            stamp(A, cfg, 12)
        A('s_add_u32 %s, %s, 1' % (s(sNext), s(sSTEP)))
        A('s_waitcnt lgkmcnt(0)')
        stamp(A, cfg, 10)
        if cfg.qsleep:
            A('s_sleep %d' % cfg.qsleep)
        dm = ['buffer_load_dwordx4 %s, %s, %s offen offset:%d sc1 lds' % (v(vPoll), s(sWS, 4), s(sMem), 1024 * i) for i in range(4)]
        wait_bell(A, vSamp, sBell, [124, 125, 126, 127][:cfg.depth], sSTEP, dm[:1])
        stamp(A, cfg, 1)
        if cfg.dmagap:
            A('s_sleep %d' % cfg.dmagap)
        for x in dm[1:]:
            A(x)
        A('s_waitcnt vmcnt(3)')
        A.label(step + '_go')
        A('s_barrier')
        stamp(A, cfg, 4)
        for n in range(4):
            A(aread(n))
        q = ['a0', 'a1', 'a2', 'a3']
        when = {n: max(n - 3, cfg.adelay[n // 4]) for n in range(4, 16)}
        for n in range(16):
            ks = FR(n)
            need = max(q.index('a%d' % n), max([i for i, x in enumerate(q) if x == 'b%d' % n] + [0]))
            A('s_waitcnt lgkmcnt(%d)' % (len(q) - 1 - need))
            Aop = v(AR + 4 * (n % 4), 4)
            mq1 = '%s %s, %s, %s, %s' % (SMF, v(ACC + 4, 4), Aop, v(BR + 8 * (n % 3), 8), v(vIdx))
            mk0 = '%s %s, %s, %s, %s' % (SMF, v(ACC + 8, 4), Aop, a(ks * 16, 8), v(vIdx))
            mk1 = '%s %s, %s, %s, %s' % (SMF, v(ACC + 12, 4), Aop, a(ks * 16 + 8, 8), v(vIdx))
            mq0 = '%s %s, %s, %s, %s' % (SMF, v(ACC, 4), Aop, v(WK0 + ks * 8, 8), v(vIdx))
            if n + 3 < 16:
                br = bread(n + 3)
                ar = [m for m in range(4, 16) if when[m] == n]
                A(mq1)
                for m in ar:
                    assert m - 4 < n
                    if m % 4 == 0:
                        A('s_waitcnt vmcnt(%d)' % (3 - m // 4 + min(2, max(0, n - cfg.kat))))
                        A('s_barrier')
                    A(aread(m))
                    q.append('a%d' % m)
                A(mq0)
                A(br[0])
                A(mk0)
                A(br[1])
                if n == cfg.kat:
                    A('s_mov_b32 m0, %s' % s(sM0k))
                A(mk1)
                if n in (cfg.kat, cfg.kat + 1):
                    A(kdma[n - cfg.kat])
                q += ['b%d' % (n + 3)] * 2
            else:
                A(mq0); A(mq1); A(mk0); A(mk1)
        stamp(A, cfg, 5)
        for base, off in ((ACC, 0), (ACC + 8, 1024)):
            for r in range(4):
                A('v_permlane32_swap_b32 %s, %s' % (v(base + r), v(base + 4 + r)))
            for r in (0, 2):
                A('v_pk_add_f32 %s, %s, %s' % (v(base + r, 2), v(base + r, 2), v(base + 4 + r, 2)))
            A('v_cvt_pk_bf16_f32 %s, %s, %s' % (v(base + 4), v(base), v(base + 1)))
            A('v_cvt_pk_bf16_f32 %s, %s, %s' % (v(base + 5), v(base + 2), v(base + 3)))
            A('ds_write_b64 %s, %s offset:%d' % (v(vQTw), v(base + 4, 2), off))
        A('v_cmp_u_f32 vcc, %s, %s' % (v(ACC), v(ACC + 1)))
        A('v_cmp_u_f32 %s, %s, %s' % (s(sNan, 2), v(ACC + 2), v(ACC + 3)))
        A('s_waitcnt lgkmcnt(0)')
        A('s_barrier')
        stamp(A, cfg, 2)
        QFR, KFR = 16, 32
        A.label(step + '_ok')
        nan_net(A, cfg, step + '_nan', step + '_ok', pre, step + '_go', vA, vPoll, sMem, AR, vT, sNan, sVer, sM0m)
        S = ACC
        M, M2 = 68, 69
        PT, PM = 48, 52
        vml = ['buffer_load_dwordx2 %s, %s, %s, %s offen offset:%d sc1' % (v(VM + 4 * t, 2), v(vVM), s(sWS, 4), s(sVM), 256 * t) for t in range(2)]
        rd = lambda m, ks: ['ds_read_b64_tr_b16 %s, %s offset:%d' % (v((QFR, KFR)[m] + 4 * ks + 2 * u, 2), v(vQTr), 1024 * m + (32 * ks + 16 * u) * 8) for u in range(2)]
        tok = lambda jt, ks: '%s %s, %s, %s, %s' % (MF, v(S + 4 * jt, 4), v(KX + 16 * jt + 4 * ks, 4), v(QFR + 4 * ks, 4), v(S + 4 * jt, 4) if ks else '0')
        mem = lambda ks: '%s %s, %s, %s, %s' % (MF, v(S + 8, 4), v(KFR + 4 * ks, 4), v(QFR + 4 * ks, 4), v(S + 8, 4) if ks else '0')
        for x in rd(0, 0) + rd(0, 1) + rd(1, 0):
            A(x)
        A('s_or_b64 vcc, vcc, %s' % s(sNan, 2))
        A('s_cmp_eq_u32 %s, %d' % (s(sSTEP), cfg.nsteps - 1))
        seq = [(4, tok(0, 0), rd(0, 2)), (None, tok(1, 0), rd(0, 3)), (6, tok(0, 1), rd(1, 1)), (None, tok(1, 1), rd(1, 2)),
               (8, mem(0), rd(1, 3)), (8, tok(0, 2), ['s_cbranch_vccnz %s_nan' % step]), (None, tok(1, 2), ['s_cbranch_scc1 L_qk_last']),
               (4, mem(1), ['v_mov_b32 %s, 0' % v(PM + 2), 'v_mov_b32 %s, 0' % v(PM + 3)]),
               (None, tok(0, 3), ['v_mov_b32 v71, %s' % s(sNext)]), (2, tok(1, 3), []), (None, mem(2), [vml[0]]), (0, mem(3), [vml[1]])]
        for w, m, fill in seq:
            if w is not None:
                A('s_waitcnt lgkmcnt(%d)' % w)
            A(m)
            for x in fill:
                A(x)
        stamp(A, cfg, 9)
        A('v_max3_f32 %s, %s, %s, %s' % (v(M), v(S), v(S + 1), v(S + 2)))
        A('v_max3_f32 %s, %s, %s, %s' % (v(M), v(M), v(S + 3), v(S + 4)))
        A('v_max3_f32 %s, %s, %s, %s' % (v(M), v(M), v(S + 5), v(S + 6)))
        A('v_max_f32 %s, %s, %s' % (v(M), v(M), v(S + 7)))
        A('s_nop 2')
        A('v_max3_f32 %s, %s, %s, %s' % (v(M), v(M), v(S + 8), v(S + 9)))
        A('v_max3_f32 %s, %s, %s, %s' % (v(M2), v(M), v(S + 10), v(S + 11)))
        A('v_max3_f32 %s, %s, %s, %s' % (v(M), v(M), v(S + 10), v(S + 11)))
        A('s_nop 1')
        A('v_permlane32_swap_b32 %s, %s' % (v(M), v(M2)))
        A('v_max_f32 %s, %s, %s' % (v(70), v(M), v(M2)))
        A('v_max_f32 %s, %s, %s' % (v(M), v(M), v(M2)))
        A('s_nop 1')
        A('v_permlane16_swap_b32 %s, %s' % (v(M), v(70)))
        A('v_max_f32 %s, %s, %s' % (v(M), v(M), v(70)))
        A('v_mul_f32 %s, %s, %s' % (v(M), s(sNC), v(M)))
        for i in range(0, 8, 2):
            A('v_pk_fma_f32 %s, %s, %s, %s op_sel_hi:[1,1,0]' % (v(S + i, 2), v(S + i, 2), s(sC, 2), v(M, 2)))
        A('v_add_f32 %s, %s, %s' % (v(70), v(M), v(vBias)))
        if cfg.ringat == 1:
            A(RB)
        for i in range(8):
            A('v_exp_f32 %s, %s' % (v(S + i), v(S + i)))
            if i in (2, 4, 6):
                A('v_cvt_pk_bf16_f32 %s, %s, %s' % (v(PT + i // 2 - 1), v(S + i - 2), v(S + i - 1)))
        A('v_pk_fma_f32 %s, %s, %s, %s op_sel_hi:[1,1,0]' % (v(S + 8, 2), v(S + 8, 2), s(sC, 2), v(70, 2)))
        A('v_cvt_pk_bf16_f32 %s, %s, %s' % (v(PT + 3), v(S + 6), v(S + 7)))
        A('v_pk_fma_f32 %s, %s, %s, %s op_sel_hi:[1,1,0]' % (v(S + 10, 2), v(S + 10, 2), s(sC, 2), v(70, 2)))
        A('v_exp_f32 %s, %s' % (v(S + 8), v(S + 8)))
        OA = 24
        A('%s %s, %s, %s, 0' % (MF, v(LS, 4), v(ONES, 4), v(PT, 4)))
        if cfg.ringat == 5:
            A(RB)
        A('v_exp_f32 %s, %s' % (v(S + 9), v(S + 9)))
        A('%s %s, %s, %s, 0' % (MF, v(OA, 4), v(VX, 4), v(PT, 4)))
        A('v_exp_f32 %s, %s' % (v(S + 10), v(S + 10)))
        A('%s %s, %s, %s, 0' % (MF, v(OA + 4, 4), v(VX + 4, 4), v(PT, 4)))
        if cfg.ringat == 4:
            A(RB)
        A('v_exp_f32 %s, %s' % (v(S + 11), v(S + 11)))
        l, d = A.uid('vm'), A.uid('vmd')
        stamp(A, cfg, 7)
        A('s_waitcnt vmcnt(%d)' % (0 if cfg.ringat in (2, 3) else 1))
        A.label(l)
        A('v_max_u32 %s, %s, %s' % (v(vT), v(VM), v(VM + 4)))
        A('v_cmp_eq_u32 vcc, -1, %s' % v(vT))
        A('v_cvt_pk_bf16_f32 %s, %s, %s' % (v(PM), v(S + 8), v(S + 9)))
        A('v_cvt_pk_bf16_f32 %s, %s, %s' % (v(PM + 1), v(S + 10), v(S + 11)))
        A('s_nop 0')
        A('s_cbranch_vccnz %s' % d)
        A.ool(d + ':')
        for t in range(2):
            A.ool('buffer_load_dwordx2 %s, %s, %s, %s offen offset:%d sc1' % (v(VM + 4 * t, 2), v(vVM), s(sWS, 4), s(sVM), 256 * t))
        A.ool('s_sub_u32 %s, %s, 1\ns_cbranch_scc1 L_end\ns_waitcnt vmcnt(0)\ns_branch %s' % (s(sBUD), s(sBUD), l))
        stamp(A, cfg, 8)
        A('%s %s, %s, %s, %s' % (MF, v(LS, 4), v(ONES, 4), v(PM, 4), v(LS, 4)))
        for t in range(2):
            A('%s %s, %s, %s, %s' % (MF, v(OA + 4 * t, 4), v(VM + 4 * t, 4), v(PM, 4), v(OA + 4 * t, 4)))
        A(RB if cfg.ringat == 2 else 's_nop 0')
        A('v_rcp_f32 %s, %s' % (v(M), v(LS)))
        A('s_nop 1')
        for i in range(0, 4, 2):
            A('v_pk_mul_f32 %s, %s, %s op_sel_hi:[1,0]' % (v(OA + i, 2), v(OA + i, 2), v(M, 2)))
        A('v_cvt_pk_bf16_f32 %s, %s, %s' % (v(OA), v(OA), v(OA + 1)))
        A('v_cvt_pk_bf16_f32 %s, %s, %s' % (v(OA + 1), v(OA + 2), v(OA + 3)))
        for i in range(4, 8, 2):
            A('v_pk_mul_f32 %s, %s, %s op_sel_hi:[1,0]' % (v(OA + i, 2), v(OA + i, 2), v(M, 2)))
        A('v_min_u32 %s, -2, %s' % (v(OA), v(OA)))
        A('v_cvt_pk_bf16_f32 %s, %s, %s' % (v(OA + 2), v(OA + 4), v(OA + 5)))
        A('v_cvt_pk_bf16_f32 %s, %s, %s' % (v(OA + 3), v(OA + 6), v(OA + 7)))
        A('buffer_store_dwordx4 %s, %s, %s, %s offen%s' % (v(OA, 4), v(vO), s(sWS, 4), s(sO), sfx))
        if cfg.ringat == 3:
            A(RB)
        stamp(A, cfg, 3)
        for u in range(2):
            A('ds_read_b64_tr_b16 %s, %s offset:%d' % (v(32 + 2 * u, 2), v(vKMr), 1024 + 128 * u))
        for i in range(4):
            A('v_mov_b32 %s, -1' % v(36 + i))
        ring(A, sT0, sO, -1, 32 * KB)
        A('buffer_store_dwordx4 v[36:39], %s, %s, %s offen%s' % (v(vO), s(sWS, 4), s(sT0), sfx))
        A('v_mov_b32 %s, %s' % (v(40), s(sSTEP)))
        A('buffer_store_dword v40, %s, %s, %s offen sc1' % (v(vOne), s(sWS, 4), s(sFlag)))
        A('s_waitcnt lgkmcnt(0)')
        if not cfg.nokm:
            A('buffer_store_dwordx4 v[32:35], %s, %s, %s offen sc1' % (v(vKMo), s(sWS, 4), s(sKM)))
        A('s_add_u32 %s, %s, %d' % (s(sKM), s(sKM), 64 * KB))
        fetch_kv()
        kv_ready(2)
        stamp_flush(A, cfg, 15, vT, vOne)
        for reg, stepb in ((sO, 32 * KB), (sMem, 16 * KB), (sVM, 2 * KB)):
            ring_adv(A, reg, stepb)
        A('s_add_u32 %s, %s, 1' % (s(sSTEP), s(sSTEP)))
        A('s_branch %s' % step)
        A.flush_tail()
    A.label('L_qk_last')
    for u in range(2):
        A('ds_read_b64_tr_b16 %s, %s offset:%d' % (v(32 + 2 * u, 2), v(vKMr), 1024 + 128 * u))
    A('s_waitcnt lgkmcnt(0)')
    A('buffer_store_dwordx4 v[32:35], %s, %s, %s offen sc1' % (v(vKMo), s(sWS, 4), s(sKM)))
    A('s_waitcnt vmcnt(0)')
    A('s_barrier')
    gstamp(A, cfg, 3, vOne, True)
    A('v_mov_b32 v40, %d' % cfg.nsteps)
    A('buffer_store_dword v40, %s, %s, %s offen sc1' % (v(vOne), s(sWS, 4), s(sFlag)))
    A('s_branch L_end')


def gen_vo(A, cfg):
    vT = 1; vA = 2; vB = 3; vPoll = 4; vSamp = 5; vRw = 6; vRr = 7; vIdx = 8; vT16 = 9; vT8 = 10
    vVM = 11; vOp = 12; vOne = 13; vSp = 14; vRw2 = 15
    ACC, AR, SW = 16, 48, 64
    OP = 32
    WV0 = 128
    WV1 = 192
    sMem, sO, sVM, sVMG, sPart, sRem, sFlag, sO2, sMemW, sBell, sR0, sR1, sR2, sSel = range(50, 64)
    sNan, sVer, sNext, sRing, sBellO = 64, 66, 67, 26 + 1, 96
    A.label('L_vo')
    A('s_lshl_b32 %s, %s, 4' % (s(sT1), s(sGRP)))
    A('s_add_u32 %s, %s, %s' % (s(sT1), s(sT1), s(sJ)))
    common_chain_init(A, vB, vSp, vA, vOne, vIdx)
    gstamp(A, cfg, 0, vOne, True)
    srd(A, sSA, sWV, 8 * MB)
    srd(A, sSB, sWO, 8 * MB)
    A('s_and_b32 %s, %s, 1' % (s(sT0), s(sWAVE)))
    A('s_lshl_b32 %s, %s, 6' % (s(sT0), s(sT0)))
    A('v_add_u32 v16, %s, v0' % s(sT0))
    A('v_lshlrev_b32 %s, 4, v16' % v(vT16))
    A('v_lshlrev_b32 %s, 3, v16' % v(vT8))
    A('s_lshl_b32 %s, %s, 16' % (s(sMem), s(sGRP)))
    A('s_add_u32 %s, %s, %d' % (s(sMem), s(sMem), MEMR))
    A('s_lshl_b32 %s, %s, 10' % (s(sT0), s(sJ)))
    A('s_add_u32 %s, %s, %s' % (s(sMemW), s(sMem), s(sT0)))
    A('s_lshl_b32 %s, %s, 17' % (s(sO), s(sGRP)))
    A('s_add_u32 %s, %s, %d' % (s(sO), s(sO), OR_))
    A('s_lshl_b32 %s, %s, 13' % (s(sVM), s(sT1)))
    A('s_add_u32 %s, %s, %d' % (s(sVM), s(sVM), VMR))
    A('s_lshl_b32 %s, %s, 11' % (s(sVMG), s(sT1)))
    A('s_add_u32 %s, %s, %s' % (s(sVMG), s(sVMG), hx(VMG)))
    A('s_lshl_b32 %s, %s, 16' % (s(sRem), s(sT1)))
    A('s_xor_b32 %s, %s, %d' % (s(sPart), s(sRem), 16 << 16))
    A('s_add_u32 %s, %s, %s' % (s(sPart), s(sPart), hx(PART)))
    A('s_add_u32 %s, %s, %s' % (s(sRem), s(sRem), hx(PART)))
    A('s_lshl_b32 %s, %s, 7' % (s(sFlag), s(sT1)))
    A('s_add_u32 %s, %s, %d' % (s(sFlag), s(sFlag), CT_VM))
    A('s_and_b32 %s, %s, 1' % (s(sSel), s(sWAVE)))
    A('s_lshl_b32 %s, %s, 13' % (s(sSel), s(sSel)))
    A('s_lshr_b32 %s, %s, 1' % (s(sT0), s(sWAVE)))
    A('s_lshl_b32 %s, %s, 10' % (s(sT0), s(sT0)))
    A('s_add_u32 %s, %s, %s' % (s(sSel), s(sSel), s(sT0)))
    A('s_add_u32 %s, %s, %s' % (s(sSel), s(sSel), s(sRem)))
    A('s_add_u32 %s, %s, %d' % (s(sSel), s(sSel), 32 * KB))
    A('s_lshl_b32 %s, %s, 10' % (s(sRing), s(sGRP)))
    A('s_lshl_b32 %s, %s, 8' % (s(sBell), s(sWAVE)))
    A('s_add_u32 %s, %s, %s' % (s(sBell), s(sBell), s(sRing)))
    A('s_add_u32 %s, %s, %d' % (s(sBell), s(sBell), CT_BELL))
    A('s_add_u32 %s, %s, 2048' % (s(sBellO), s(sBell)))
    A('s_lshr_b32 %s, %s, 2' % (s(sT0), s(sJ)))
    A('s_lshl_b32 %s, %s, 8' % (s(sT0), s(sT0)))
    A('s_add_u32 %s, %s, %s' % (s(sRing), s(sRing), s(sT0)))
    A('s_and_b32 %s, %s, 3' % (s(sT0), s(sJ)))
    A('s_lshl_b32 %s, %s, 3' % (s(sT0), s(sT0)))
    A('s_add_u32 %s, %s, %s' % (s(sRing), s(sRing), s(sT0)))
    A('s_and_b32 %s, %s, 1' % (s(sT0), s(sWAVE)))
    A('s_lshl_b32 %s, %s, 2' % (s(sT0), s(sT0)))
    A('s_add_u32 %s, %s, %s' % (s(sRing), s(sRing), s(sT0)))
    A('s_add_u32 %s, %s, %d' % (s(sRing), s(sRing), CT_BELL))
    A('s_lshl_b32 %s, %s, 9' % (s(sT0), s(sWAVE)))
    A('v_lshlrev_b32 %s, 3, v0' % v(vVM))
    A('v_add_u32 %s, %s, %s' % (v(vVM), s(sT0), v(vVM)))
    A('v_lshrrev_b32 v17, 4, v16')
    A('v_lshlrev_b32 v17, 3, v17')
    A('v_and_b32 v18, 1, v0')
    A('v_lshl_add_u32 v17, v18, 2, v17')
    A('v_bfe_u32 v18, v0, 1, 3')
    A('v_mul_u32_u24 v19, 320, v18')
    A('v_lshl_add_u32 v19, v17, 2, v19')
    A('v_add_u32 %s, %d, v19' % (v(vRr), RED))
    A('v_lshlrev_b32 v18, 11, v18')
    A('v_lshl_add_u32 v17, v17, 1, v18')
    A('s_lshl_b32 %s, %s, 7' % (s(sT0), s(sJ)))
    A('v_add_u32 v17, %s, v17' % s(sT0))
    A('global_load_dwordx2 v[28:29], v17, %s' % s(sMEM0, 2))
    lane_consts(A, 16, 17, 24)
    sparse_rowlane_mem(A, 22, 16, 17, 25)
    A('s_lshl_b32 %s, %s, 8' % (s(sT0), s(sT1)))
    A('s_lshl_b32 %s, %s, 6' % (s(sT2), s(sWAVE)))
    A('s_add_u32 %s, %s, %s' % (s(sT2), s(sT2), s(sT0)))
    vPair, vPairO = vPoll, vOp
    dma_offsets(A, vPair, 22, 24, 25, 13, sT2)
    sparse_rowlane_o(A, 22, 16, 17, 25)
    A('s_lshl_b32 %s, %s, 22' % (s(sT0), s(sGRP)))
    A('s_lshl_b32 %s, %s, 20' % (s(sT2), s(sWAVE)))
    A('s_add_u32 %s, %s, %s' % (s(sT0), s(sT0), s(sT2)))
    A('s_lshl_b32 %s, %s, 7' % (s(sT2), s(sJ)))
    A('s_add_u32 %s, %s, %s' % (s(sT2), s(sT2), s(sT0)))
    dma_offsets(A, vPairO, 22, 24, 25, 11, sT2)
    ops = []
    for ks in range(16):
        for hb in range(2):
            for u in range(2):
                q = 4 * hb + 2 * u
                ops.append(dict(nt='v' in cfg.nt, srd=sSA, voff=vPair, soff=(64 * ks + 32 * hb + 2 * u) * 8192,
                                reads=[(v(WV0 + ks * 8 + q, 2), 0),
                                       (a(WV1 + ks * 8 + q, 2) if ks < 8 else ('res', 2 * (ks - 8) + hb, u), 512)]))
    lo, hi = [], []
    for ks in range(8):
        for hb in range(2):
            for u in range(2):
                q, so = 4 * hb + 2 * u, (64 * ks + 8 * hb + 2 * u) * 2048
                lo.append(dict(nt='o' in cfg.nt, srd=sSB, voff=vPairO, soff=so, reads=[(a((ks * 3 + t) * 8 + q, 2), 512 * t) for t in range(2)]))
                hi.append(dict(nt='o' in cfg.nt, srd=sSB, voff=vPairO, soff=so + 64, reads=[(a((ks * 3 + 2) * 8 + q, 2), 0), (('res', 16 + 2 * ks + hb, u), 512)]))
    for i in range(0, 32, 8):
        ops += lo[i:i + 8] + hi[i:i + 8]

    def init(n):
        for i in range(4):
            A('v_mov_b32 %s, -1' % v(20 + i))
        for sl in range(1, 4):
            A('s_add_u32 %s, %s, %d' % (s(sT0), s(sMemW), sl * 16 * KB))
            A('buffer_store_dwordx2 v[20:21], %s, %s, %s offen sc1' % (v(vT8), s(sWS, 4), s(sT0)))
        for sl in range(4):
            A('s_add_u32 %s, %s, %d' % (s(sT0), s(sVM), sl * 2 * KB))
            A('buffer_store_dwordx2 v[20:21], %s, %s, %s offen sc1' % (v(vVM), s(sWS, 4), s(sT0)))
        for k in range(8 * cfg.nrep):
            A('s_add_u32 %s, %s, %d' % (s(sT0), s(sRem), k * 2 * KB))
            A('buffer_store_dwordx4 v[20:23], %s, %s, %s offen sc1' % (v(vT16), s(sWS, 4), s(sT0)))
        A('v_mov_b32 v25, 0')
        A('buffer_store_dword v25, %s, %s, %s offen sc1' % (v(vOne), s(sWS, 4), s(sFlag)))
        A('buffer_store_dword v25, %s, %s, %s offen sc1' % (v(vOne), s(sWS, 4), s(sRing)))
        A('s_waitcnt vmcnt(%d)' % min(63, n + 3 + 4 + 8 * cfg.nrep + 2))
        A('v_min_u32 v28, -2, v28')
        A('v_min_u32 v29, -2, v29')
        A('buffer_store_dwordx2 v[28:29], %s, %s, %s offen sc1' % (v(vT8), s(sWS, 4), s(sMemW)))
        A('s_add_u32 %s, %s, %d' % (s(sMemW), s(sMemW), 16 * KB))
        publish_xcc(A, vOne)
    weight_loader(A, ops, vB, vSp, init, resident=32, vfin=vSamp, covered=lambda: grid_arrive(A, vT, vSamp))
    A('v_mov_b32 %s, %s' % (v(vB), v(vSamp)))
    gstamp(A, cfg, 1, vOne, True)
    A('v_lshlrev_b32 v16, 4, v0')
    A('s_lshl_b32 %s, %s, 12' % (s(sT0), s(sWAVE)))
    A('v_add_u32 %s, %s, v16' % (v(vPoll), s(sT0)))
    A('v_and_b32 %s, 7, v0' % v(vSamp))
    A('v_lshlrev_b32 %s, 2, %s' % (v(vSamp), v(vSamp)))
    A('v_and_b32 %s, 15, v0' % v(vSp))
    A('v_lshlrev_b32 %s, 2, %s' % (v(vSp), v(vSp)))
    A('s_add_u32 m0, %s, %d' % (s(sT0), MS))
    A('s_lshl_b32 %s, %s, 13' % (s(sT0), s(sWAVE)))
    A('v_add_u32 %s, %s, v16' % (v(vOp), s(sT0)))
    A('v_lshrrev_b32 v16, 5, v0')
    A('v_lshlrev_b32 v16, 4, v16')
    A('v_and_b32 v17, 15, v0')
    A('v_add_u32 v16, v16, v17')
    A('v_lshlrev_b32 v16, 2, v16')
    A('v_bfe_u32 v17, v0, 4, 1')
    A('v_mul_u32_u24 v17, 1280, v17')
    A('v_add_u32 v16, v17, v16')
    A('s_mul_i32 %s, %s, 2560' % (s(sT0), s(sWAVE)))
    A('s_add_u32 %s, %s, %d' % (s(sT0), s(sT0), RED))
    A('v_add_u32 %s, %s, v16' % (v(vRw), s(sT0)))
    A('v_add_u32 %s, 128, %s' % (v(vRw2), v(vRw)))
    grid_wait(A, 16, 18, cfg, [(192, cfg.nchain)])
    group_local(A, 16, 18)
    A('s_barrier')
    A('s_mov_b32 %s, 0' % s(sSTEP))
    A('s_mov_b32 %s, -1' % s(sVer))
    A('s_mov_b32 s98, 0')
    A('s_mov_b32 s97, 0')

    others = ((sO, 32 * KB), (sMemW, 16 * KB), (sVM, 2 * KB), (sPart, 2 * KB), (sRem, 2 * KB))
    sMask = 99

    def swap_in(base):
        for k in range(16):
            A('ds_read_b128 %s, %s offset:%d' % (v(SW + 4 * k, 4), v(vB), base + 1024 * k))

    def aread(ks):
        return 'ds_read_b128 %s, %s offset:%d' % (v(AR + 4 * (ks % 4), 4), v(vA), ks * 1024)

    def part_addr(base, hi, k):
        return (base if k < 1 else hi + k - 1), 0

    for reg, stepb in others:
        ring(A, sT0, reg, -1, stepb)
        A('s_mov_b32 %s, %s' % (s(reg), s(sT0)))
    A('s_lshr_b32 %s, %s, 1' % (s(sMask), s(sWAVE)))
    A('s_lshl_b32 %s, %s, 30' % (s(sMask), s(sMask)))
    gstamp(A, cfg, 2, vOne, True)
    A('s_cmp_eq_u32 %s, 1' % s(sLOCAL))
    A('s_cbranch_scc0 L_vo_step_g')
    for tag, sfx in (('l', ''), ('g', ' sc1')):
        step = 'L_vo_step_' + tag
        A.label(step)
        stamp(A, cfg, 0)
        wait_bell(A, vSamp, sBell, [32, 33, 34, 35][:cfg.vdepth], sSTEP)
        dma_mem(A, vPoll, sMem)
        stamp(A, cfg, 1)
        swap_in(0)
        for i in range(8):
            A('v_mov_b32 %s, 0' % v(ACC + i))
        for i in range(4):
            A('v_mov_b32 %s, -1' % v(ACC + 8 + i))
        A('v_mov_b32 %s, %s' % (v(ACC + 12), s(sSTEP)))
        A('v_or_b32 %s, %s, %s' % (v(ACC + 13), s(sMask), v(vT16)))
        A('s_mov_b32 %s, %s' % (s(sR1), s(sVM)))
        A('s_mov_b32 %s, %s' % (s(sR2), s(sRem)))
        for reg, stepb in others:
            ring_adv(A, reg, stepb)
        ring(A, sR0, sMemW, -2, 16 * KB)
        A('s_add_u32 %s, %s, 1' % (s(sNext), s(sSTEP)))
        A('s_waitcnt vmcnt(0) lgkmcnt(0)')
        A.label(step + '_go')
        A('s_barrier')
        for ks in range(4):
            A(aread(ks))
        house = ['buffer_store_dwordx2 %s, %s, %s, %s offen%s' % (v(ACC + 8, 2), v(vT8), s(sWS, 4), s(sR0), sfx),
                 'buffer_store_dwordx2 %s, %s, %s, %s offen%s' % (v(ACC + 8, 2), v(vVM), s(sWS, 4), s(sR1), sfx),
                 'buffer_store_dword %s, %s, %s, %s offen sc1' % (v(ACC + 12), v(vOne), s(sWS, 4), s(sFlag))]
        for k in range(cfg.nrep):
            house.append('s_add_u32 %s, %s, %d' % (s(sT1), s(sR2), 16 * KB * k))
            house.append('buffer_store_dwordx4 %s, %s, %s, %s offen sc1' % (v(ACC + 8, 4), v(ACC + 13), s(sWS, 4), s(sT1)))
        for ks in range(16):
            A('s_waitcnt lgkmcnt(%d)' % min(3, 15 - ks))
            Aop = v(AR + 4 * (ks % 4), 4)
            A('%s %s, %s, %s, %s' % (SMF, v(ACC, 4), Aop, v(WV0 + ks * 8, 8), v(vIdx)))
            if house:
                A(house.pop(0))
            A('%s %s, %s, %s, %s' % (SMF, v(ACC + 4, 4), Aop, a(WV1 + ks * 8, 8) if ks < 8 else v(SW + (ks - 8) * 8, 8), v(vIdx)))
            if ks + 4 < 16:
                A(aread(ks + 4))
        assert not house
        A('s_nop 7')
        for r in range(4):
            A('v_permlane32_swap_b32 %s, %s' % (v(ACC + r), v(ACC + 4 + r)))
        for r in (0, 2):
            A('v_pk_add_f32 %s, %s, %s' % (v(ACC + r, 2), v(ACC + r, 2), v(ACC + 4 + r, 2)))
        A('v_cmp_u_f32 vcc, %s, %s' % (v(ACC), v(ACC + 1)))
        A('v_cmp_u_f32 %s, %s, %s' % (s(sNan, 2), v(ACC + 2), v(ACC + 3)))
        A('v_cvt_pk_bf16_f32 %s, %s, %s' % (v(ACC + 4), v(ACC), v(ACC + 1)))
        A('v_cvt_pk_bf16_f32 %s, %s, %s' % (v(ACC + 5), v(ACC + 2), v(ACC + 3)))
        A('v_min_u32 %s, -2, %s' % (v(ACC + 4), v(ACC + 4)))
        A('s_or_b64 vcc, vcc, %s' % s(sNan, 2))
        A('s_cbranch_vccnz %s_nan' % step)
        A.label(step + '_ok')
        nan_net(A, cfg, step + '_nan', step + '_ok', ['v_mov_b32 %s, 0' % v(ACC + i) for i in range(8)], step + '_go', vA, vPoll, sMem, AR, vT, sNan, sVer)
        A('buffer_store_dwordx2 %s, %s, %s, %s offen%s' % (v(ACC + 4, 2), v(vVM), s(sWS, 4), s(sVM), sfx))
        if not cfg.nokm:
            A('buffer_store_dwordx2 %s, %s, %s, %s offen sc1' % (v(ACC + 4, 2), v(vVM), s(sWS, 4), s(sVMG)))
        A('s_add_u32 %s, %s, %d' % (s(sVMG), s(sVMG), 64 * KB))
        stamp(A, cfg, 2)
        A('s_cmp_eq_u32 %s, %d' % (s(sSTEP), cfg.nsteps - 1))
        A('s_cbranch_scc1 L_vo_last')
        swap_in(16 * KB)
        for i in range(16):
            A('v_mov_b32 %s, 0' % v(ACC + i))
        A('s_add_u32 %s, %s, 4096' % (s(sO2), s(sO)))
        for k in range(1, cfg.nrep):
            A('s_add_u32 %s, %s, %d' % (s(sR0 + k - 1), s(sPart), 16 * KB * k))

        def oload(p):
            return 'buffer_load_dwordx4 %s, %s, %s, %s offen offset:%d sc1' % (v(OP + 4 * p, 4), v(vOp), s(sWS, 4), s(sO if p < 4 else sO2), 1024 * (p & 3))

        def omf(p, t):
            B = a((p * 3 + t) * 8, 8) if t < 3 else v(SW + p * 8, 8)
            return '%s %s, %s, %s, %s' % (SMF, v(ACC + 4 * t, 4), v(OP + 4 * p, 4), B, v(vIdx))
        base = A.uid('op')
        if cfg.near:
            A('s_cmp_lt_u32 %s, 6' % s(sSTEP))
            A('s_cbranch_scc1 %s_early' % base)
            A.label(base + '_cal')
            main, A.lines = A.lines, []
            A.label(base + '_early')
            A('s_cmp_eq_u32 %s, 2' % s(sSTEP))
            A('s_cbranch_scc1 %s_probe' % base)
            A('s_cmp_eq_u32 %s, 5' % s(sSTEP))
            A('s_cbranch_scc1 %s_pick' % base)
            A('s_cmp_lg_u32 %s, 1' % s(sSTEP))
            A('s_cbranch_scc1 %s_cal' % base)
            A('v_and_b32 v32, 0x3ff, %s' % v(vT16))
            A('buffer_store_dwordx4 %s, v32, %s, %s offen sc1' % (v(ACC, 4), s(sWS, 4), s(sSel)))
            A('s_branch %s_cal' % base)
            A.label(base + '_probe')
            A('s_waitcnt vmcnt(0) lgkmcnt(0)')
            A('s_mov_b32 s64, -1')
            for rep in range(3):
                A('s_memtime s[68:69]')
                A('s_waitcnt lgkmcnt(0)')
                A('s_mov_b32 s65, s68')
                A('buffer_load_dword v32, %s, %s, %s offen offset:%d sc1' % (v(vOne), s(sWS, 4), s(sSel), 256 * rep))
                A('s_waitcnt vmcnt(0)')
                A('s_memtime s[68:69]')
                A('s_waitcnt lgkmcnt(0)')
                A('s_sub_u32 s68, s68, s65')
                A('s_min_u32 s64, s64, s68')
            A('s_lshl_b32 %s, %s, 2' % (s(sT0), s(sWAVE)))
            A('v_mov_b32 v33, %d' % RED)
            A('v_add_u32 v34, %s, v33' % s(sT0))
            A('v_mov_b32 v32, s64')
            A('ds_write_b32 v34, v32')
            A('s_waitcnt lgkmcnt(0)')
            A('s_barrier')
            A('ds_read_b128 v[36:39], v33')
            A('s_waitcnt lgkmcnt(0)')
            A('s_barrier')
            A('v_min_u32 v36, v36, v38')
            A('v_min_u32 v37, v37, v39')
            A('v_cmp_lt_u32 vcc, v37, v36')
            A('s_lshl_b32 %s, %s, 3' % (s(sT0), s(sGRP)))
            A('s_lshl_b32 %s, 0x100, %s' % (s(sT0), s(sT0)))
            A('s_cmp_eq_u64 vcc, 0')
            A('s_cselect_b32 %s, 0, %s' % (s(sT0), s(sT0)))
            A('s_add_u32 %s, %s, 1' % (s(sT0), s(sT0)))
            A('s_cmp_lg_u32 %s, 0' % s(sWAVE))
            A('s_cbranch_scc1 %s_cal' % base)
            A('s_mov_b64 exec, 1')
            A('v_mov_b32 v32, 0')
            A('v_mov_b32 v33, %s' % s(sT0))
            A('global_atomic_add v32, v33, %s offset:196 sc1' % s(sDBG, 2))
            A('s_mov_b64 exec, -1')
            A('s_branch %s_cal' % base)
            A.label(base + '_pick')
            A('v_mov_b32 v32, 0')
            A('global_load_dword v33, v32, %s offset:196 sc1' % s(sDBG, 2))
            spin_fail(A)
            A('s_waitcnt vmcnt(0)')
            A('v_readfirstlane_b32 %s, v33' % s(sT1))
            A('s_and_b32 %s, %s, 0xff' % (s(sT0), s(sT1)))
            A('s_cmp_lt_u32 %s, 32' % s(sT0))
            A('s_cbranch_scc1 %s_pick' % base)
            for reg, flip in ((sRem, 0), (sPart, 1)):
                A('s_xor_b32 %s, %s, %d' % (s(sT0), s(sGRP), flip))
                A('s_lshl_b32 %s, %s, 3' % (s(sT0), s(sT0)))
                A('s_add_u32 %s, %s, 8' % (s(sT0), s(sT0)))
                A('s_lshr_b32 %s, %s, %s' % (s(sT0), s(sT1), s(sT0)))
                A('s_and_b32 %s, %s, 0xff' % (s(sT0), s(sT0)))
                A('s_cmp_gt_u32 %s, 8' % s(sT0))
                A('s_cselect_b32 %s, %d, 0' % (s(sT0), 8 * KB))
                A('s_add_u32 %s, %s, %s' % (s(reg), s(reg), s(sT0)))
            A('s_branch %s_cal' % base)
            A.tail += A.lines
            A.lines = main
        A('v_mov_b32 v0, %s' % s(sNext))
        A('s_waitcnt lgkmcnt(0)')
        if cfg.osleep:
            A('s_sleep %d' % cfg.osleep)
        wait_bell(A, vSp, sBellO, [OP, OP + 1, OP + 2, OP + 3][:cfg.odepth], sNext, [oload(0)])
        NU = cfg.oup
        for p in range(1, NU):
            A(oload(p))
        stamp(A, cfg, 9)
        for p in range(-1, 8):
            issued = min(8, NU + p + 1)
            if p == 6 and cfg.otail:
                A.label('%s_c6' % base)
                A(omf(6, 0)); A(omf(6, 1))
                A('s_waitcnt vmcnt(0)')
                A('v_cmp_eq_u32 vcc, -1, %s' % v(OP + 28))
                A(omf(6, 2))
                A('s_cbranch_vccnz %s_f7' % base)
                A.ool('%s_f7:' % base)
                A.ool(oload(7))
                A.ool('s_sub_u32 %s, %s, 1\ns_cbranch_scc1 L_end' % (s(sBUD), s(sBUD)))
                A.ool('s_waitcnt vmcnt(0)')
                A.ool('v_cmp_eq_u32 vcc, -1, %s' % v(OP + 28))
                A.ool('s_cbranch_vccnz %s_f7' % base)
                A.ool('s_branch %s_c7' % base)
                A.label('%s_c7' % base)
                A(omf(7, 0)); A(omf(7, 1)); A(omf(6, 3)); A(omf(7, 2))
                A('v_permlane32_swap_b32 %s, %s' % (v(ACC), v(ACC + 4)))
                A(omf(7, 3))
                break
            if p >= 0:
                A.label('%s_c%d' % (base, p))
                A(omf(p, 0))
                if NU + p < 8:
                    A(oload(NU + p))
                A(omf(p, 1))
            if p < 7:
                A('s_waitcnt vmcnt(%d)' % (issued - p - 2))
                A('v_cmp_eq_u32 vcc, -1, %s' % v(OP + 4 * (p + 1)))
            if p >= 0:
                A(omf(p, 2))
                A(omf(p, 3))
            if p < 7:
                fix = '%s_f%d' % (base, p + 1)
                A('s_cbranch_vccnz %s' % fix)
                A.ool(fix + ':')
                if cfg.profile:
                    A.ool('s_add_u32 s97, s97, 1')
                for k in range(p + 1, issued):
                    A.ool(oload(k))
                A.ool('s_sub_u32 %s, %s, 1\ns_cbranch_scc1 L_end' % (s(sBUD), s(sBUD)))
                A.ool('s_waitcnt vmcnt(%d)' % (issued - p - 2))
                A.ool('v_cmp_eq_u32 vcc, -1, %s' % v(OP + 4 * (p + 1)))
                A.ool('s_cbranch_vccnz %s' % fix)
                A.ool('s_branch %s_c%d' % (base, p + 1))
        A.label('%s_done' % base)
        stamp(A, cfg, 3)
        for tp in range(2):
            for r in range(1 if cfg.otail and tp == 0 else 0, 4):
                A('v_permlane32_swap_b32 %s, %s' % (v(ACC + 8 * tp + r), v(ACC + 8 * tp + 4 + r)))
            for r in (0, 2):
                A('v_pk_add_f32 %s, %s, %s' % (v(ACC + 8 * tp + r, 2), v(ACC + 8 * tp + r, 2), v(ACC + 8 * tp + 4 + r, 2)))
            for r in (0, 2):
                A('ds_write2_b32 %s, %s, %s offset0:%d offset1:%d' % (v(vRw2 if tp else vRw), v(ACC + 8 * tp + r), v(ACC + 8 * tp + r + 1), 80 * r, 80 * r + 80))
        A('s_cmp_ge_u32 %s, 2' % s(sWAVE))
        A('s_waitcnt lgkmcnt(0)')
        A('s_barrier')
        stamp(A, cfg, 7)
        for p in range(4):
            A('ds_read_b128 %s, %s offset:%d' % (v(ACC + 4 * p, 4), v(vRr), 2560 * p))
        A('s_waitcnt lgkmcnt(2)')
        for c in (0, 2):
            A('v_pk_add_f32 %s, %s, %s' % (v(ACC + c, 2), v(ACC + c, 2), v(ACC + 4 + c, 2)))
        A('s_waitcnt lgkmcnt(0)')
        for c in (0, 2):
            A('v_pk_add_f32 %s, %s, %s' % (v(ACC + 8 + c, 2), v(ACC + 8 + c, 2), v(ACC + 12 + c, 2)))
        for c in (0, 2):
            A('v_pk_add_f32 %s, %s, %s' % (v(ACC + c, 2), v(ACC + c, 2), v(ACC + 8 + c, 2)))
        A('s_cbranch_scc1 %s_ld' % step)
        A('v_min_u32 %s, -2, %s' % (v(ACC), v(ACC)))
        for k in range(cfg.nrep):
            r, o = part_addr(sPart, sR0, k)
            A('buffer_store_dwordx4 %s, %s, %s, %s offen offset:%d sc1' % (v(ACC, 4), v(vT16), s(sWS, 4), s(r), o))
        stamp(A, cfg, 4)
        A('s_branch %s_fin' % step)
        A.label(step + '_ld')
        for k in range(1, cfg.nrep):
            A('s_add_u32 %s, %s, %d' % (s(sR0 + k - 1), s(sRem), 16 * KB * k))

        def rload(k):
            r, o = part_addr(sRem, sR0, k)
            return 'buffer_load_dwordx4 %s, %s, %s, %s offen offset:%d sc1' % (v(OP + 4 * k, 4), v(vT16), s(sWS, 4), s(r), o)
        stamp(A, cfg, 10)
        if cfg.profile:
            A('s_mov_b32 %s, 0' % s(sSTAMP + 22))
        for k in range(cfg.nrep):
            if cfg.rsleep[k]:
                A('s_sleep %d' % cfg.rsleep[k])
            A(rload(k))
        stamp(A, cfg, 8)
        got = A.uid('got')
        for k in range(cfg.nrep):
            if k == cfg.nrep - 1:
                A.label(got + '_l')
            A('s_waitcnt vmcnt(%d)' % (cfg.nrep - 1 - k))
            A('v_cmp_eq_u32 vcc, -1, %s' % v(OP + 4 * k))
            if k == 0:
                A('s_cbranch_vccnz %s_%s' % (got, 'n1' if cfg.nrep > 1 else 'again'))
                break
        for c in (0, 2):
            A('v_pk_add_f32 %s, %s, %s' % (v(ACC + c, 2), v(ACC + c, 2), v(OP + c, 2)))
        if cfg.profile:
            A('s_mov_b32 %s, 0' % s(sSTAMP + 12))
        A.label(got + '_fin')
        if cfg.mring == 0:
            A('buffer_store_dword v0, %s, %s, %s offen%s' % (v(vOne), s(sWS, 4), s(sRing), sfx))
        A('v_cvt_pk_bf16_f32 %s, %s, %s' % (v(ACC + 12), v(ACC), v(ACC + 1)))
        A('v_cvt_pk_bf16_f32 %s, %s, %s' % (v(ACC + 13), v(ACC + 2), v(ACC + 3)))
        A('v_min_u32 %s, -2, %s' % (v(ACC + 12), v(ACC + 12)))
        A('v_min_u32 %s, -2, %s' % (v(ACC + 13), v(ACC + 13)))
        A('buffer_store_dwordx2 %s, %s, %s, %s offen%s' % (v(ACC + 12, 2), v(vT8), s(sWS, 4), s(sMemW), sfx))
        if cfg.mring == 1:
            A('buffer_store_dword v0, %s, %s, %s offen%s' % (v(vOne), s(sWS, 4), s(sRing), sfx))
        for k in range(1, cfg.nrep):
            A.ool('%s_n%d:' % (got, k))
            A.ool('s_waitcnt vmcnt(%d)' % (cfg.nrep - 1 - k))
            A.ool('v_cmp_eq_u32 vcc, -1, %s' % v(OP + 4 * k))
            if k < cfg.nrep - 1:
                A.ool('s_cbranch_vccnz %s_n%d' % (got, k + 1))
            else:
                A.ool('s_cbranch_vccnz %s_again' % got)
            for c in (0, 2):
                A.ool('v_pk_add_f32 %s, %s, %s' % (v(ACC + c, 2), v(ACC + c, 2), v(OP + 4 * k + c, 2)))
            if cfg.profile:
                A.ool('s_mov_b32 %s, %d' % (s(sSTAMP + 12), k))
            A.ool('s_branch %s_fin' % got)
        A.ool(got + '_again:')
        if cfg.profile:
            A.ool('s_add_u32 %s, %s, 1' % (s(sSTAMP + 22), s(sSTAMP + 22)))
        A.ool(rload(cfg.nrep - 1))
        A.ool('s_sub_u32 %s, %s, 1\ns_cbranch_scc1 L_end\ns_branch %s_%s' % (s(sBUD), s(sBUD), got, 'n%d' % (cfg.nrep - 1) if cfg.nrep > 1 else 'l'))
        stamp(A, cfg, 5)
        A.label(step + '_fin')
        stamp_flush(A, cfg, 15, vT, vOne, wave=cfg.pwave)
        ring_adv(A, sMem, 16 * KB)
        A('s_add_u32 %s, %s, 1' % (s(sSTEP), s(sSTEP)))
        A('s_branch %s' % step)
        A.flush_tail()
    A.label('L_vo_last')
    A('s_waitcnt vmcnt(0)')
    A('s_barrier')
    gstamp(A, cfg, 3, vOne, True)
    A('v_mov_b32 v40, %d' % cfg.nsteps)
    A('buffer_store_dword v40, %s, %s, %s offen sc1' % (v(vOne), s(sWS, 4), s(sFlag)))
    A('s_branch L_end')
```

```python
from asmlib import *
from layout import *

sWG, sXCC = 2, 3
sX, sMEM0, sWQ, sWK, sWV, sWO, sW1, sW2, sOUT, sDBG, sWSP = 4, 6, 8, 10, 12, 14, 16, 18, 20, 22, 24
sBUD = 26
sWS = 28
sSA, sSB = 32, 36
sWAVE, sGRP, sJ, sSTEP, sLOCAL = 40, 41, 42, 43, 44
sRES, sSPARE = 45, 46
sT0, sT1, sT2 = 47, 48, 49
sSTAMP = 70

LDS_SPARE = 128 * KB
MS = 128 * KB
QT = 144 * KB
RED = 144 * KB

SC = 0.12751743


def f2u(x):
    import struct
    return struct.unpack('<I', struct.pack('<f', x))[0]


def srd(A, d, base, nbytes):
    A('s_mov_b32 %s, %s' % (s(d), s(base)))
    A('s_and_b32 %s, %s, 0xffff' % (s(d + 1), s(base + 1)))
    A('s_mov_b32 %s, %s' % (s(d + 2), hx(nbytes)))
    A('s_mov_b32 %s, 0x20000' % s(d + 3))


def spin_fail(A):
    A('s_sub_u32 %s, %s, 1' % (s(sBUD), s(sBUD)))
    A('s_cbranch_scc1 L_end')


def weight_loader(A, ops, vres, vspare, after_first=None, lag=3, nslots=40, resident=0, tmp=16, vfin=None, pre=None, covered=None):
    ns = len(ops)
    off = (nslots - 1 - (ns - 1)) % nslots
    slot = lambda i: (i + off) % nslots
    issued = []
    NT = 28

    def issue(i):
        o, sl = ops[i], slot(i)
        base, so = (sRES, sl * 1024) if sl < 32 else (sSPARE, (sl - 32) * 1024)
        if so:
            A('s_add_u32 m0, %s, %d' % (s(base), so))
        else:
            A('s_mov_b32 m0, %s' % s(base))
        A('s_mov_b32 %s, %s' % (s(sT0), hx(o['soff'])))
        A('buffer_load_dwordx4 %s, %s, %s offen%s lds' % (v(o['voff']), s(o['srd'], 4), s(sT0), ' nt' if o.get('nt') else ''))
        issued.append(i)

    first = min(nslots, ns)
    for i in range(first):
        if pre and i == pre[0]:
            pre[1](i)
        issue(i)
    if after_first:
        n0 = len(A.lines)
        after_first(first)
        if covered:
            issued += ['x'] * sum(1 for x in A.lines[n0:] if x.startswith('buffer_store'))

    def flush(lo, hi):
        A('s_waitcnt lgkmcnt(0)')
        for f in range(lo, hi):
            A('ds_write_b128 %s, %s offset:%d' % (v(vfin), v(tmp + 4 * (f % NT), 4), f * 1024))
        A('s_waitcnt lgkmcnt(0)')

    for i in range(ns):
        if resident and i == ns - 8:
            A('v_lshlrev_b32 %s, 4, v0' % v(vfin))
            A('v_add_u32 %s, %s, %s' % (v(vfin), s(sRES), v(vfin)))
            flush(0, resident - 4)
        later = len(issued) - 1 - issued.index(i)
        A('s_waitcnt vmcnt(%d)' % min(later, 63))
        if covered and i == first:
            covered()
        sl = slot(i)
        for dst, o in ops[i]['reads']:
            if isinstance(dst, tuple):
                assert (dst[1] < resident - 4) == (i < ns - 8)
                dst = v(tmp + 4 * (dst[1] % NT) + 2 * dst[2], 2)
            if sl < 32:
                A('ds_read_b64_tr_b16 %s, %s offset:%d' % (dst, v(vres), sl * 1024 + o))
            else:
                A('ds_read_b64_tr_b16 %s, %s offset:%d' % (dst, v(vspare), (sl - 32) * 1024 + o))
        if i >= lag and i - lag + nslots < ns:
            A('s_waitcnt lgkmcnt(%d)' % (2 * lag))
            issue(i - lag + nslots)
    assert len(issued) - issued.count('x') == ns
    if resident:
        flush(resident - 4, resident)
    else:
        A('s_waitcnt lgkmcnt(0)')


def grid_arrive(A, vz, vt):
    A('s_barrier')
    l = A.uid('arr')
    A('s_cmp_lg_u32 %s, 0' % s(sWAVE))
    A('s_cbranch_scc1 %s' % l)
    A('s_mov_b64 exec, 1')
    A('v_mov_b32 %s, 0' % v(vz))
    A('v_mov_b32 %s, 1' % v(vt))
    A('global_atomic_add %s, %s, %s offset:192 sc1' % (v(vz), v(vt), s(sDBG, 2)))
    A('s_mov_b64 exec, -1')
    A.label(l)


def grid_wait(A, vz, vt, cfg, which):
    for off, n in which:
        if n == 0:
            continue
        l, d = A.uid('gw'), A.uid('gwd')
        A('v_mov_b32 %s, 0' % v(vz))
        A.label(l)
        A('global_load_dword %s, %s, %s offset:%d sc1' % (v(vt), v(vz), s(sDBG, 2), off))
        A('s_waitcnt vmcnt(0)')
        A('v_readfirstlane_b32 %s, %s' % (s(sT1), v(vt)))
        A('s_cmp_ge_u32 %s, %d' % (s(sT1), n))
        A('s_cbranch_scc1 %s' % d)
        spin_fail(A)
        A('s_sleep 2')
        A('s_branch %s' % l)
        A.label(d)


def group_local(A, vt, vt2, stride_note=None):
    A('v_and_b32 %s, 31, v0' % v(vt))
    A('v_lshlrev_b32 %s, 5, %s' % (v(vt), v(vt)))
    A('s_and_b32 %s, %s, 7' % (s(sT0), s(sWG)))
    A('s_lshl_b32 %s, %s, 2' % (s(sT0), s(sT0)))
    A('s_add_u32 %s, %s, %d' % (s(sT0), s(sT0), CT_XCC))
    A('buffer_load_dword %s, %s, %s, %s offen sc1' % (v(vt2), v(vt), s(sWS, 4), s(sT0)))
    A('s_waitcnt vmcnt(0)')
    A('v_cmp_ne_u32 vcc, %s, %s' % (s(sXCC), v(vt2)))
    A('s_cmp_eq_u64 vcc, 0')
    A('s_cselect_b32 %s, 1, 0' % s(sLOCAL))


def xstore(A, instr):
    slow, back = A.uid('xs'), A.uid('xb')
    A('s_cmp_eq_u32 %s, 1' % s(sLOCAL))
    A('s_cbranch_scc0 %s' % slow)
    for i in instr:
        A(i)
    A.label(back)
    A.ool(slow + ':')
    for i in instr:
        A.ool(i + ' sc1')
    A.ool('s_branch %s' % back)


def stamp(A, cfg, k):
    if cfg.profile == 1 or (cfg.profile and (k == 0 or k in cfg.stamps)):
        A('%s %s' % ('s_memrealtime' if cfg.rt else 's_memtime', s(sSTAMP + 2 * k, 2)))
        A('s_waitcnt lgkmcnt(0)')


def stamp_flush(A, cfg, n, vt, vone, wave=0):
    if not cfg.profile:
        return
    l = A.uid('sf')
    A('s_lshl_b32 %s, %s, 2' % (s(sT0), s(sWG)))
    A('s_add_u32 %s, %s, %s' % (s(sT0), s(sT0), s(sWAVE)))
    A('s_lshl_b32 %s, %s, 12' % (s(sT0), s(sT0)))
    A('s_lshl_b32 %s, %s, 6' % (s(sT1), s(sSTEP)))
    A('s_add_u32 %s, %s, %s' % (s(sT0), s(sT0), s(sT1)))
    A('s_add_u32 %s, %s, %s' % (s(sT0), s(sT0), hx(STAMP)))
    for k in range(n):
        if cfg.profile != 1 and k not in (0, 6, 11, 13, 14) and k not in cfg.stamps:
            continue
        A('v_mov_b32 %s, %s' % (v(vt), s(97 if k == 13 else sSTAMP + 2 * k)))
        A('buffer_store_dword %s, %s, %s, %s offen offset:%d' % (v(vt), v(vone), s(sWS, 4), s(sT0), 4 * k))
        A('s_nop 1')
    A.label(l)


def check_regs(A, regs, vt):
    regs = list(regs)
    cur = None
    while regs:
        if cur is None:
            if len(regs) >= 3:
                A('v_max3_u32 %s, %s, %s, %s' % (v(vt), v(regs[0]), v(regs[1]), v(regs[2])))
                regs = regs[3:]
            elif len(regs) == 2:
                A('v_max_u32 %s, %s, %s' % (v(vt), v(regs[0]), v(regs[1])))
                regs = []
            else:
                A('v_cmp_eq_u32 vcc, -1, %s' % v(regs[0]))
                return
            cur = vt
        elif len(regs) >= 2:
            A('v_max3_u32 %s, %s, %s, %s' % (v(vt), v(vt), v(regs[0]), v(regs[1])))
            regs = regs[2:]
        else:
            A('v_max_u32 %s, %s, %s' % (v(vt), v(vt), v(regs[0])))
            regs = []
    A('v_cmp_eq_u32 vcc, -1, %s' % v(vt))


def poll_mem(A, cfg, P, vpoll, smem, vt):
    def rnd():
        for i in range(4):
            A('buffer_load_dwordx4 %s, %s, %s, %s offen offset:%d sc1' % (v(P + 4 * i, 4), v(vpoll), s(sWS, 4), s(smem), 1024 * i))
    l, d = A.uid('pm'), A.uid('pmd')
    rnd()
    if cfg.poll2:
        rnd()
    A.label(l)
    A('s_waitcnt vmcnt(%d)' % (4 if cfg.poll2 else 0))
    check_regs(A, range(P, P + 16), vt)
    A('s_cbranch_vccz %s' % d)
    rnd()
    spin_fail(A)
    A('s_branch %s' % l)
    A.label(d)


def lane_consts(A, vg, vr, vc):
    A('v_bfe_u32 %s, v0, 3, 2' % v(vg))
    A('v_bfe_u32 %s, v0, 1, 2' % v(vr))
    A('v_and_b32 %s, 1, v0' % v(vc))


def sparse_rowlane_mem(A, vd, vg, vr, vt):
    A('v_lshrrev_b32 %s, 1, %s' % (v(vd), v(vg)))
    A('v_lshlrev_b32 %s, 4, %s' % (v(vd), v(vd)))
    A('v_and_b32 %s, 1, %s' % (v(vt), v(vg)))
    A('v_lshl_add_u32 %s, %s, 2, %s' % (v(vd), v(vt), v(vd)))
    A('v_lshrrev_b32 %s, 1, %s' % (v(vt), v(vr)))
    A('v_lshl_add_u32 %s, %s, 3, %s' % (v(vd), v(vt), v(vd)))
    A('v_and_b32 %s, 1, %s' % (v(vt), v(vr)))
    A('v_add_u32 %s, %s, %s' % (v(vd), v(vt), v(vd)))


def sparse_rowlane_o(A, vd, vg, vr, vt):
    A('v_lshrrev_b32 %s, 1, %s' % (v(vd), v(vr)))
    A('v_lshlrev_b32 %s, 5, %s' % (v(vd), v(vd)))
    A('v_and_b32 %s, 1, %s' % (v(vt), v(vg)))
    A('v_lshl_add_u32 %s, %s, 4, %s' % (v(vd), v(vt), v(vd)))
    A('v_lshrrev_b32 %s, 1, %s' % (v(vt), v(vg)))
    A('v_lshl_add_u32 %s, %s, 2, %s' % (v(vd), v(vt), v(vd)))
    A('v_and_b32 %s, 1, %s' % (v(vt), v(vr)))
    A('v_add_u32 %s, %s, %s' % (v(vd), v(vt), v(vd)))


def dma_offsets(A, vpair, vrow, vc, vt, lgstride, scol):
    A('v_lshlrev_b32 %s, %d, %s' % (v(vpair), lgstride, v(vrow)))
    A('v_lshl_add_u32 %s, %s, 4, %s' % (v(vpair), v(vc), v(vpair)))
    A('v_add_u32 %s, %s, %s' % (v(vpair), s(scol), v(vpair)))
    A('v_lshrrev_b32 %s, 5, v0' % v(vt))
    A('v_lshl_add_u32 %s, %s, 5, %s' % (v(vpair), v(vt), v(vpair)))


def common_chain_init(A, vB, vSp, vA, vOne, vIdx):
    A('s_lshl_b32 %s, %s, 15' % (s(sRES), s(sWAVE)))
    A('s_lshl_b32 %s, %s, 13' % (s(sSPARE), s(sWAVE)))
    A('s_add_u32 %s, %s, %d' % (s(sSPARE), s(sSPARE), LDS_SPARE))
    A('v_lshlrev_b32 %s, 3, v0' % v(vB))
    A('v_add_u32 %s, %s, %s' % (v(vSp), s(sSPARE), v(vB)))
    A('v_add_u32 %s, %s, %s' % (v(vB), s(sRES), v(vB)))
    A('v_lshlrev_b32 %s, 4, v0' % v(vA))
    A('v_add_u32 %s, %d, %s' % (v(vA), MS, v(vA)))
    A('v_cmp_eq_u32 vcc, 0, v0')
    A('v_mov_b32 %s, %s' % (v(vOne), hx(OOB)))
    A('s_nop 0')
    A('v_cndmask_b32 %s, %s, 0, vcc' % (v(vOne), v(vOne)))
    A('v_and_b32 %s, 8, v0' % v(vIdx))
    A('v_cmp_eq_u32 vcc, 0, %s' % v(vIdx))
    A('v_mov_b32 %s, 0xeeee' % v(vIdx))
    A('v_mov_b32 v1, 0x4444')
    A('v_cndmask_b32 %s, %s, v1, vcc' % (v(vIdx), v(vIdx)))


def publish_xcc(A, vOne):
    A('s_lshl_b32 %s, %s, 2' % (s(sT0), s(sWG)))
    A('s_add_u32 %s, %s, %d' % (s(sT0), s(sT0), CT_XCC))
    A('v_mov_b32 v1, %s' % s(sXCC))
    A('buffer_store_dword v1, %s, %s, %s offen sc1' % (v(vOne), s(sWS, 4), s(sT0)))


def gstamp(A, cfg, k, vone, chainrole=False, vtmp=31, vd=1):
    if cfg.dbgt:
        tab = {(152, 0): 3, (152, 1): 4, (152, 2): 5, (152, 3): 6} if chainrole else \
              {(5, 1): 9, (5, 2): 10, (5, 3): 11, (5, 4): 12, (5, 6): 13, (5, 7): 14, (5, 0): 15}
        for (wg, kk), word in tab.items():
            if kk != k:
                continue
            l = A.uid('dt')
            A('s_lshl_b32 s70, %s, 2' % s(sWG))
            A('s_add_u32 s70, s70, %s' % s(sWAVE))
            A('s_cmp_lg_u32 s70, %d' % (4 * wg))
            A('s_cbranch_scc1 %s' % l)
            A('s_memrealtime s[70:71]')
            A('s_waitcnt lgkmcnt(0)')
            A('s_mov_b64 exec, 1')
            A('v_mov_b32 %s, s70' % v(vd))
            A('v_mov_b32 %s, 0' % v(vtmp))
            A('global_store_dword %s, %s, %s offset:%d sc1' % (v(vtmp), v(vd), s(sDBG, 2), 4 * word))
            A('s_mov_b64 exec, -1')
            A.label(l)
        return
    if not cfg.profile:
        return
    A('s_memrealtime s[70:71]')
    A('s_memtime s[72:73]')
    A('s_lshl_b32 s74, %s, 2' % s(sWG))
    A('s_add_u32 s74, s74, %s' % s(sWAVE))
    A('s_lshl_b32 s74, s74, 12')
    A('s_add_u32 s74, s74, %s' % hx(STAMP + 63 * 64 + 8 * k))
    A('s_waitcnt lgkmcnt(0)')
    A('v_mov_b32 %s, s70' % v(vd))
    A('buffer_store_dword %s, %s, %s, s74 offen' % (v(vd), v(vone), s(sWS, 4)))
    A('s_nop 1')
    A('v_mov_b32 %s, s72' % v(vd))
    A('buffer_store_dword %s, %s, %s, s74 offen offset:4' % (v(vd), v(vone), s(sWS, 4)))
    A('s_nop 1')
```

```python
from common import *

MF = 'v_mfma_f32_16x16x32_bf16'
sC_, sGX, sGI = 50, 51, 52
sSrc, sDst, sDst2, sDstep, sIt, sSstep, sFlagA, sRelu, sM0, sProg = 53, 54, 55, 56, 57, 58, 59, 60, 61, 64
vOne, vL16, vRes, vSp, vPair, vA = 2, 3, 4, 5, 6, 7


def allred_g(A, op, x, y):
    for sw in ('v_permlane32_swap_b32', 'v_permlane16_swap_b32'):
        A('v_mov_b32 %s, %s' % (v(y), v(x)))
        A('s_nop 1')
        A('%s %s, %s' % (sw, v(x), v(y)))
        A('%s %s, %s, %s' % (op, v(x), v(x), v(y)))


def dense_offsets(A, vdst, natural, stride, scol):
    A('v_bfe_u32 v16, v0, 3, 2')
    A('v_bfe_u32 v17, v0, 1, 2')
    A('v_lshl_add_u32 v16, v16, %d, v17' % (3 if natural else 2))
    A('v_mul_u32_u24 v16, %d, v16' % stride)
    A('v_and_b32 v17, 1, v0')
    A('v_lshl_add_u32 v16, v17, 4, v16')
    A('v_lshrrev_b32 v17, 5, v0')
    A('v_lshl_add_u32 v16, v17, 5, v16')
    A('v_add_u32 %s, %s, v16' % (v(vdst), s(scol)))


def layernorm(A, cfg, sTile):
    X, F, T = 32, 64, 16
    LNS = LDS_SPARE + 7 * KB
    for i in range(32):
        A('v_lshlrev_b32 %s, 16, %s' % (v(F + 2 * i), v(X + i)))
        A('v_and_b32 %s, 0xffff0000, %s' % (v(F + 2 * i + 1), v(X + i)))
    A('v_and_b32 v20, 15, v0')
    A('v_lshlrev_b32 v20, 4, v20')
    A('v_add_u32 v20, %d, v20' % LNS)
    A('s_lshl_b32 %s, %s, 2' % (s(sT0), s(sWAVE)))
    A('v_add_u32 v21, %s, v20' % s(sT0))

    def total(off):
        A('v_add_f32 v16, v16, v17')
        allred_g(A, 'v_add_f32', 16, 17)
        A('ds_write_b32 v21, v16 offset:%d' % off)
        A('s_waitcnt lgkmcnt(0)')
        A('s_barrier')
        A('ds_read_b128 v[16:19], v20 offset:%d' % off)
        A('s_waitcnt lgkmcnt(0)')
        A('v_add_f32 v16, v16, v17')
        A('v_add_f32 v18, v18, v19')
        A('v_add_f32 v16, v16, v18')
        A('v_mul_f32 v16, 0x3a800000, v16')
    A('v_pk_add_f32 v[16:17], %s, %s' % (v(F, 2), v(F + 2, 2)))
    for i in range(2, 32):
        A('v_pk_add_f32 v[16:17], v[16:17], %s' % v(F + 2 * i, 2))
    total(0)
    A('v_mov_b32 v22, v16')
    A('v_cvt_pk_bf16_f32 v24, v16, v16')
    A('v_and_b32 v24, 0xffff0000, v24')
    for i in range(32):
        A('v_pk_add_f32 v[18:19], %s, v[22:23] op_sel_hi:[1,0] neg_lo:[0,1] neg_hi:[0,1]' % v(F + 2 * i, 2))
        if i == 0:
            A('v_pk_mul_f32 v[16:17], v[18:19], v[18:19]')
        else:
            A('v_pk_fma_f32 v[16:17], v[18:19], v[18:19], v[16:17]')
    total(256)
    A('v_cvt_pk_bf16_f32 v16, v16, v16')
    A('v_and_b32 v16, 0xffff0000, v16')
    A('v_add_f32 v16, 0x3727c5ac, v16')
    A('v_cvt_pk_bf16_f32 v16, v16, v16')
    A('v_and_b32 v16, 0xffff0000, v16')
    A('v_sqrt_f32 v16, v16')
    A('s_nop 0')
    A('v_cvt_pk_bf16_f32 v16, v16, v16')
    A('v_and_b32 v16, 0xffff0000, v16')
    A('v_rcp_f32 v26, v16')
    for i in range(32):
        A('v_pk_add_f32 v[18:19], %s, v[24:25] op_sel_hi:[1,0] neg_lo:[0,1] neg_hi:[0,1]' % v(F + 2 * i, 2))
        A('v_cvt_pk_bf16_f32 v17, v18, v19')
        A('v_lshlrev_b32 v18, 16, v17')
        A('v_and_b32 v19, 0xffff0000, v17')
        A('v_pk_mul_f32 v[18:19], v[18:19], v[26:27] op_sel_hi:[1,0]')
        A('v_cvt_pk_bf16_f32 %s, v18, v19' % v(X + i))
    A('s_lshl_b32 %s, %s, 15' % (s(sT0), s(sTile)))
    A('s_lshl_b32 %s, %s, 13' % (s(sT1), s(sWAVE)))
    A('s_add_u32 %s, %s, %s' % (s(sT0), s(sT0), s(sT1)))
    A('s_add_u32 %s, %s, %s' % (s(sT0), s(sT0), hx(XNF)))
    for i in range(8):
        if i == 4:
            A('s_add_u32 %s, %s, 4096' % (s(sT0), s(sT0)))
        A('buffer_store_dwordx4 %s, %s, %s, %s offen offset:%d sc1' % (v(X + 4 * i, 4), v(vL16), s(sWS, 4), s(sT0), 1024 * (i & 3)))


def proj_ops(stride):
    return [dict(srd=sSA, voff=vPair, soff=(32 * ks + 4 * u) * stride,
                 reads=[(a((ks * 2 + t) * 4 + 2 * u, 2), 512 * t) for t in range(2)])
            for ks in range(32) for u in range(2)]


def proj_loop(A, cfg, tag, swapped, flag):
    ACC, AR, PK = (16, 32), 48, 80

    def piece(c, i):
        out = []
        if i == 0:
            out = ['s_add_u32 m0, %s, %d' % (s(sM0), (c % 8) * 16 * KB) if c % 8 else 's_mov_b32 m0, %s' % s(sM0), 's_nop 0']
        out.append(('vm', ('dma', c), 'buffer_load_dwordx4 %s, %s, %s offen offset:%d sc1 lds' % (v(vL16), s(sWS, 4), s(sSrc), 1024 * i)))
        if i == 3:
            out.append('s_add_u32 %s, %s, %s' % (s(sSrc), s(sSrc), '8192' if c % 4 != 3 else s(sSstep)))
        return out

    def aread(c, j):
        base = (c % 8) * 16 * KB + j * 1024
        reg, off = (vA, base) if base < 64 * KB else (vA + 1, base - 64 * KB)
        return ['ds_read_b128 %s, %s offset:%d' % (v(AR + 8 * (j % 4) + 4 * rt, 4), v(reg), off + 8192 * rt) for rt in range(2)]

    def epilogue(acc):
        out = []
        for x in range(2):
            for h in range(4):
                out.append('v_cvt_pk_bf16_f32 %s, %s, %s' % (v(PK + 4 * x + h), v(acc + 8 * x + 2 * h), v(acc + 8 * x + 2 * h + 1)))
            if swapped:
                for h in range(4):
                    out.append('v_pk_max_i16 %s, %s, %s' % (v(PK + 4 * x + h), v(PK + 4 * x + h), s(sRelu)))
            out.append(('vm', 'st', 'buffer_store_dwordx4 %s, %s, %s, %s offen sc1' % (v(PK + 4 * x, 4), v(vL16), s(sWS, 4), s(sDst2 if x else sDst))))
            out.append('s_add_u32 %s, %s, %s' % (s(sDst2 if x else sDst), s(sDst2 if x else sDst), s(sDstep)))
        return out

    def iteration(n):
        out = []
        acc, prev = ACC[n % 2], ACC[1 - n % 2]
        ep = epilogue(prev) if n else []
        for q in range(4):
            c = 4 * n + q
            for j in range(8):
                ks = 8 * q + j
                fill, late = [], []
                if j == 6:
                    fill = [('wait', 'st' if flag and n == 1 and q == 1 else ('dma', c + 1)), 's_barrier']
                    late = piece(c + 7, 0)
                elif j in (0, 2, 4) and c > 0:
                    late = piece(c + 6, j // 2 + 1)
                elif q == 0 and ep:
                    k = (len(ep) + 3) // 4
                    late = ep[k * (j // 2):k * (j // 2 + 1)]
                elif flag and (n > 2 and q == 3 or n == 1 and q == 2) and j == 1:
                    late = ['s_add_u32 %s, %s, 2' % (s(sProg), s(sProg)), 'v_mov_b32 v1, %s' % s(sProg),
                            ('vm', 'flag', 'buffer_store_dword v1, %s, %s, %s offen sc1' % (v(vOne), s(sWS, 4), s(sFlagA)))]
                rd = aread(c, j + 2) if j < 6 else aread(c + 1, j - 6)
                h = (len(late) + 1) // 2
                per = [fill + rd[:1], rd[1:], late[:h], late[h:]]
                out.append('s_waitcnt lgkmcnt(2)')
                m = 0
                for x in range(2):
                    for y in range(2):
                        rt, ct = (x, y) if swapped else (y, x)
                        W, Xf = a((ks * 2 + ct) * 4, 4), v(AR + 8 * (j % 4) + 4 * rt, 4)
                        D = v(acc + 8 * x + 4 * y, 4)
                        out.append('%s %s, %s, %s, %s' % ((MF, D) + ((W, Xf) if swapped else (Xf, W)) + (D if ks else '0',)))
                        out += per[m]
                        m += 1
        out += ['s_sub_u32 %s, %s, 1' % (s(sIt), s(sIt)), 's_cbranch_scc1 L_%s_end%d' % (tag, n % 2)]
        return out

    pro = []
    for c in range(7):
        for i in range(4):
            pro += piece(c, i)
    pro += [('wait', ('dma', 0)), 's_barrier'] + aread(0, 0) + aread(0, 1)
    runs = [pro] + [iteration(n) for n in range(10)]
    queue, counts = [], []
    for r in runs:
        cs = []
        for x in r:
            if isinstance(x, tuple) and x[0] == 'vm':
                queue.append(x[1])
            elif isinstance(x, tuple):
                last = max(i for i, y in enumerate(queue) if y == x[1])
                cs.append(len(queue) - 1 - last)
        counts.append(cs)
    NP = 4 if flag else 2
    for k in (NP, NP + 1):
        counts[k] = [min(t) for t in zip(counts[k], counts[k + 2], counts[k + 4])]

    def emit(r, cs):
        cs = list(cs)
        for x in r:
            if isinstance(x, tuple):
                A(x[2] if x[0] == 'vm' else 's_waitcnt vmcnt(%d)' % cs.pop(0))
            else:
                A(x)
    A('s_lshl_b32 %s, %s, 12' % (s(sM0), s(sWAVE)))
    for k in range(NP):
        if flag and k == 3:
            grid_wait(A, 1, 9, cfg, [(4, 128)])
        emit(runs[k], counts[k])
    A.label('L_%s_top' % tag)
    for k in (NP, NP + 1):
        emit(runs[k], counts[k])
    A('s_branch L_%s_top' % tag)
    for half in range(2):
        A.label('L_%s_end%d' % (tag, half))
        A('s_nop 7')
        emit(epilogue(ACC[half]), [])
        if half == 0:
            A('s_branch L_%s_done' % tag)
    A.label('L_%s_done' % tag)
    A('s_waitcnt vmcnt(0) lgkmcnt(0)')
    A('s_barrier')
    if flag:
        A('v_mov_b32 v1, 64')
        A('buffer_store_dword v1, %s, %s, %s offen sc1' % (v(vOne), s(sWS, 4), s(sFlagA)))


def counter_arrive(A, off, soff=None):
    l = A.uid('arr')
    A('s_cmp_lg_u32 %s, 0' % s(sWAVE))
    A('s_cbranch_scc1 %s' % l)
    A('s_mov_b64 exec, 1')
    A('v_mov_b32 v16, %s' % (s(soff) if soff else '0'))
    A('v_mov_b32 v17, 1')
    A('global_atomic_add v16, v17, %s offset:%d sc1' % (s(sDBG, 2), off))
    A('s_mov_b64 exec, -1')
    A.label(l)


def wait_ge(A, voff, sbase, vt, sval, sleep=2):
    l = A.uid('wg')
    A.label(l)
    A('buffer_load_dword %s, %s, %s, %s offen sc1' % (v(vt), v(voff), s(sWS, 4), s(sbase)))
    spin_fail(A)
    A('s_waitcnt vmcnt(0)')
    A('v_cmp_gt_u32 vcc, %s, %s' % (s(sval), v(vt)))
    A('s_cbranch_vccz %s_ok' % l)
    if sleep:
        A('s_sleep %d' % sleep)
    A('s_branch %s' % l)
    A.label(l + '_ok')


def final_phase(A, cfg):
    W2V = 160
    ACC, BB, RING, NR, XR = 16, 32, 48, 25, 148
    vMask, vRw, vRr, vXo, vKm, vVm, vBell, vFl = 152, 8, 9, 10, 11, 12, 13, 14
    sSeg, sH, sOT, sOTw, sQ, sKMa, sCnt, sBellA, sFlK, sC, sNC, sXo, sH1, sH2, sH3, sNeed = 53, 54, 55, 56, 57, 58, 59, 60, 61, 62, 64, 65, 66, 67, 68, 69
    RED2 = LDS_SPARE
    srd(A, sSA, sW2, 3584 * 2048)
    srd(A, sSB, sWO, 8 * MB)
    A('s_lshl_b32 %s, %s, 6' % (s(sT1), s(sGI)))
    A('s_mul_i32 %s, %s, %d' % (s(sT2), s(sWAVE), 28 * 32 * 2048))
    A('s_add_u32 %s, %s, %s' % (s(sT2), s(sT2), s(sT1)))
    dense_offsets(A, vPair, False, 2048, sT2)
    A('s_lshl_b32 %s, %s, 21' % (s(sT2), s(sWAVE)))
    A('s_add_u32 %s, %s, %s' % (s(sT2), s(sT2), s(sT1)))
    dense_offsets(A, vA, False, 2048, sT2)
    ops = []
    for kk in range(12):
        for u in range(2):
            ops.append(dict(srd=sSA, voff=vPair, soff=(32 * kk + 16 * u) * 2048,
                            reads=[(v(W2V + (kk * 2 + t) * 4 + 2 * u, 2), 512 * t) for t in range(2)]))
    for kk in range(32):
        for u in range(2):
            ops.append(dict(srd=sSB, voff=vA, soff=(32 * kk + 16 * u) * 2048,
                            reads=[(a((kk * 2 + t) * 4 + 2 * u, 2), 512 * t) for t in range(2)]))
    for kk in range(12, 28):
        for u in range(2):
            ops.append(dict(srd=sSA, voff=vPair, soff=(32 * kk + 16 * u) * 2048,
                            reads=[(('res', 2 * (kk - 12) + t, u), 512 * t) for t in range(2)]))
    ops = ops[:84] + ops[88:116] + ops[84:88] + ops[116:]
    A('v_lshlrev_b32 %s, 3, v0' % v(vRes))
    A('v_add_u32 %s, %s, %s' % (v(vRes), s(sRES), v(vRes)))
    weight_loader(A, ops, vRes, vSp, resident=32, vfin=vRw)
    A('v_mov_b32 %s, %s' % (v(vRes), v(vRw)))
    gstamp(A, cfg, 5, vOne)
    A('s_and_b32 %s, %s, 1' % (s(sT0), s(sWAVE)))
    A('s_lshl_b32 %s, %s, 4' % (s(sT0), s(sT0)))
    A('v_and_b32 v16, 15, v0')
    A('v_add_u32 v16, %s, v16' % s(sT0))
    A('v_lshrrev_b32 v17, 4, v0')
    A('v_lshlrev_b32 v17, 2, v17')
    A('v_mov_b32 v19, 0xff800000')
    for jt in range(2):
        for r in range(4):
            A('v_add_u32 v18, %d, v17' % (16 * jt + r))
            A('v_cmp_gt_u32 vcc, v18, v16')
            A('s_nop 1')
            A('v_cndmask_b32 %s, 0, v19, vcc' % v(vMask + 4 * jt + r))
    A('v_and_b32 v16, 15, v0')
    A('v_mul_u32_u24 v16, 144, v16')
    A('v_lshl_add_u32 v16, v17, 2, v16')
    A('s_mul_i32 %s, %s, 4608' % (s(sT0), s(sWAVE)))
    A('s_add_u32 %s, %s, %d' % (s(sT0), s(sT0), RED2))
    A('v_add_u32 %s, %s, v16' % (v(vRw), s(sT0)))
    A('s_lshl_b32 %s, %s, 3' % (s(sT0), s(sWAVE)))
    A('v_lshrrev_b32 v16, 3, v0')
    A('v_add_u32 v16, %s, v16' % s(sT0))
    A('v_and_b32 v18, 7, v0')
    A('v_mul_u32_u24 v19, 144, v16')
    A('v_lshl_add_u32 v19, v18, 4, v19')
    A('v_add_u32 %s, %d, v19' % (v(vRr), RED2))
    A('v_lshlrev_b32 v16, 11, v16')
    A('v_lshl_add_u32 v16, v18, 3, v16')
    A('s_lshl_b32 %s, %s, 6' % (s(sT0), s(sGI)))
    A('v_add_u32 %s, %s, v16' % (v(vXo), s(sT0)))
    A('v_and_b32 v16, 7, v0')
    A('v_lshlrev_b32 v16, 4, v16')
    A('v_lshl_add_u32 %s, v17, 5, v16' % v(vKm))
    A('v_and_b32 v16, 31, v0')
    A('v_lshlrev_b32 %s, 3, v16' % v(vVm))
    A('v_lshlrev_b32 %s, 2, v16' % v(vBell))
    A('v_and_b32 v16, 1, v0')
    A('v_lshlrev_b32 %s, 12, v16' % v(vFl))
    A('v_cmp_gt_u32 vcc, 32, v0')
    A('v_mov_b32 v15, 0xff800000')
    A('s_nop 0')
    A('v_cndmask_b32 v15, v15, 0, vcc')
    srd(A, sSA, sX, 4 * MB)
    srd(A, sSB, sOUT, 4 * MB)
    A('s_mov_b32 %s, %s' % (s(sC), hx(f2u(SC))))
    A('s_mov_b32 %s, %s' % (s(sC + 1), hx(f2u(SC))))
    A('s_mov_b32 %s, %s' % (s(sNC), hx(f2u(-SC))))
    A('s_lshl_b32 %s, %s, 7' % (s(sFlK), s(sGI)))
    A('s_add_u32 %s, %s, %d' % (s(sFlK), s(sFlK), CT_KM))
    A('s_lshl_b32 %s, %s, 8' % (s(sBellA), s(sGX)))
    A('s_add_u32 %s, %s, %d' % (s(sBellA), s(sBellA), CT_OT))
    A('s_mov_b32 %s, %s' % (s(sSeg), s(sGX)))
    A('s_mov_b32 %s, 1' % s(sCnt))
    A('s_lshl_b32 %s, %s, 19' % (s(sOT), s(sGX)))
    A('s_add_u32 %s, %s, %s' % (s(sOT), s(sOT), hx(OT)))
    grid_wait(A, 16, 17, cfg, [(128, 192), (192, cfg.nchain)])
    group_local(A, 16, 17)
    A('s_barrier')
    gstamp(A, cfg, 6, vOne)

    class Q_:
        def __init__(self, pend=()):
            self.q = list(pend)

        def add(self, tag, instr):
            self.q.append(tag)
            A(instr)

        def wait(self, tag):
            n = len(self.q) - 1 - max(i for i, x in enumerate(self.q) if x == tag)
            A('s_waitcnt vmcnt(%d)' % n)

    def ringld(i, sl, base):
        out = [('buffer_load_dwordx4 %s, %s, %s, %s offen offset:%d sc1' % (v(RING + 4 * sl, 4), v(vL16), s(sWS, 4), s(base), 1024 * (i % 4)))]
        if i % 4 == 3:
            out.append('s_add_u32 %s, %s, 4096' % (s(base), s(base)))
        return out

    OFF = 64 % NR
    hslot = lambda i: (i + OFF) % NR
    lds = lambda b: b[0] == 'l'

    def steps(Q, name, lo, hi, n, slot, bsrc, nxt, first):
        def bread(kk):
            return ['ds_read_b128 %s, %s offset:%d' % (v(BB + 8 * (kk % 2) + 4 * t, 4), v(vRes), (bsrc(kk)[1] * 2 + t) * 1024) for t in range(2)]
        for kk in range(lo, hi):
            pre = bread(kk + 1) if kk + 1 < n and lds(bsrc(kk + 1)) else []
            Q.wait((name, 2 * kk + 1))
            if lds(bsrc(kk)):
                A('s_waitcnt lgkmcnt(0)')
            for rt in range(2):
                for ct in range(2):
                    k, b = bsrc(kk)
                    W = v(BB + 8 * (kk % 2) + 4 * ct, 4) if k == 'l' else R((k, b), 4 * ct, 4)
                    D = v(ACC + 8 * rt + 4 * ct, 4)
                    A('%s %s, %s, %s, %s' % (MF, D, W, v(RING + 4 * slot(2 * kk + rt), 4), '0' if first and kk == 0 else D))
                    if ct == 0 and pre:
                        A(pre[rt])
                r = nxt(2 * kk + rt)
                if r:
                    Q.add(r[0], r[1][0])
                    for x in r[1][1:]:
                        A(x)

    def h_base(seg_off):
        A('s_add_u32 %s, %s, %d' % (s(sT1), s(sSeg), seg_off))
        A('s_mul_i32 %s, %s, %d' % (s(sH), s(sT1), 224 * KB))
        A('s_mul_i32 %s, %s, %d' % (s(sT0), s(sWAVE), 56 * KB))
        A('s_add_u32 %s, %s, %s' % (s(sH), s(sH), s(sT0)))
        A('s_add_u32 %s, %s, %s' % (s(sH), s(sH), hx(HF)))

    free = [RING + 4 * hslot(i) for i in range(56 - NR, 56)]
    Kf, Qf, Vf, KM, VM = free[0:8], free[8:12], free[12:16], free[16:20], free[20:24]
    S, M = 32, 44
    O, LS, ONES, PT, PM = Kf[0:4], Kf[4], Kf[5], Kf[6], Kf[7]
    sQa, sKa, sKb, sVa, sVMa = sH1, sH2, sH3, sQ, sOTw
    att = [(('k', i), ['buffer_load_dwordx4 %s, %s, %s, %s offen offset:%d sc1' % (v(Kf[i], 4), v(vL16), s(sWS, 4), s(sKa if i < 4 else sKb), 1024 * (i & 3))]) for i in range(8)]
    att += [(('q', i), ['buffer_load_dwordx4 %s, %s, %s, %s offen offset:%d sc1' % (v(Qf[i], 4), v(vL16), s(sWS, 4), s(sQa), 1024 * i)]) for i in range(4)]
    att += [(('v', i), ['buffer_load_dwordx4 %s, %s, %s, %s offen offset:%d sc1' % (v(Vf[i], 4), v(vL16), s(sWS, 4), s(sVa), 1024 * i)]) for i in range(4)]
    mem = [(('km', i), ['buffer_load_dwordx4 %s, %s, %s, %s offen offset:%d sc1' % (v(KM[i], 4), v(vKm), s(sWS, 4), s(sKMa), 512 * i)]) for i in range(4)]
    mem += [(('vm', i), ['buffer_load_dwordx2 %s, %s, %s, %s offen offset:%d sc1' % (v(VM[i], 2), v(vVm), s(sWS, 4), s(sVMa), 256 * i)]) for i in range(4)]
    w2src = lambda kk: ('v', W2V + 8 * kk) if kk < 12 else ('l', kk - 12)
    KSPLIT = (56 - NR + 16 + 1) // 2

    h_base(0)
    for i in range(NR):
        for x in ringld(i, hslot(i), sH):
            A(x)
    A('s_cmp_eq_u32 %s, 1' % s(sLOCAL))
    A('s_cbranch_scc0 L_fin_g')
    for tag, sfx in (('l', ''), ('g', ' sc1')):
        top = 'L_fin_' + tag
        A.label(top)
        stamp(A, cfg, 0)
        Q = Q_([('h', i) for i in range(NR)])
        A('s_lshl_b32 %s, %s, 5' % (s(sT2), s(sSeg)))
        A('s_add_u32 %s, %s, %s' % (s(sT2), s(sT2), s(sGI)))
        A('s_lshl_b32 %s, %s, 11' % (s(sKMa), s(sT2)))
        A('s_lshl_b32 %s, %s, 13' % (s(sT2), s(sT2)))
        A('s_and_b32 %s, %s, 1' % (s(sT0), s(sWAVE)))
        A('s_lshl_b32 %s, %s, 12' % (s(sT0), s(sT0)))
        A('s_add_u32 %s, %s, %s' % (s(sQa), s(sT2), s(sT0)))
        A('s_add_u32 %s, %s, %s' % (s(sQa), s(sQa), hx(QF)))
        A('s_add_u32 %s, %s, %s' % (s(sKa), s(sT2), hx(KF)))
        A('s_add_u32 %s, %s, 4096' % (s(sKb), s(sKa)))
        A('s_lshr_b32 %s, %s, 1' % (s(sT0), s(sWAVE)))
        A('s_lshl_b32 %s, %s, 12' % (s(sT1), s(sT0)))
        A('s_add_u32 %s, %s, %s' % (s(sVa), s(sT2), s(sT1)))
        A('s_add_u32 %s, %s, %s' % (s(sVa), s(sVa), hx(VF)))
        A('s_lshl_b32 %s, %s, 10' % (s(sT0), s(sT0)))
        A('s_add_u32 %s, %s, %s' % (s(sVMa), s(sKMa), s(sT0)))
        A('s_add_u32 %s, %s, %s' % (s(sVMa), s(sVMa), hx(VMG)))
        A('s_add_u32 %s, %s, %s' % (s(sKMa), s(sKMa), hx(KMG)))
        A('s_add_u32 %s, %s, 1' % (s(sNeed), s(sSeg)))
        A('s_lshl_b32 %s, %s, 16' % (s(sXo), s(sSeg)))
        Q.add('flag', 'buffer_load_dword v1, %s, %s, %s offen sc1' % (v(vFl), s(sWS, 4), s(sFlK)))
        Q.add('x', 'buffer_load_dwordx2 %s, %s, %s, %s offen' % (v(XR, 2), v(vXo), s(sSA, 4), s(sXo)))

        def nxt(extra):
            def f(i):
                j = i + NR
                if j < 56:
                    return ('h', j), ringld(j, hslot(j), sH)
                return extra[j - 56] if j - 56 < len(extra) else None
            return f
        steps(Q, 'h', 0, KSPLIT, 28, hslot, w2src, nxt(att), True)
        Q.wait('flag')
        A('v_cmp_gt_u32 vcc, %s, v1' % s(sNeed))
        A('s_cbranch_vccnz %s_late' % top)
        Q2 = Q_(Q.q)
        shift = 2 * KSPLIT + NR - 56 - 16
        steps(Q, 'h', KSPLIT, 28, 28, hslot, w2src, nxt(att + [None] * shift + mem), False)
        for t, x in mem:
            if t not in Q.q:
                Q.add(t, x[0])
        main, A.lines = A.lines, []
        A.label(top + '_late')
        steps(Q2, 'h', KSPLIT, 28, 28, hslot, w2src, nxt(att), False)
        wait_ge(A, vFl, sFlK, 1, sNeed)
        for t, x in mem:
            A(x[0])
        A('s_branch %s_att' % top)
        A.tail += A.lines
        A.lines = main
        A.label(top + '_att')
        stamp(A, cfg, 1)
        assert Q.q[-8:] == [t for t, x in mem]
        for i in range(4):
            A('v_mov_b32 %s, 0' % v(VM[i] + 2))
            A('v_mov_b32 %s, 0' % v(VM[i] + 3))
        Q.wait(('v', 3))
        for ks in range(4):
            for jt in range(2):
                A('%s %s, %s, %s, %s' % (MF, v(S + 4 * jt, 4), v(Kf[4 * jt + ks], 4), v(Qf[ks], 4), v(S + 4 * jt, 4) if ks else '0'))
        Q.wait(('km', 3))
        stamp(A, cfg, 2)
        for ks in range(4):
            A('%s %s, %s, %s, %s' % (MF, v(S + 8, 4), v(KM[ks], 4), v(Qf[ks], 4), v(S + 8, 4) if ks else '0'))
        for i in range(0, 8, 2):
            A('v_pk_add_f32 %s, %s, %s' % (v(S + i, 2), v(S + i, 2), v(vMask + i, 2)))
        for i in range(4):
            A('v_mov_b32 %s, 0x3f803f80' % v(ONES + i))
        A('v_mov_b32 %s, 0' % v(PM + 2))
        A('v_mov_b32 %s, 0' % v(PM + 3))
        A('v_max3_f32 %s, %s, %s, %s' % (v(M), v(S), v(S + 1), v(S + 2)))
        for i in range(3, 11, 2):
            A('v_max3_f32 %s, %s, %s, %s' % (v(M), v(M), v(S + i), v(S + i + 1)))
        A('v_max_f32 %s, %s, %s' % (v(M), v(M), v(S + 11)))
        allred_g(A, 'v_max_f32', M, M + 1)
        A('v_mul_f32 %s, %s, %s' % (v(M), s(sNC), v(M)))
        A('v_add_f32 %s, %s, v15' % (v(M + 2), v(M)))
        for i in range(0, 12, 2):
            A('v_pk_fma_f32 %s, %s, %s, %s op_sel_hi:[1,1,0]' % (v(S + i, 2), v(S + i, 2), s(sC, 2), v(M if i < 8 else M + 2, 2)))
        for i in range(12):
            A('v_exp_f32 %s, %s' % (v(S + i), v(S + i)))
        for i in range(6):
            A('v_cvt_pk_bf16_f32 %s, %s, %s' % (v(PT + i if i < 4 else PM + i - 4), v(S + 2 * i), v(S + 2 * i + 1)))
        A('s_waitcnt vmcnt(0)')
        A('s_nop 0')
        A('%s %s, %s, %s, 0' % (MF, v(LS, 4), v(ONES, 4), v(PT, 4)))
        for t in range(4):
            A('%s %s, %s, %s, 0' % (MF, v(O[t], 4), v(Vf[t], 4), v(PT, 4)))
        A('%s %s, %s, %s, %s' % (MF, v(LS, 4), v(ONES, 4), v(PM, 4), v(LS, 4)))
        for t in range(4):
            A('%s %s, %s, %s, %s' % (MF, v(O[t], 4), v(VM[t], 4), v(PM, 4), v(O[t], 4)))
        A('s_lshl_b32 %s, %s, 13' % (s(sOTw), s(sGI)))
        A('s_lshr_b32 %s, %s, 1' % (s(sT0), s(sWAVE)))
        A('s_lshl_b32 %s, %s, 12' % (s(sT0), s(sT0)))
        A('s_add_u32 %s, %s, %s' % (s(sOTw), s(sOTw), s(sT0)))
        A('s_and_b32 %s, %s, 1' % (s(sT0), s(sWAVE)))
        A('s_lshl_b32 %s, %s, 10' % (s(sT0), s(sT0)))
        A('s_add_u32 %s, %s, %s' % (s(sOTw), s(sOTw), s(sT0)))
        A('s_add_u32 %s, %s, %s' % (s(sOTw), s(sOTw), s(sOT)))
        A('v_rcp_f32 %s, %s' % (v(M), v(LS)))
        A('s_nop 1')
        for t in range(4):
            for i in (0, 2):
                A('v_pk_mul_f32 %s, %s, %s op_sel_hi:[1,0]' % (v(O[t] + i, 2), v(O[t] + i, 2), v(M, 2)))
        for i in range(8):
            A('v_cvt_pk_bf16_f32 %s, %s, %s' % (v(S + i), v(O[i // 2] + 2 * (i & 1)), v(O[i // 2] + 2 * (i & 1) + 1)))
        for p in range(2):
            A('buffer_store_dwordx4 %s, %s, %s, %s offen offset:%d%s' % (v(S + 4 * p, 4), v(vL16), s(sWS, 4), s(sOTw), 2048 * p, sfx))
        A('s_lshl_b32 %s, %s, 2' % (s(sT0), s(sGI)))
        A('s_add_u32 %s, %s, %s' % (s(sT0), s(sT0), s(sBellA)))
        A('v_mov_b32 v1, %s' % s(sCnt))
        stamp(A, cfg, 3)
        A('s_waitcnt vmcnt(0)')
        A('s_barrier')
        A('buffer_store_dword v1, %s, %s, %s offen%s' % (v(vOne), s(sWS, 4), s(sT0), sfx))
        A('s_lshl_b32 %s, %s, 16' % (s(sH1), s(sWAVE)))
        A('s_add_u32 %s, %s, %s' % (s(sH1), s(sH1), s(sOT)))
        h_base(6)
        wait_ge(A, vBell, sBellA, 44, sCnt, sleep=0)
        stamp(A, cfg, 4)
        Q = Q_()
        for i in range(NR):
            r = ringld(i, i, sH1)
            Q.add(('o', i), r[0])
            for x in r[1:]:
                A(x)

        def nxto(i):
            j = i + NR
            return (('o', j), ringld(j, j % NR, sH1)) if j < 64 else (('h', j - 64), ringld(j - 64, hslot(j - 64), sH))
        steps(Q, 'o', 0, 32, 32, lambda i: i % NR, lambda kk: ('a', 8 * kk), nxto, False)
        stamp(A, cfg, 5)
        A('s_nop 7')
        for rt in range(2):
            for ct in range(2):
                A('ds_write_b128 %s, %s offset:%d' % (v(vRw), v(ACC + 8 * rt + 4 * ct, 4), 16 * 144 * rt + 64 * ct))
        A('v_lshlrev_b32 %s, 16, %s' % (v(XR + 2), v(XR + 1)))
        A('v_and_b32 %s, 0xffff0000, %s' % (v(XR + 3), v(XR + 1)))
        A('v_and_b32 %s, 0xffff0000, %s' % (v(XR + 1), v(XR)))
        A('v_lshlrev_b32 %s, 16, %s' % (v(XR), v(XR)))
        A('s_waitcnt lgkmcnt(0)')
        A('s_barrier')
        for p in range(4):
            A('ds_read_b128 %s, %s offset:%d' % (v(32 + 4 * p, 4), v(vRr), 4608 * p))
        A('s_xor_b32 %s, %s, %d' % (s(sOT), s(sOT), 256 * KB))
        A('s_add_u32 %s, %s, 1' % (s(sCnt), s(sCnt)))
        A('s_add_u32 %s, %s, 6' % (s(sSeg), s(sSeg)))
        A('s_waitcnt lgkmcnt(0)')
        for c in (0, 2):
            A('v_pk_add_f32 %s, %s, %s' % (v(32 + c, 2), v(32 + c, 2), v(36 + c, 2)))
            A('v_pk_add_f32 %s, %s, %s' % (v(40 + c, 2), v(40 + c, 2), v(44 + c, 2)))
        for c in (0, 2):
            A('v_pk_add_f32 %s, %s, %s' % (v(32 + c, 2), v(32 + c, 2), v(40 + c, 2)))
        for c in (0, 2):
            A('v_pk_add_f32 %s, %s, %s' % (v(32 + c, 2), v(32 + c, 2), v(XR + c, 2)))
        A('v_cvt_pk_bf16_f32 v36, v32, v33')
        A('v_cvt_pk_bf16_f32 v37, v34, v35')
        A('buffer_store_dwordx2 v[36:37], %s, %s, %s offen' % (v(vXo), s(sSB, 4), s(sXo)))
        if cfg.profile == 1:
            stamp(A, cfg, 7)
            A('s_mov_b32 %s, %s' % (s(sSTEP), s(sCnt)))
            stamp_flush(A, cfg, 8, 1, vOne)
        A('s_cmp_lt_u32 %s, 64' % s(sSeg))
        A('s_cbranch_scc1 %s' % top)
        gstamp(A, cfg, 7, vOne)
        A('s_branch L_end')
        A.flush_tail()


def gen_gemm(A, cfg):
    sTile = 62
    A('s_sub_u32 %s, %s, 2' % (s(sGX), s(sGRP)))
    A('s_mov_b32 %s, %s' % (s(sGI), s(sJ)))
    A('s_lshl_b32 %s, %s, 5' % (s(sC_), s(sGX)))
    A('s_add_u32 %s, %s, %s' % (s(sC_), s(sC_), s(sGI)))
    A('s_lshl_b32 %s, %s, 15' % (s(sRES), s(sWAVE)))
    A('s_lshl_b32 %s, %s, 13' % (s(sSPARE), s(sWAVE)))
    A('s_add_u32 %s, %s, %d' % (s(sSPARE), s(sSPARE), LDS_SPARE))
    A('v_lshlrev_b32 %s, 4, v0' % v(vL16))
    A('v_lshlrev_b32 %s, 3, v0' % v(vRes))
    A('v_add_u32 %s, %s, %s' % (v(vSp), s(sSPARE), v(vRes)))
    A('v_add_u32 %s, %s, %s' % (v(vRes), s(sRES), v(vRes)))
    A('v_cmp_eq_u32 vcc, 0, v0')
    A('v_mov_b32 %s, %s' % (v(vOne), hx(OOB)))
    A('s_nop 0')
    A('v_cndmask_b32 %s, %s, 0, vcc' % (v(vOne), v(vOne)))
    gstamp(A, cfg, 0, vOne)
    A('s_mul_i32 %s, %s, 6' % (s(sTile), s(sGI)))
    A('s_add_u32 %s, %s, %s' % (s(sTile), s(sTile), s(sGX)))
    A('s_cmp_lt_u32 %s, 128' % s(sTile))
    A('s_cselect_b32 s63, 1, 0')
    A('s_cselect_b32 %s, 127, %d' % (s(sT0), cfg.dupmask))
    A('s_and_b32 %s, %s, %s' % (s(sTile), s(sTile), s(sT0)))
    srd(A, sSB, sX, 4 * MB)
    A('v_and_b32 v16, 15, v0')
    A('v_lshlrev_b32 v16, 11, v16')
    A('v_lshrrev_b32 v17, 4, v0')
    A('v_lshl_add_u32 v16, v17, 4, v16')
    A('s_lshl_b32 %s, %s, 15' % (s(sT0), s(sTile)))
    A('s_lshl_b32 %s, %s, 9' % (s(sT1), s(sWAVE)))
    A('s_add_u32 %s, %s, %s' % (s(sT0), s(sT0), s(sT1)))
    for i in range(8):
        A('buffer_load_dwordx4 %s, v16, %s, %s offen offset:%d' % (v(32 + 4 * i, 4), s(sSB, 4), s(sT0), 64 * i))
    A('s_lshl_b32 %s, %s, 2' % (s(sT0), s(sWG)))
    A('s_add_u32 %s, %s, %d' % (s(sT0), s(sT0), CT_XCC))
    A('v_mov_b32 v1, %s' % s(sXCC))
    A('buffer_store_dword v1, %s, %s, %s offen sc1' % (v(vOne), s(sWS, 4), s(sT0)))
    A('s_lshl_b32 %s, %s, 7' % (s(sFlagA), s(sC_)))
    A('s_add_u32 %s, %s, %d' % (s(sFlagA), s(sFlagA), CT_G1))
    A('v_mov_b32 v18, 0')
    A('buffer_store_dword v18, %s, %s, %s offen sc1' % (v(vOne), s(sWS, 4), s(sFlagA)))
    A('s_lshl_b32 %s, %s, 8' % (s(sT0), s(sGX)))
    A('s_lshl_b32 %s, %s, 2' % (s(sT1), s(sGI)))
    A('s_add_u32 %s, %s, %s' % (s(sT0), s(sT0), s(sT1)))
    A('s_add_u32 %s, %s, %d' % (s(sT0), s(sT0), CT_OT))
    A('buffer_store_dword v18, %s, %s, %s offen sc1' % (v(vOne), s(sWS, 4), s(sT0)))
    for m in cfg.pf:
        srd(A, sSA, {'o': sWO, 'q': sWQ, 'k': sWK, 'v': sWV}[m], 8 * MB)
        A('s_lshl_b32 %s, %s, 2' % (s(sT0), s(sC_)))
        A('s_add_u32 %s, %s, %s' % (s(sT0), s(sT0), s(sWAVE)))
        A('s_lshl_b32 %s, %s, 10' % (s(sT0), s(sT0)))
        for i in range(11):
            A('buffer_load_dwordx4 %s, %s, %s, %s offen' % (v(128 + 4 * i, 4), v(vL16), s(sSA, 4), s(sT0)))
            A('s_add_u32 %s, %s, %d' % (s(sT0), s(sT0), 768 * KB))
    A('s_lshr_b32 %s, %s, 6' % (s(sT0), s(sC_)))
    A('s_cmp_eq_u32 %s, 1' % s(sT0))
    A('s_cselect_b32 %s, %s, %s' % (s(sSA), s(sWK), s(sWQ)))
    A('s_cselect_b32 %s, %s, %s' % (s(sSA + 1), s(sWK + 1), s(sWQ + 1)))
    A('s_cmp_eq_u32 %s, 2' % s(sT0))
    A('s_cselect_b32 %s, %s, %s' % (s(sSA), s(sWV), s(sSA)))
    A('s_cselect_b32 %s, %s, %s' % (s(sSA + 1), s(sWV + 1), s(sSA + 1)))
    A('s_and_b32 %s, %s, 0xffff' % (s(sSA + 1), s(sSA + 1)))
    A('s_mov_b32 %s, %s' % (s(sSA + 2), hx(8 * MB)))
    A('s_mov_b32 %s, 0x20000' % s(sSA + 3))
    A('s_bfe_u32 %s, %s, 0x50001' % (s(sT1), s(sC_)))
    A('s_lshl_b32 %s, %s, 8' % (s(sT1), s(sT1)))
    A('s_lshl_b32 %s, %s, 6' % (s(sT2), s(sWAVE)))
    A('s_add_u32 %s, %s, %s' % (s(sT2), s(sT2), s(sT1)))
    dense_offsets(A, vPair, True, 8192, sT2)

    def ln(n):
        A('s_waitcnt vmcnt(%d)' % (n + 11 * len(cfg.pf)))
        A('s_barrier')
        counter_arrive(A, 8)
        layernorm(A, cfg, sTile)

    def arrive(n):
        A('s_waitcnt vmcnt(%d)' % (n - cfg.prewin))
        A('s_barrier')
        A('s_lshl_b32 %s, 1, %s' % (s(sT0), s(sTile)))
        A('s_cmp_lt_u32 %s, 16' % s(sTile))
        A('s_cselect_b32 %s, %s, 0' % (s(sT0), s(sT0)))
        A('s_cmp_lg_u32 %s, 0' % s(sWAVE))
        A('s_cbranch_scc1 L_lnarr')
        A('s_mov_b64 exec, 1')
        A('v_mov_b32 v16, 0')
        A('v_mov_b32 v17, %s' % s(sT0))
        A('v_mov_b32 v18, s63')
        A('s_cmp_eq_u32 %s, 0' % s(sT0))
        A('s_cbranch_scc1 L_lnarr1')
        A('global_atomic_or v16, v17, %s sc1' % s(sDBG, 2))
        A.label('L_lnarr1')
        A('s_cmp_eq_u32 s63, 0')
        A('s_cbranch_scc1 L_lnarr2')
        A('global_atomic_add v16, v18, %s offset:4 sc1' % s(sDBG, 2))
        A.label('L_lnarr2')
        A('s_mov_b64 exec, -1')
        A.label('L_lnarr')
        gstamp(A, cfg, 1, vOne)
    weight_loader(A, proj_ops(8192), vRes, vSp, arrive, nslots=39, pre=(cfg.prewin, ln))
    A('s_and_b32 %s, %s, 1' % (s(sProg), s(sC_)))
    A('s_lshr_b32 %s, %s, 6' % (s(sT0), s(sC_)))
    A('s_lshl_b32 %s, %s, 24' % (s(sDst), s(sT0)))
    A('s_add_u32 %s, %s, %s' % (s(sDst), s(sDst), hx(QF)))
    A('s_lshl_b32 %s, %s, 18' % (s(sT1), s(sProg)))
    A('s_add_u32 %s, %s, %s' % (s(sDst), s(sDst), s(sT1)))
    A('s_bfe_u32 %s, %s, 0x50001' % (s(sT1), s(sC_)))
    A('s_lshl_b32 %s, %s, 13' % (s(sT1), s(sT1)))
    A('s_add_u32 %s, %s, %s' % (s(sDst), s(sDst), s(sT1)))
    A('s_mov_b32 %s, %d' % (s(sDstep), 512 * KB))

    def src(sseg):
        A('s_lshl_b32 %s, %s, 16' % (s(sSrc), s(sseg)))
        A('s_lshr_b32 %s, %s, 1' % (s(sT1), s(sWAVE)))
        A('s_lshl_b32 %s, %s, 15' % (s(sT1), s(sT1)))
        A('s_add_u32 %s, %s, %s' % (s(sSrc), s(sSrc), s(sT1)))
        A('s_and_b32 %s, %s, 1' % (s(sT1), s(sWAVE)))
        A('s_lshl_b32 %s, %s, 12' % (s(sT1), s(sT1)))
        A('s_add_u32 %s, %s, %s' % (s(sSrc), s(sSrc), s(sT1)))
        A('s_add_u32 %s, %s, %s' % (s(sSrc), s(sSrc), hx(XNF)))
    src(sProg)
    A('s_mov_b32 %s, %d' % (s(sSstep), 128 * KB - 24 * KB))
    A('s_mov_b32 %s, 31' % s(sIt))
    A('s_mov_b32 %s, 0x80008000' % s(sRelu))
    A('v_mov_b32 %s, %s' % (v(vA), v(vL16)))
    A('v_add_u32 %s, %d, %s' % (v(vA + 1), 64 * KB, v(vA)))
    grid_wait(A, 16, 17, cfg, [(0, 0xffff)])
    A('s_barrier')
    gstamp(A, cfg, 2, vOne)
    A('s_cmp_ge_u32 %s, 128' % s(sC_))
    A('s_cbranch_scc1 L_projv')
    A('s_lshl_b32 %s, %s, 10' % (s(sT1), s(sWAVE)))
    A('s_add_u32 %s, %s, %s' % (s(sDst), s(sDst), s(sT1)))
    A('s_add_u32 %s, %s, 4096' % (s(sDst2), s(sDst)))
    proj_loop(A, cfg, 'qk', True, 1)
    A('s_branch L_ffn1')
    A.label('L_projv')
    A('s_lshl_b32 %s, %s, 11' % (s(sT1), s(sWAVE)))
    A('s_add_u32 %s, %s, %s' % (s(sDst), s(sDst), s(sT1)))
    A('s_add_u32 %s, %s, 1024' % (s(sDst2), s(sDst)))
    proj_loop(A, cfg, 'v', False, 1)
    A.label('L_ffn1')
    gstamp(A, cfg, 3, vOne)
    A('s_cmp_ge_u32 %s, 168' % s(sC_))
    A('s_cbranch_scc1 L_final')
    A('s_mul_i32 s63, %s, 171' % s(sC_))
    A('s_lshr_b32 s63, s63, 10')
    A('s_mul_i32 %s, s63, 6' % s(sT1))
    A('s_sub_u32 %s, %s, %s' % (s(sProg), s(sC_), s(sT1)))
    A('s_cmp_lt_u32 %s, 4' % s(sProg))
    A('s_cselect_b32 %s, 10, 9' % s(sIt))
    srd(A, sSA, sW1, 1024 * 7168)
    A('s_lshl_b32 %s, s63, 8' % s(sT1))
    A('s_lshl_b32 %s, %s, 6' % (s(sT2), s(sWAVE)))
    A('s_add_u32 %s, %s, %s' % (s(sT2), s(sT2), s(sT1)))
    dense_offsets(A, vPair, True, 7168, sT2)
    weight_loader(A, proj_ops(7168), vRes, vSp)
    A('s_mul_i32 %s, %s, %d' % (s(sDst), s(sProg), 224 * KB))
    A('s_lshl_b32 %s, s63, 13' % s(sT1))
    A('s_add_u32 %s, %s, %s' % (s(sDst), s(sDst), s(sT1)))
    A('s_lshl_b32 %s, %s, 11' % (s(sT1), s(sWAVE)))
    A('s_add_u32 %s, %s, %s' % (s(sDst), s(sDst), s(sT1)))
    A('s_add_u32 %s, %s, %s' % (s(sDst), s(sDst), hx(HF)))
    A('s_add_u32 %s, %s, 1024' % (s(sDst2), s(sDst)))
    A('s_mov_b32 %s, %d' % (s(sDstep), 6 * 224 * KB))
    src(sProg)
    A('s_mov_b32 %s, %d' % (s(sSstep), 384 * KB - 24 * KB))
    A('s_mov_b32 %s, 0' % s(sRelu))
    A('s_barrier')
    proj_loop(A, cfg, 'h', True, 0)
    A.label('L_final')
    gstamp(A, cfg, 4, vOne)
    A('s_waitcnt vmcnt(0)')
    A('s_barrier')
    counter_arrive(A, 128)
    final_phase(A, cfg)
```

```python
import sys
from asmlib import *
from layout import *
import chain
from chain import *

NAME = 'parallel_sum__memory_aug_recurrent_mem_tr__dense_activation_relu__prompt_kernel'
HDR = open('parallel_sum__memory_aug_recurrent_mem_tr__dense_activation_relu__prompt.s.ref').read().split('; Override launch')[0]


class Cfg:
    chain_only = False
    gemm_only = False
    profile = False
    dbgt = False
    stamps = ()
    nsteps = 64
    nchain = 64
    ngemm = 192
    poll2 = True
    hint = True
    osleep = 0
    qsleep = 0
    rsleep = (6,)
    dupmask = 31
    nrep = 1
    near = True
    depth = 4
    vdepth = 2
    odepth = 4
    ringat = 4
    mring = 0
    vmat = 2
    dmagap = 0
    oup = 5
    kat = 10
    pf = 'o'
    nt = ''
    otail = False
    prewin = 0
    codepf = False
    adelay = (0, 1, 5, 9)
    nokv = False
    nokm = False
    resetsleep = 2
    rt = False
    pwave = 2


def build(cfg):
    A = Asm()
    A('s_cmp_ge_u32 s2, 256')
    A('s_cbranch_scc1 L_end')
    A('s_load_dwordx8 s[4:11], s[0:1], 0')
    A('s_load_dwordx4 s[12:15], s[0:1], 32')
    A('s_load_dwordx4 s[16:19], s[0:1], 64')
    A('s_load_dwordx4 s[20:23], s[0:1], 80')
    A('s_load_dwordx2 s[24:25], s[0:1], 96')
    A('v_lshrrev_b32 v1, 6, v0')
    A('v_and_b32 v0, 63, v0')
    A('s_getreg_b32 %s, hwreg(HW_REG_XCC_ID, 0, 4)' % s(sXCC))
    A('v_readfirstlane_b32 %s, v1' % s(sWAVE))
    A('s_mov_b32 %s, 0x100000' % s(sBUD))
    if cfg.codepf:
        A('s_getpc_b64 s[34:35]')
        A.label('L_pc')
        A('s_lshr_b32 s32, s2, 3')
        A('s_lshl_b32 s32, s32, 2')
        A('s_add_u32 s32, s32, %s' % s(sWAVE))
        A('s_lshl_b32 s32, s32, 10')
        A('s_min_u32 s32, s32, L_end-L_pc-1024')
        A('v_lshl_add_u32 v1, v0, 4, s32')
        A('global_load_dwordx4 v[252:255], v1, s[34:35]')
    A('s_waitcnt lgkmcnt(0)')
    srd(A, sWS, sWSP, WS_BYTES)
    A('s_and_b32 %s, s2, 7' % s(sGRP))
    A('s_lshr_b32 %s, s2, 3' % s(sJ))
    A('s_cmp_ge_u32 %s, 2' % s(sGRP))
    A('s_cbranch_scc1 L_gemm')
    if cfg.gemm_only:
        A('s_branch L_end')
    else:
        A('s_cmp_lt_u32 %s, 16' % s(sJ))
        A('s_cbranch_scc1 L_qk')
        A('s_sub_u32 %s, %s, 16' % (s(sJ), s(sJ)))
        gen_vo(A, cfg)
        gen_qk(A, cfg)
    A.label('L_gemm')
    if not cfg.chain_only:
        import gemm
        gemm.gen_gemm(A, cfg)
    A.label('L_end')
    A('s_endpgm')
    txt = HDR + '; @launch grid=(256,1,1) block=(256,1,1) lds=163840\n'
    txt += '.amdgcn_target "amdgcn-amd-amdhsa--gfx950"\n.text\n.globl %s\n.p2align 8\n.type %s,@function\n%s:\n' % (NAME, NAME, NAME)
    txt += A.text()
    txt += '''.section .rodata,"a"
.p2align 6
.amdhsa_kernel %s
  .amdhsa_next_free_vgpr 512
  .amdhsa_next_free_sgpr 102
  .amdhsa_accum_offset 256
  .amdhsa_group_segment_fixed_size 0
  .amdhsa_kernarg_size 104
  .amdhsa_user_sgpr_count 2
  .amdhsa_user_sgpr_kernarg_segment_ptr 1
  .amdhsa_system_sgpr_workgroup_id_x 1
  .amdhsa_float_denorm_mode_32 3
.end_amdhsa_kernel
''' % NAME
    return txt


if __name__ == '__main__':
    cfg = Cfg()
    out = sys.argv[1]
    for kv in sys.argv[2:]:
        k, val = kv.split('=')
        setattr(cfg, k, eval(val))
    if cfg.chain_only:
        cfg.ngemm = 0
    if cfg.gemm_only:
        cfg.nchain = 0
    open(out, 'w').write(build(cfg))
```

```python
from common import *

SMF = 'v_smfmac_f32_16x16x64_bf16'
MF = 'v_mfma_f32_16x16x32_bf16'


def wait_bell(A, vbell, sbell, regs, sval, first=()):
    l = A.uid('wb')
    d = len(regs)
    ld = lambda k: A('buffer_load_dword %s, %s, %s, %s offen sc1' % (v(regs[k]), v(vbell), s(sWS, 4), s(sbell)))
    for k in range(d):
        ld(k)
    for k in range(d):
        A.label('%s_%d' % (l, k))
        A('s_waitcnt vmcnt(%d)' % (d - 1))
        A('v_cmp_gt_u32 vcc, %s, %s' % (s(sval), v(regs[k])))
        A('s_cbranch_vccnz %s_r%d' % (l, k))
        for x in first:
            A(x)
        if k < d - 1:
            A('s_branch %s_ok' % l)
            A.label('%s_r%d' % (l, k))
            ld(k)
    A.label(l + '_ok')
    A.ool('%s_r%d:' % (l, d - 1))
    A.ool('buffer_load_dword %s, %s, %s, %s offen sc1' % (v(regs[d - 1]), v(vbell), s(sWS, 4), s(sbell)))
    A.ool('s_sub_u32 %s, %s, 1\ns_cbranch_scc1 L_end\ns_branch %s_0' % (s(sBUD), s(sBUD), l))


def dma_mem(A, vpoll, smem):
    for i in range(4):
        A('buffer_load_dwordx4 %s, %s, %s offen offset:%d sc1 lds' % (v(vpoll), s(sWS, 4), s(smem), 1024 * i))


def nan_net(A, cfg, lbl, back, pre, resume, vA, vpoll, smem, tmp, vt, snan, sver, sm0=None):
    o = A.ool
    o(lbl + ':')
    o('s_mov_b64 %s, 0' % s(snan, 2))
    o('s_mov_b64 vcc, 0')
    o('s_cmp_eq_u32 %s, %s' % (s(sver), s(sSTEP)))
    o('s_cbranch_scc1 %s' % back)
    o('s_mov_b32 %s, %s' % (s(sver), s(sSTEP)))
    if cfg.profile:
        o('s_add_u32 s98, s98, 1')
    if sm0:
        o('s_mov_b32 m0, %s' % s(sm0))
    o(lbl + '_again:')
    o('s_waitcnt vmcnt(0) lgkmcnt(0)')
    o('s_barrier')
    for i in range(4):
        o('buffer_load_dwordx4 %s, %s, %s offen offset:%d sc1 lds' % (v(vpoll), s(sWS, 4), s(smem), 1024 * i))
    o('s_sub_u32 %s, %s, 1\ns_cbranch_scc1 L_end' % (s(sBUD), s(sBUD)))
    o('s_waitcnt vmcnt(0)')
    o('s_barrier')
    o('v_mov_b32 %s, 0' % v(vt))
    for f in range(16):
        o('ds_read_b128 %s, %s offset:%d' % (v(tmp, 4), v(vA), 1024 * f))
        o('s_waitcnt lgkmcnt(0)')
        o('v_max3_u32 %s, %s, %s, %s' % (v(vt), v(vt), v(tmp), v(tmp + 1)))
        o('v_max3_u32 %s, %s, %s, %s' % (v(vt), v(vt), v(tmp + 2), v(tmp + 3)))
    o('v_cmp_eq_u32 vcc, -1, %s' % v(vt))
    o('s_cbranch_vccnz %s_again' % lbl)
    for x in pre:
        o(x)
    o('s_waitcnt lgkmcnt(0)')
    o('s_branch %s' % resume)


def ring(A, dst, reg, delta, stepb):
    mask = 3 * stepb
    A('s_add_u32 %s, %s, %d' % (s(dst), s(reg), (delta % 4) * stepb))
    A('s_and_b32 %s, %s, %d' % (s(dst), s(dst), mask))
    A('s_andn2_b32 %s, %s, %d' % (s(sT2), s(reg), mask))
    A('s_or_b32 %s, %s, %s' % (s(dst), s(dst), s(sT2)))


def ring_adv(A, reg, stepb):
    mask = 3 * stepb
    A('s_add_u32 %s, %s, %d' % (s(sT2), s(reg), stepb))
    A('s_and_b32 %s, %s, %d' % (s(sT2), s(sT2), mask))
    A('s_andn2_b32 %s, %s, %d' % (s(reg), s(reg), mask))
    A('s_or_b32 %s, %s, %s' % (s(reg), s(reg), s(sT2)))


FR = lambda n: 4 * (n & 3) + (n >> 2)


def gen_qk(A, cfg):
    vT = 1; vA = 2; vB = 3; vPoll = 4; vSamp = 5; vQTw = 6; vQTr = 7; vIdx = 8; vBias = 9; vO = 10
    vVM = 11; vL16 = 12; vOne = 13; vKMr = 14; vKMo = 15
    AR, BR, ACC, KX, VX = 16, 32, 56, 72, 104
    ONES, VM, LS = 112, 116, 124
    WK0 = 128
    sMem, sO, sVM, sKF, sVF, sKM, sSeen, sFlag, sG1, sBell = range(50, 60)
    sC, sNC, sRing = 60, 62, 63
    sNan, sVer, sNext, sM0m, sM0k = 64, 66, 67, 68, 69
    KXL = QT + 4 * KB + 128
    QHALF = 2048 + 64
    A.label('L_qk')
    A('s_lshl_b32 %s, %s, 4' % (s(sT1), s(sGRP)))
    A('s_add_u32 %s, %s, %s' % (s(sT1), s(sT1), s(sJ)))
    common_chain_init(A, vB, vKMr, vA, vOne, vIdx)
    gstamp(A, cfg, 0, vOne, True)
    srd(A, sSA, sWK, 8 * MB)
    srd(A, sSB, sWQ, 8 * MB)
    A('s_lshr_b32 %s, %s, 1' % (s(sT0), s(sWAVE)))
    A('s_lshl_b32 %s, %s, 1' % (s(sT2), s(sJ)))
    A('s_add_u32 %s, %s, %s' % (s(sT0), s(sT0), s(sT2)))
    A('s_lshl_b32 %s, %s, 10' % (s(sT0), s(sT0)))
    A('s_and_b32 %s, %s, 1' % (s(sT2), s(sWAVE)))
    A('s_lshl_b32 %s, %s, 7' % (s(sT2), s(sT2)))
    A('s_add_u32 %s, %s, %s' % (s(sT0), s(sT0), s(sT2)))
    A('v_lshlrev_b32 %s, 4, v0' % v(vL16))
    A('v_add_u32 %s, %s, %s' % (v(vO), s(sT0), v(vL16)))
    A('v_and_b32 v16, 8, v0')
    A('v_lshlrev_b32 v16, 27, v16')
    A('v_or_b32 %s, %s, v16' % (v(vO), v(vO)))
    A('v_lshrrev_b32 v17, 4, v0')
    A('v_lshlrev_b32 v17, 7, v17')
    A('v_and_b32 v18, 7, v0')
    A('v_lshl_add_u32 v17, v18, 4, v17')
    A('s_lshl_b32 %s, %s, 9' % (s(sT0), s(sWAVE)))
    A('v_add_u32 v17, %s, v17' % s(sT0))
    A('v_or_b32 %s, v17, v16' % v(vKMo))
    A('s_lshl_b32 %s, %s, 17' % (s(sO), s(sGRP)))
    A('s_add_u32 %s, %s, %d' % (s(sO), s(sO), OR_))
    A('s_lshl_b32 %s, %s, 16' % (s(sMem), s(sGRP)))
    A('s_add_u32 %s, %s, %d' % (s(sMem), s(sMem), MEMR))
    A('s_lshl_b32 %s, %s, 13' % (s(sVM), s(sT1)))
    A('s_add_u32 %s, %s, %d' % (s(sVM), s(sVM), VMR))
    A('s_lshl_b32 %s, %s, 13' % (s(sKF), s(sT1)))
    A('s_add_u32 %s, %s, %s' % (s(sVF), s(sKF), hx(VF)))
    A('s_add_u32 %s, %s, %s' % (s(sKF), s(sKF), hx(KF)))
    A('s_lshl_b32 %s, %s, 11' % (s(sT0), s(sWAVE)))
    A('s_add_u32 %s, %s, %s' % (s(sVF), s(sVF), s(sT0)))
    A('s_lshl_b32 %s, %s, 11' % (s(sKM), s(sT1)))
    A('s_add_u32 %s, %s, %s' % (s(sKM), s(sKM), hx(KMG)))
    A('s_lshl_b32 %s, %s, 7' % (s(sFlag), s(sT1)))
    A('s_add_u32 %s, %s, %d' % (s(sFlag), s(sFlag), CT_KM))
    A('s_lshl_b32 %s, %s, 10' % (s(sRing), s(sGRP)))
    A('s_lshl_b32 %s, %s, 8' % (s(sBell), s(sWAVE)))
    A('s_add_u32 %s, %s, %s' % (s(sBell), s(sBell), s(sRing)))
    A('s_add_u32 %s, %s, %d' % (s(sBell), s(sBell), CT_BELL))
    A('s_lshr_b32 %s, %s, 2' % (s(sT0), s(sJ)))
    A('s_lshl_b32 %s, %s, 8' % (s(sT0), s(sT0)))
    A('s_add_u32 %s, %s, %s' % (s(sRing), s(sRing), s(sT0)))
    A('s_and_b32 %s, %s, 3' % (s(sT0), s(sJ)))
    A('s_lshl_b32 %s, %s, 4' % (s(sT0), s(sT0)))
    A('s_add_u32 %s, %s, %s' % (s(sRing), s(sRing), s(sT0)))
    A('s_lshl_b32 %s, %s, 2' % (s(sT0), s(sWAVE)))
    A('s_add_u32 %s, %s, %s' % (s(sRing), s(sRing), s(sT0)))
    A('s_add_u32 %s, %s, %d' % (s(sRing), s(sRing), CT_BELL + 2048))
    A('s_lshl_b32 %s, %s, 8' % (s(sG1), s(sT1)))
    A('s_add_u32 %s, %s, %d' % (s(sG1), s(sG1), CT_G1 + 64 * 128))
    A('s_mov_b32 %s, %s' % (s(sC), hx(f2u(SC))))
    A('s_mov_b32 %s, %s' % (s(sC + 1), hx(f2u(SC))))
    A('s_mov_b32 %s, %s' % (s(sNC), hx(f2u(-SC))))
    lane_consts(A, 16, 17, 18)
    sparse_rowlane_mem(A, 19, 16, 17, 25)
    A('s_lshl_b32 %s, %s, 8' % (s(sT0), s(sT1)))
    A('s_lshl_b32 %s, %s, 6' % (s(sT2), s(sWAVE)))
    A('s_add_u32 %s, %s, %s' % (s(sT2), s(sT2), s(sT0)))
    vPair = vPoll
    dma_offsets(A, vPair, 19, 18, 25, 13, sT2)
    ops = []
    for m in range(2):
        for ks in range(16):
            for hb in range(2):
                for u in range(2):
                    q = 4 * hb + 2 * u
                    ops.append(dict(nt='kq'[m] in cfg.nt, srd=sSB if m else sSA, voff=vPair, soff=(64 * ks + 32 * hb + 2 * u) * 8192,
                                    reads=[(v(WK0 + ks * 8 + q, 2), 0), (('res', 2 * ks + hb, u), 512)] if m else
                                    [(a((ks * 2 + t) * 8 + q, 2), 512 * t) for t in range(2)]))

    def init(n):
        publish_xcc(A, vOne)
        for i in range(4):
            A('v_mov_b32 %s, -1' % v(20 + i))
        for sl in range(4):
            A('s_add_u32 %s, %s, %d' % (s(sT0), s(sO), sl * 32 * KB))
            A('buffer_store_dwordx4 v[20:23], %s, %s, %s offen sc1' % (v(vO), s(sWS, 4), s(sT0)))
        A('v_mov_b32 v24, 0')
        A('buffer_store_dword v24, %s, %s, %s offen sc1' % (v(vOne), s(sWS, 4), s(sFlag)))
        A('buffer_store_dword v24, %s, %s, %s offen sc1' % (v(vOne), s(sWS, 4), s(sRing)))
    weight_loader(A, ops, vB, vKMr, init, resident=32, vfin=vSamp, covered=lambda: grid_arrive(A, vT, vSamp))
    A('v_mov_b32 %s, %s' % (v(vB), v(vSamp)))
    gstamp(A, cfg, 1, vOne, True)
    A('s_lshl_b32 %s, %s, 12' % (s(sT0), s(sWAVE)))
    A('v_add_u32 %s, %s, %s' % (v(vPoll), s(sT0), v(vL16)))
    A('v_and_b32 %s, 7, v0' % v(vSamp))
    A('v_lshlrev_b32 %s, 2, %s' % (v(vSamp), v(vSamp)))
    A('s_add_u32 %s, %s, %d' % (s(sM0m), s(sT0), MS))
    A('s_lshr_b32 %s, %s, 1' % (s(sT0), s(sT0)))
    A('s_add_u32 %s, %s, %d' % (s(sM0k), s(sT0), KXL))
    A('s_add_u32 %s, %s, %s' % (s(sKF), s(sKF), s(sT0)))
    A('v_lshrrev_b32 v16, 5, v0')
    A('v_lshlrev_b32 v16, 4, v16')
    A('v_and_b32 v17, 15, v0')
    A('v_add_u32 v16, v16, v17')
    A('v_lshlrev_b32 v16, 3, v16')
    A('v_bfe_u32 v17, v0, 4, 1')
    A('v_mul_u32_u24 v17, %d, v17' % QHALF)
    A('v_add_u32 v16, v17, v16')
    A('s_lshl_b32 %s, %s, 8' % (s(sT0), s(sWAVE)))
    A('s_add_u32 %s, %s, %d' % (s(sT0), s(sT0), QT))
    A('v_add_u32 %s, %s, v16' % (v(vQTw), s(sT0)))
    A('v_lshrrev_b32 v16, 2, v0')
    A('v_lshlrev_b32 v16, 3, v16')
    A('v_and_b32 v17, 1, v0')
    A('v_mul_u32_u24 v17, %d, v17' % QHALF)
    A('v_add_u32 v16, v17, v16')
    A('v_add_u32 %s, %d, v16' % (v(vQTr), QT))
    A('v_add_u32 %s, %s, v16' % (v(vKMr), s(sT0)))
    A('v_cmp_gt_u32 vcc, 32, v0')
    A('v_mov_b32 %s, 0xff800000' % v(vBias))
    A('s_nop 0')
    A('v_cndmask_b32 %s, %s, 0, vcc' % (v(vBias), v(vBias)))
    A('v_and_b32 v16, 31, v0')
    A('v_lshlrev_b32 v16, 3, v16')
    A('s_lshl_b32 %s, %s, 9' % (s(sT0), s(sWAVE)))
    A('v_add_u32 %s, %s, v16' % (v(vVM), s(sT0)))
    for i in range(4):
        A('v_mov_b32 %s, 0x3f803f80' % v(ONES + i))
    for t in range(2):
        A('v_mov_b32 %s, 0' % v(VM + 4 * t + 2))
        A('v_mov_b32 %s, 0' % v(VM + 4 * t + 3))
    grid_wait(A, 16, 17, cfg, [(192, cfg.nchain), (8, cfg.ngemm)])
    group_local(A, 16, 17)
    A('s_barrier')
    A('s_mov_b32 %s, 0' % s(sSTEP))
    A('s_mov_b32 %s, 0' % s(sSeen))
    A('s_mov_b32 %s, -1' % s(sVer))
    A('s_mov_b32 s98, 0')

    def kv_ready(nxt):
        ok, l = A.uid('kvok'), A.uid('kvp')
        A('s_add_u32 %s, %s, %d' % (s(sT1), s(sSTEP), nxt))
        A('s_min_u32 %s, %s, 63' % (s(sT1), s(sT1)))
        A.label(l)
        A('s_cmp_lt_u32 %s, %s' % (s(sT1), s(sSeen)))
        A('s_cbranch_scc1 %s' % ok)
        A('v_and_b32 v16, 1, v0')
        A('v_bfe_u32 v17, v0, 1, 1')
        A('v_lshlrev_b32 v16, 7, v16')
        A('v_lshl_add_u32 v16, v17, 13, v16')
        A('buffer_load_dword v17, v16, %s, %s offen sc1' % (s(sWS, 4), s(sG1)))
        A('s_waitcnt vmcnt(0)')
        A('v_readlane_b32 %s, v17, 0' % s(sSeen))
        for k in range(1, 4):
            A('v_readlane_b32 %s, v17, %d' % (s(sT0), k))
            A('s_min_u32 %s, %s, %s' % (s(sSeen), s(sSeen), s(sT0)))
        spin_fail(A)
        A('s_branch %s' % l)
        A.label(ok)

    kdma = ['buffer_load_dwordx4 %s, %s, %s offen offset:%d sc1 lds' % (v(vL16), s(sWS, 4), s(sKF), 1024 * i) for i in range(2)]

    def fetch_kv():
        for i in range(2):
            A('buffer_load_dwordx4 %s, %s, %s, %s offen offset:%d sc1' % (v(VX + 4 * i, 4), v(vL16), s(sWS, 4), s(sVF), 1024 * i))
        A('s_mov_b32 m0, %s' % s(sM0m))
        A('s_barrier')
        A('v_add_u32 v16, %d, %s' % (KXL, v(vL16)))
        for i in range(8):
            A('ds_read_b128 %s, v16 offset:%d' % (v(KX + 4 * i, 4), 1024 * i))
        A('s_add_u32 %s, %s, %d' % (s(sKF), s(sKF), 256 * KB))
        A('s_add_u32 %s, %s, %d' % (s(sVF), s(sVF), 256 * KB))

    def bread(n):
        return ['ds_read_b128 %s, %s offset:%d' % (v(BR + 8 * (n % 3) + 4 * q, 4), v(vB), FR(n) * 2048 + 1024 * q) for q in range(2)]

    def aread(n):
        return 'ds_read_b128 %s, %s offset:%d' % (v(AR + 4 * (n % 4), 4), v(vA), FR(n) * 1024)

    kv_ready(1)
    A('s_mov_b32 m0, %s' % s(sM0k))
    A('s_nop 0')
    A(kdma[0]); A(kdma[1])
    A('s_waitcnt vmcnt(0)')
    fetch_kv()
    gstamp(A, cfg, 2, vOne, True)
    A('s_cmp_eq_u32 %s, 1' % s(sLOCAL))
    A('s_cbranch_scc0 L_qk_step_g')
    for tag, sfx in (('l', ''), ('g', ' sc1')):
        step = 'L_qk_step_' + tag
        A.label(step)
        stamp(A, cfg, 0)
        pre = ['v_mov_b32 %s, 0' % v(ACC + i) for i in range(16)] + bread(0) + bread(1) + bread(2)
        RB = 'buffer_store_dword v71, %s, %s, %s offen%s' % (v(vOne), s(sWS, 4), s(sRing), sfx)
        for x in pre:
            A(x)
        if cfg.profile == 1 or 12 in cfg.stamps:
            A('s_waitcnt vmcnt(0)')
            stamp(A, cfg, 12)
        A('s_add_u32 %s, %s, 1' % (s(sNext), s(sSTEP)))
        A('s_waitcnt lgkmcnt(0)')
        stamp(A, cfg, 10)
        if cfg.qsleep:
            A('s_sleep %d' % cfg.qsleep)
        dm = ['buffer_load_dwordx4 %s, %s, %s offen offset:%d sc1 lds' % (v(vPoll), s(sWS, 4), s(sMem), 1024 * i) for i in range(4)]
        wait_bell(A, vSamp, sBell, [124, 125, 126, 127][:cfg.depth], sSTEP, dm[:1])
        stamp(A, cfg, 1)
        if cfg.dmagap:
            A('s_sleep %d' % cfg.dmagap)
        for x in dm[1:]:
            A(x)
        A('s_waitcnt vmcnt(3)')
        A.label(step + '_go')
        A('s_barrier')
        stamp(A, cfg, 4)
        for n in range(4):
            A(aread(n))
        q = ['a0', 'a1', 'a2', 'a3']
        when = {n: max(n - 3, cfg.adelay[n // 4]) for n in range(4, 16)}
        for n in range(16):
            ks = FR(n)
            need = max(q.index('a%d' % n), max([i for i, x in enumerate(q) if x == 'b%d' % n] + [0]))
            A('s_waitcnt lgkmcnt(%d)' % (len(q) - 1 - need))
            Aop = v(AR + 4 * (n % 4), 4)
            mq1 = '%s %s, %s, %s, %s' % (SMF, v(ACC + 4, 4), Aop, v(BR + 8 * (n % 3), 8), v(vIdx))
            mk0 = '%s %s, %s, %s, %s' % (SMF, v(ACC + 8, 4), Aop, a(ks * 16, 8), v(vIdx))
            mk1 = '%s %s, %s, %s, %s' % (SMF, v(ACC + 12, 4), Aop, a(ks * 16 + 8, 8), v(vIdx))
            mq0 = '%s %s, %s, %s, %s' % (SMF, v(ACC, 4), Aop, v(WK0 + ks * 8, 8), v(vIdx))
            if n + 3 < 16:
                br = bread(n + 3)
                ar = [m for m in range(4, 16) if when[m] == n]
                A(mq1)
                for m in ar:
                    assert m - 4 < n
                    if m % 4 == 0:
                        A('s_waitcnt vmcnt(%d)' % (3 - m // 4 + min(2, max(0, n - cfg.kat))))
                        A('s_barrier')
                    A(aread(m))
                    q.append('a%d' % m)
                A(mq0)
                A(br[0])
                A(mk0)
                A(br[1])
                if n == cfg.kat:
                    A('s_mov_b32 m0, %s' % s(sM0k))
                A(mk1)
                if n in (cfg.kat, cfg.kat + 1):
                    A(kdma[n - cfg.kat])
                q += ['b%d' % (n + 3)] * 2
            else:
                A(mq0); A(mq1); A(mk0); A(mk1)
        stamp(A, cfg, 5)
        for base, off in ((ACC, 0), (ACC + 8, 1024)):
            for r in range(4):
                A('v_permlane32_swap_b32 %s, %s' % (v(base + r), v(base + 4 + r)))
            for r in (0, 2):
                A('v_pk_add_f32 %s, %s, %s' % (v(base + r, 2), v(base + r, 2), v(base + 4 + r, 2)))
            A('v_cvt_pk_bf16_f32 %s, %s, %s' % (v(base + 4), v(base), v(base + 1)))
            A('v_cvt_pk_bf16_f32 %s, %s, %s' % (v(base + 5), v(base + 2), v(base + 3)))
            A('ds_write_b64 %s, %s offset:%d' % (v(vQTw), v(base + 4, 2), off))
        A('v_cmp_u_f32 vcc, %s, %s' % (v(ACC), v(ACC + 1)))
        A('v_cmp_u_f32 %s, %s, %s' % (s(sNan, 2), v(ACC + 2), v(ACC + 3)))
        A('s_waitcnt lgkmcnt(0)')
        A('s_barrier')
        stamp(A, cfg, 2)
        QFR, KFR = 16, 32
        A.label(step + '_ok')
        nan_net(A, cfg, step + '_nan', step + '_ok', pre, step + '_go', vA, vPoll, sMem, AR, vT, sNan, sVer, sM0m)
        S = ACC
        M, M2 = 68, 69
        PT, PM = 48, 52
        vml = ['buffer_load_dwordx2 %s, %s, %s, %s offen offset:%d sc1' % (v(VM + 4 * t, 2), v(vVM), s(sWS, 4), s(sVM), 256 * t) for t in range(2)]
        rd = lambda m, ks: ['ds_read_b64_tr_b16 %s, %s offset:%d' % (v((QFR, KFR)[m] + 4 * ks + 2 * u, 2), v(vQTr), 1024 * m + (32 * ks + 16 * u) * 8) for u in range(2)]
        tok = lambda jt, ks: '%s %s, %s, %s, %s' % (MF, v(S + 4 * jt, 4), v(KX + 16 * jt + 4 * ks, 4), v(QFR + 4 * ks, 4), v(S + 4 * jt, 4) if ks else '0')
        mem = lambda ks: '%s %s, %s, %s, %s' % (MF, v(S + 8, 4), v(KFR + 4 * ks, 4), v(QFR + 4 * ks, 4), v(S + 8, 4) if ks else '0')
        for x in rd(0, 0) + rd(0, 1) + rd(1, 0):
            A(x)
        A('s_or_b64 vcc, vcc, %s' % s(sNan, 2))
        A('s_cmp_eq_u32 %s, %d' % (s(sSTEP), cfg.nsteps - 1))
        seq = [(4, tok(0, 0), rd(0, 2)), (None, tok(1, 0), rd(0, 3)), (6, tok(0, 1), rd(1, 1)), (None, tok(1, 1), rd(1, 2)),
               (8, mem(0), rd(1, 3)), (8, tok(0, 2), ['s_cbranch_vccnz %s_nan' % step]), (None, tok(1, 2), ['s_cbranch_scc1 L_qk_last']),
               (4, mem(1), ['v_mov_b32 %s, 0' % v(PM + 2), 'v_mov_b32 %s, 0' % v(PM + 3)]),
               (None, tok(0, 3), ['v_mov_b32 v71, %s' % s(sNext)]), (2, tok(1, 3), []), (None, mem(2), [vml[0]]), (0, mem(3), [vml[1]])]
        for w, m, fill in seq:
            if w is not None:
                A('s_waitcnt lgkmcnt(%d)' % w)
            A(m)
            for x in fill:
                A(x)
        stamp(A, cfg, 9)
        A('v_max3_f32 %s, %s, %s, %s' % (v(M), v(S), v(S + 1), v(S + 2)))
        A('v_max3_f32 %s, %s, %s, %s' % (v(M), v(M), v(S + 3), v(S + 4)))
        A('v_max3_f32 %s, %s, %s, %s' % (v(M), v(M), v(S + 5), v(S + 6)))
        A('v_max_f32 %s, %s, %s' % (v(M), v(M), v(S + 7)))
        A('s_nop 2')
        A('v_max3_f32 %s, %s, %s, %s' % (v(M), v(M), v(S + 8), v(S + 9)))
        A('v_max3_f32 %s, %s, %s, %s' % (v(M2), v(M), v(S + 10), v(S + 11)))
        A('v_max3_f32 %s, %s, %s, %s' % (v(M), v(M), v(S + 10), v(S + 11)))
        A('s_nop 1')
        A('v_permlane32_swap_b32 %s, %s' % (v(M), v(M2)))
        A('v_max_f32 %s, %s, %s' % (v(70), v(M), v(M2)))
        A('v_max_f32 %s, %s, %s' % (v(M), v(M), v(M2)))
        A('s_nop 1')
        A('v_permlane16_swap_b32 %s, %s' % (v(M), v(70)))
        A('v_max_f32 %s, %s, %s' % (v(M), v(M), v(70)))
        A('v_mul_f32 %s, %s, %s' % (v(M), s(sNC), v(M)))
        for i in range(0, 8, 2):
            A('v_pk_fma_f32 %s, %s, %s, %s op_sel_hi:[1,1,0]' % (v(S + i, 2), v(S + i, 2), s(sC, 2), v(M, 2)))
        A('v_add_f32 %s, %s, %s' % (v(70), v(M), v(vBias)))
        if cfg.ringat == 1:
            A(RB)
        for i in range(8):
            A('v_exp_f32 %s, %s' % (v(S + i), v(S + i)))
            if i in (2, 4, 6):
                A('v_cvt_pk_bf16_f32 %s, %s, %s' % (v(PT + i // 2 - 1), v(S + i - 2), v(S + i - 1)))
        A('v_pk_fma_f32 %s, %s, %s, %s op_sel_hi:[1,1,0]' % (v(S + 8, 2), v(S + 8, 2), s(sC, 2), v(70, 2)))
        A('v_cvt_pk_bf16_f32 %s, %s, %s' % (v(PT + 3), v(S + 6), v(S + 7)))
        A('v_pk_fma_f32 %s, %s, %s, %s op_sel_hi:[1,1,0]' % (v(S + 10, 2), v(S + 10, 2), s(sC, 2), v(70, 2)))
        A('v_exp_f32 %s, %s' % (v(S + 8), v(S + 8)))
        OA = 24
        A('%s %s, %s, %s, 0' % (MF, v(LS, 4), v(ONES, 4), v(PT, 4)))
        if cfg.ringat == 5:
            A(RB)
        A('v_exp_f32 %s, %s' % (v(S + 9), v(S + 9)))
        A('%s %s, %s, %s, 0' % (MF, v(OA, 4), v(VX, 4), v(PT, 4)))
        A('v_exp_f32 %s, %s' % (v(S + 10), v(S + 10)))
        A('%s %s, %s, %s, 0' % (MF, v(OA + 4, 4), v(VX + 4, 4), v(PT, 4)))
        if cfg.ringat == 4:
            A(RB)
        A('v_exp_f32 %s, %s' % (v(S + 11), v(S + 11)))
        l, d = A.uid('vm'), A.uid('vmd')
        stamp(A, cfg, 7)
        A('s_waitcnt vmcnt(%d)' % (0 if cfg.ringat in (2, 3) else 1))
        A.label(l)
        A('v_max_u32 %s, %s, %s' % (v(vT), v(VM), v(VM + 4)))
        A('v_cmp_eq_u32 vcc, -1, %s' % v(vT))
        A('v_cvt_pk_bf16_f32 %s, %s, %s' % (v(PM), v(S + 8), v(S + 9)))
        A('v_cvt_pk_bf16_f32 %s, %s, %s' % (v(PM + 1), v(S + 10), v(S + 11)))
        A('s_nop 0')
        A('s_cbranch_vccnz %s' % d)
        A.ool(d + ':')
        for t in range(2):
            A.ool('buffer_load_dwordx2 %s, %s, %s, %s offen offset:%d sc1' % (v(VM + 4 * t, 2), v(vVM), s(sWS, 4), s(sVM), 256 * t))
        A.ool('s_sub_u32 %s, %s, 1\ns_cbranch_scc1 L_end\ns_waitcnt vmcnt(0)\ns_branch %s' % (s(sBUD), s(sBUD), l))
        stamp(A, cfg, 8)
        A('%s %s, %s, %s, %s' % (MF, v(LS, 4), v(ONES, 4), v(PM, 4), v(LS, 4)))
        for t in range(2):
            A('%s %s, %s, %s, %s' % (MF, v(OA + 4 * t, 4), v(VM + 4 * t, 4), v(PM, 4), v(OA + 4 * t, 4)))
        A(RB if cfg.ringat == 2 else 's_nop 0')
        A('v_rcp_f32 %s, %s' % (v(M), v(LS)))
        A('s_nop 1')
        for i in range(0, 4, 2):
            A('v_pk_mul_f32 %s, %s, %s op_sel_hi:[1,0]' % (v(OA + i, 2), v(OA + i, 2), v(M, 2)))
        A('v_cvt_pk_bf16_f32 %s, %s, %s' % (v(OA), v(OA), v(OA + 1)))
        A('v_cvt_pk_bf16_f32 %s, %s, %s' % (v(OA + 1), v(OA + 2), v(OA + 3)))
        for i in range(4, 8, 2):
            A('v_pk_mul_f32 %s, %s, %s op_sel_hi:[1,0]' % (v(OA + i, 2), v(OA + i, 2), v(M, 2)))
        A('v_min_u32 %s, -2, %s' % (v(OA), v(OA)))
        A('v_cvt_pk_bf16_f32 %s, %s, %s' % (v(OA + 2), v(OA + 4), v(OA + 5)))
        A('v_cvt_pk_bf16_f32 %s, %s, %s' % (v(OA + 3), v(OA + 6), v(OA + 7)))
        A('buffer_store_dwordx4 %s, %s, %s, %s offen%s' % (v(OA, 4), v(vO), s(sWS, 4), s(sO), sfx))
        if cfg.ringat == 3:
            A(RB)
        stamp(A, cfg, 3)
        for u in range(2):
            A('ds_read_b64_tr_b16 %s, %s offset:%d' % (v(32 + 2 * u, 2), v(vKMr), 1024 + 128 * u))
        for i in range(4):
            A('v_mov_b32 %s, -1' % v(36 + i))
        ring(A, sT0, sO, -1, 32 * KB)
        A('buffer_store_dwordx4 v[36:39], %s, %s, %s offen%s' % (v(vO), s(sWS, 4), s(sT0), sfx))
        A('v_mov_b32 %s, %s' % (v(40), s(sSTEP)))
        A('buffer_store_dword v40, %s, %s, %s offen sc1' % (v(vOne), s(sWS, 4), s(sFlag)))
        A('s_waitcnt lgkmcnt(0)')
        if not cfg.nokm:
            A('buffer_store_dwordx4 v[32:35], %s, %s, %s offen sc1' % (v(vKMo), s(sWS, 4), s(sKM)))
        A('s_add_u32 %s, %s, %d' % (s(sKM), s(sKM), 64 * KB))
        fetch_kv()
        kv_ready(2)
        stamp_flush(A, cfg, 15, vT, vOne)
        for reg, stepb in ((sO, 32 * KB), (sMem, 16 * KB), (sVM, 2 * KB)):
            ring_adv(A, reg, stepb)
        A('s_add_u32 %s, %s, 1' % (s(sSTEP), s(sSTEP)))
        A('s_branch %s' % step)
        A.flush_tail()
    A.label('L_qk_last')
    for u in range(2):
        A('ds_read_b64_tr_b16 %s, %s offset:%d' % (v(32 + 2 * u, 2), v(vKMr), 1024 + 128 * u))
    A('s_waitcnt lgkmcnt(0)')
    A('buffer_store_dwordx4 v[32:35], %s, %s, %s offen sc1' % (v(vKMo), s(sWS, 4), s(sKM)))
    A('s_waitcnt vmcnt(0)')
    A('s_barrier')
    gstamp(A, cfg, 3, vOne, True)
    A('v_mov_b32 v40, %d' % cfg.nsteps)
    A('buffer_store_dword v40, %s, %s, %s offen sc1' % (v(vOne), s(sWS, 4), s(sFlag)))
    A('s_branch L_end')


def gen_vo(A, cfg):
    vT = 1; vA = 2; vB = 3; vPoll = 4; vSamp = 5; vRw = 6; vRr = 7; vIdx = 8; vT16 = 9; vT8 = 10
    vVM = 11; vOp = 12; vOne = 13; vSp = 14; vRw2 = 15
    ACC, AR, SW = 16, 48, 64
    OP = 32
    WV0 = 128
    WV1 = 192
    sMem, sO, sVM, sVMG, sPart, sRem, sFlag, sO2, sMemW, sBell, sR0, sR1, sR2, sSel = range(50, 64)
    sNan, sVer, sNext, sRing, sBellO = 64, 66, 67, 26 + 1, 96
    A.label('L_vo')
    A('s_lshl_b32 %s, %s, 4' % (s(sT1), s(sGRP)))
    A('s_add_u32 %s, %s, %s' % (s(sT1), s(sT1), s(sJ)))
    common_chain_init(A, vB, vSp, vA, vOne, vIdx)
    gstamp(A, cfg, 0, vOne, True)
    srd(A, sSA, sWV, 8 * MB)
    srd(A, sSB, sWO, 8 * MB)
    A('s_and_b32 %s, %s, 1' % (s(sT0), s(sWAVE)))
    A('s_lshl_b32 %s, %s, 6' % (s(sT0), s(sT0)))
    A('v_add_u32 v16, %s, v0' % s(sT0))
    A('v_lshlrev_b32 %s, 4, v16' % v(vT16))
    A('v_lshlrev_b32 %s, 3, v16' % v(vT8))
    A('s_lshl_b32 %s, %s, 16' % (s(sMem), s(sGRP)))
    A('s_add_u32 %s, %s, %d' % (s(sMem), s(sMem), MEMR))
    A('s_lshl_b32 %s, %s, 10' % (s(sT0), s(sJ)))
    A('s_add_u32 %s, %s, %s' % (s(sMemW), s(sMem), s(sT0)))
    A('s_lshl_b32 %s, %s, 17' % (s(sO), s(sGRP)))
    A('s_add_u32 %s, %s, %d' % (s(sO), s(sO), OR_))
    A('s_lshl_b32 %s, %s, 13' % (s(sVM), s(sT1)))
    A('s_add_u32 %s, %s, %d' % (s(sVM), s(sVM), VMR))
    A('s_lshl_b32 %s, %s, 11' % (s(sVMG), s(sT1)))
    A('s_add_u32 %s, %s, %s' % (s(sVMG), s(sVMG), hx(VMG)))
    A('s_lshl_b32 %s, %s, 16' % (s(sRem), s(sT1)))
    A('s_xor_b32 %s, %s, %d' % (s(sPart), s(sRem), 16 << 16))
    A('s_add_u32 %s, %s, %s' % (s(sPart), s(sPart), hx(PART)))
    A('s_add_u32 %s, %s, %s' % (s(sRem), s(sRem), hx(PART)))
    A('s_lshl_b32 %s, %s, 7' % (s(sFlag), s(sT1)))
    A('s_add_u32 %s, %s, %d' % (s(sFlag), s(sFlag), CT_VM))
    A('s_and_b32 %s, %s, 1' % (s(sSel), s(sWAVE)))
    A('s_lshl_b32 %s, %s, 13' % (s(sSel), s(sSel)))
    A('s_lshr_b32 %s, %s, 1' % (s(sT0), s(sWAVE)))
    A('s_lshl_b32 %s, %s, 10' % (s(sT0), s(sT0)))
    A('s_add_u32 %s, %s, %s' % (s(sSel), s(sSel), s(sT0)))
    A('s_add_u32 %s, %s, %s' % (s(sSel), s(sSel), s(sRem)))
    A('s_add_u32 %s, %s, %d' % (s(sSel), s(sSel), 32 * KB))
    A('s_lshl_b32 %s, %s, 10' % (s(sRing), s(sGRP)))
    A('s_lshl_b32 %s, %s, 8' % (s(sBell), s(sWAVE)))
    A('s_add_u32 %s, %s, %s' % (s(sBell), s(sBell), s(sRing)))
    A('s_add_u32 %s, %s, %d' % (s(sBell), s(sBell), CT_BELL))
    A('s_add_u32 %s, %s, 2048' % (s(sBellO), s(sBell)))
    A('s_lshr_b32 %s, %s, 2' % (s(sT0), s(sJ)))
    A('s_lshl_b32 %s, %s, 8' % (s(sT0), s(sT0)))
    A('s_add_u32 %s, %s, %s' % (s(sRing), s(sRing), s(sT0)))
    A('s_and_b32 %s, %s, 3' % (s(sT0), s(sJ)))
    A('s_lshl_b32 %s, %s, 3' % (s(sT0), s(sT0)))
    A('s_add_u32 %s, %s, %s' % (s(sRing), s(sRing), s(sT0)))
    A('s_and_b32 %s, %s, 1' % (s(sT0), s(sWAVE)))
    A('s_lshl_b32 %s, %s, 2' % (s(sT0), s(sT0)))
    A('s_add_u32 %s, %s, %s' % (s(sRing), s(sRing), s(sT0)))
    A('s_add_u32 %s, %s, %d' % (s(sRing), s(sRing), CT_BELL))
    A('s_lshl_b32 %s, %s, 9' % (s(sT0), s(sWAVE)))
    A('v_lshlrev_b32 %s, 3, v0' % v(vVM))
    A('v_add_u32 %s, %s, %s' % (v(vVM), s(sT0), v(vVM)))
    A('v_lshrrev_b32 v17, 4, v16')
    A('v_lshlrev_b32 v17, 3, v17')
    A('v_and_b32 v18, 1, v0')
    A('v_lshl_add_u32 v17, v18, 2, v17')
    A('v_bfe_u32 v18, v0, 1, 3')
    A('v_mul_u32_u24 v19, 320, v18')
    A('v_lshl_add_u32 v19, v17, 2, v19')
    A('v_add_u32 %s, %d, v19' % (v(vRr), RED))
    A('v_lshlrev_b32 v18, 11, v18')
    A('v_lshl_add_u32 v17, v17, 1, v18')
    A('s_lshl_b32 %s, %s, 7' % (s(sT0), s(sJ)))
    A('v_add_u32 v17, %s, v17' % s(sT0))
    A('global_load_dwordx2 v[28:29], v17, %s' % s(sMEM0, 2))
    lane_consts(A, 16, 17, 24)
    sparse_rowlane_mem(A, 22, 16, 17, 25)
    A('s_lshl_b32 %s, %s, 8' % (s(sT0), s(sT1)))
    A('s_lshl_b32 %s, %s, 6' % (s(sT2), s(sWAVE)))
    A('s_add_u32 %s, %s, %s' % (s(sT2), s(sT2), s(sT0)))
    vPair, vPairO = vPoll, vOp
    dma_offsets(A, vPair, 22, 24, 25, 13, sT2)
    sparse_rowlane_o(A, 22, 16, 17, 25)
    A('s_lshl_b32 %s, %s, 22' % (s(sT0), s(sGRP)))
    A('s_lshl_b32 %s, %s, 20' % (s(sT2), s(sWAVE)))
    A('s_add_u32 %s, %s, %s' % (s(sT0), s(sT0), s(sT2)))
    A('s_lshl_b32 %s, %s, 7' % (s(sT2), s(sJ)))
    A('s_add_u32 %s, %s, %s' % (s(sT2), s(sT2), s(sT0)))
    dma_offsets(A, vPairO, 22, 24, 25, 11, sT2)
    ops = []
    for ks in range(16):
        for hb in range(2):
            for u in range(2):
                q = 4 * hb + 2 * u
                ops.append(dict(nt='v' in cfg.nt, srd=sSA, voff=vPair, soff=(64 * ks + 32 * hb + 2 * u) * 8192,
                                reads=[(v(WV0 + ks * 8 + q, 2), 0),
                                       (a(WV1 + ks * 8 + q, 2) if ks < 8 else ('res', 2 * (ks - 8) + hb, u), 512)]))
    lo, hi = [], []
    for ks in range(8):
        for hb in range(2):
            for u in range(2):
                q, so = 4 * hb + 2 * u, (64 * ks + 8 * hb + 2 * u) * 2048
                lo.append(dict(nt='o' in cfg.nt, srd=sSB, voff=vPairO, soff=so, reads=[(a((ks * 3 + t) * 8 + q, 2), 512 * t) for t in range(2)]))
                hi.append(dict(nt='o' in cfg.nt, srd=sSB, voff=vPairO, soff=so + 64, reads=[(a((ks * 3 + 2) * 8 + q, 2), 0), (('res', 16 + 2 * ks + hb, u), 512)]))
    for i in range(0, 32, 8):
        ops += lo[i:i + 8] + hi[i:i + 8]

    def init(n):
        for i in range(4):
            A('v_mov_b32 %s, -1' % v(20 + i))
        for sl in range(1, 4):
            A('s_add_u32 %s, %s, %d' % (s(sT0), s(sMemW), sl * 16 * KB))
            A('buffer_store_dwordx2 v[20:21], %s, %s, %s offen sc1' % (v(vT8), s(sWS, 4), s(sT0)))
        for sl in range(4):
            A('s_add_u32 %s, %s, %d' % (s(sT0), s(sVM), sl * 2 * KB))
            A('buffer_store_dwordx2 v[20:21], %s, %s, %s offen sc1' % (v(vVM), s(sWS, 4), s(sT0)))
        for k in range(8 * cfg.nrep):
            A('s_add_u32 %s, %s, %d' % (s(sT0), s(sRem), k * 2 * KB))
            A('buffer_store_dwordx4 v[20:23], %s, %s, %s offen sc1' % (v(vT16), s(sWS, 4), s(sT0)))
        A('v_mov_b32 v25, 0')
        A('buffer_store_dword v25, %s, %s, %s offen sc1' % (v(vOne), s(sWS, 4), s(sFlag)))
        A('buffer_store_dword v25, %s, %s, %s offen sc1' % (v(vOne), s(sWS, 4), s(sRing)))
        A('s_waitcnt vmcnt(%d)' % min(63, n + 3 + 4 + 8 * cfg.nrep + 2))
        A('v_min_u32 v28, -2, v28')
        A('v_min_u32 v29, -2, v29')
        A('buffer_store_dwordx2 v[28:29], %s, %s, %s offen sc1' % (v(vT8), s(sWS, 4), s(sMemW)))
        A('s_add_u32 %s, %s, %d' % (s(sMemW), s(sMemW), 16 * KB))
        publish_xcc(A, vOne)
    weight_loader(A, ops, vB, vSp, init, resident=32, vfin=vSamp, covered=lambda: grid_arrive(A, vT, vSamp))
    A('v_mov_b32 %s, %s' % (v(vB), v(vSamp)))
    gstamp(A, cfg, 1, vOne, True)
    A('v_lshlrev_b32 v16, 4, v0')
    A('s_lshl_b32 %s, %s, 12' % (s(sT0), s(sWAVE)))
    A('v_add_u32 %s, %s, v16' % (v(vPoll), s(sT0)))
    A('v_and_b32 %s, 7, v0' % v(vSamp))
    A('v_lshlrev_b32 %s, 2, %s' % (v(vSamp), v(vSamp)))
    A('v_and_b32 %s, 15, v0' % v(vSp))
    A('v_lshlrev_b32 %s, 2, %s' % (v(vSp), v(vSp)))
    A('s_add_u32 m0, %s, %d' % (s(sT0), MS))
    A('s_lshl_b32 %s, %s, 13' % (s(sT0), s(sWAVE)))
    A('v_add_u32 %s, %s, v16' % (v(vOp), s(sT0)))
    A('v_lshrrev_b32 v16, 5, v0')
    A('v_lshlrev_b32 v16, 4, v16')
    A('v_and_b32 v17, 15, v0')
    A('v_add_u32 v16, v16, v17')
    A('v_lshlrev_b32 v16, 2, v16')
    A('v_bfe_u32 v17, v0, 4, 1')
    A('v_mul_u32_u24 v17, 1280, v17')
    A('v_add_u32 v16, v17, v16')
    A('s_mul_i32 %s, %s, 2560' % (s(sT0), s(sWAVE)))
    A('s_add_u32 %s, %s, %d' % (s(sT0), s(sT0), RED))
    A('v_add_u32 %s, %s, v16' % (v(vRw), s(sT0)))
    A('v_add_u32 %s, 128, %s' % (v(vRw2), v(vRw)))
    grid_wait(A, 16, 18, cfg, [(192, cfg.nchain)])
    group_local(A, 16, 18)
    A('s_barrier')
    A('s_mov_b32 %s, 0' % s(sSTEP))
    A('s_mov_b32 %s, -1' % s(sVer))
    A('s_mov_b32 s98, 0')
    A('s_mov_b32 s97, 0')

    others = ((sO, 32 * KB), (sMemW, 16 * KB), (sVM, 2 * KB), (sPart, 2 * KB), (sRem, 2 * KB))
    sMask = 99

    def swap_in(base):
        for k in range(16):
            A('ds_read_b128 %s, %s offset:%d' % (v(SW + 4 * k, 4), v(vB), base + 1024 * k))

    def aread(ks):
        return 'ds_read_b128 %s, %s offset:%d' % (v(AR + 4 * (ks % 4), 4), v(vA), ks * 1024)

    def part_addr(base, hi, k):
        return (base if k < 1 else hi + k - 1), 0

    for reg, stepb in others:
        ring(A, sT0, reg, -1, stepb)
        A('s_mov_b32 %s, %s' % (s(reg), s(sT0)))
    A('s_lshr_b32 %s, %s, 1' % (s(sMask), s(sWAVE)))
    A('s_lshl_b32 %s, %s, 30' % (s(sMask), s(sMask)))
    gstamp(A, cfg, 2, vOne, True)
    A('s_cmp_eq_u32 %s, 1' % s(sLOCAL))
    A('s_cbranch_scc0 L_vo_step_g')
    for tag, sfx in (('l', ''), ('g', ' sc1')):
        step = 'L_vo_step_' + tag
        A.label(step)
        stamp(A, cfg, 0)
        wait_bell(A, vSamp, sBell, [32, 33, 34, 35][:cfg.vdepth], sSTEP)
        dma_mem(A, vPoll, sMem)
        stamp(A, cfg, 1)
        swap_in(0)
        for i in range(8):
            A('v_mov_b32 %s, 0' % v(ACC + i))
        for i in range(4):
            A('v_mov_b32 %s, -1' % v(ACC + 8 + i))
        A('v_mov_b32 %s, %s' % (v(ACC + 12), s(sSTEP)))
        A('v_or_b32 %s, %s, %s' % (v(ACC + 13), s(sMask), v(vT16)))
        A('s_mov_b32 %s, %s' % (s(sR1), s(sVM)))
        A('s_mov_b32 %s, %s' % (s(sR2), s(sRem)))
        for reg, stepb in others:
            ring_adv(A, reg, stepb)
        ring(A, sR0, sMemW, -2, 16 * KB)
        A('s_add_u32 %s, %s, 1' % (s(sNext), s(sSTEP)))
        A('s_waitcnt vmcnt(0) lgkmcnt(0)')
        A.label(step + '_go')
        A('s_barrier')
        for ks in range(4):
            A(aread(ks))
        house = ['buffer_store_dwordx2 %s, %s, %s, %s offen%s' % (v(ACC + 8, 2), v(vT8), s(sWS, 4), s(sR0), sfx),
                 'buffer_store_dwordx2 %s, %s, %s, %s offen%s' % (v(ACC + 8, 2), v(vVM), s(sWS, 4), s(sR1), sfx),
                 'buffer_store_dword %s, %s, %s, %s offen sc1' % (v(ACC + 12), v(vOne), s(sWS, 4), s(sFlag))]
        for k in range(cfg.nrep):
            house.append('s_add_u32 %s, %s, %d' % (s(sT1), s(sR2), 16 * KB * k))
            house.append('buffer_store_dwordx4 %s, %s, %s, %s offen sc1' % (v(ACC + 8, 4), v(ACC + 13), s(sWS, 4), s(sT1)))
        for ks in range(16):
            A('s_waitcnt lgkmcnt(%d)' % min(3, 15 - ks))
            Aop = v(AR + 4 * (ks % 4), 4)
            A('%s %s, %s, %s, %s' % (SMF, v(ACC, 4), Aop, v(WV0 + ks * 8, 8), v(vIdx)))
            if house:
                A(house.pop(0))
            A('%s %s, %s, %s, %s' % (SMF, v(ACC + 4, 4), Aop, a(WV1 + ks * 8, 8) if ks < 8 else v(SW + (ks - 8) * 8, 8), v(vIdx)))
            if ks + 4 < 16:
                A(aread(ks + 4))
        assert not house
        A('s_nop 7')
        for r in range(4):
            A('v_permlane32_swap_b32 %s, %s' % (v(ACC + r), v(ACC + 4 + r)))
        for r in (0, 2):
            A('v_pk_add_f32 %s, %s, %s' % (v(ACC + r, 2), v(ACC + r, 2), v(ACC + 4 + r, 2)))
        A('v_cmp_u_f32 vcc, %s, %s' % (v(ACC), v(ACC + 1)))
        A('v_cmp_u_f32 %s, %s, %s' % (s(sNan, 2), v(ACC + 2), v(ACC + 3)))
        A('v_cvt_pk_bf16_f32 %s, %s, %s' % (v(ACC + 4), v(ACC), v(ACC + 1)))
        A('v_cvt_pk_bf16_f32 %s, %s, %s' % (v(ACC + 5), v(ACC + 2), v(ACC + 3)))
        A('v_min_u32 %s, -2, %s' % (v(ACC + 4), v(ACC + 4)))
        A('s_or_b64 vcc, vcc, %s' % s(sNan, 2))
        A('s_cbranch_vccnz %s_nan' % step)
        A.label(step + '_ok')
        nan_net(A, cfg, step + '_nan', step + '_ok', ['v_mov_b32 %s, 0' % v(ACC + i) for i in range(8)], step + '_go', vA, vPoll, sMem, AR, vT, sNan, sVer)
        A('buffer_store_dwordx2 %s, %s, %s, %s offen%s' % (v(ACC + 4, 2), v(vVM), s(sWS, 4), s(sVM), sfx))
        if not cfg.nokm:
            A('buffer_store_dwordx2 %s, %s, %s, %s offen sc1' % (v(ACC + 4, 2), v(vVM), s(sWS, 4), s(sVMG)))
        A('s_add_u32 %s, %s, %d' % (s(sVMG), s(sVMG), 64 * KB))
        stamp(A, cfg, 2)
        A('s_cmp_eq_u32 %s, %d' % (s(sSTEP), cfg.nsteps - 1))
        A('s_cbranch_scc1 L_vo_last')
        swap_in(16 * KB)
        for i in range(16):
            A('v_mov_b32 %s, 0' % v(ACC + i))
        A('s_add_u32 %s, %s, 4096' % (s(sO2), s(sO)))
        for k in range(1, cfg.nrep):
            A('s_add_u32 %s, %s, %d' % (s(sR0 + k - 1), s(sPart), 16 * KB * k))

        def oload(p):
            return 'buffer_load_dwordx4 %s, %s, %s, %s offen offset:%d sc1' % (v(OP + 4 * p, 4), v(vOp), s(sWS, 4), s(sO if p < 4 else sO2), 1024 * (p & 3))

        def omf(p, t):
            B = a((p * 3 + t) * 8, 8) if t < 3 else v(SW + p * 8, 8)
            return '%s %s, %s, %s, %s' % (SMF, v(ACC + 4 * t, 4), v(OP + 4 * p, 4), B, v(vIdx))
        base = A.uid('op')
        if cfg.near:
            A('s_cmp_lt_u32 %s, 6' % s(sSTEP))
            A('s_cbranch_scc1 %s_early' % base)
            A.label(base + '_cal')
            main, A.lines = A.lines, []
            A.label(base + '_early')
            A('s_cmp_eq_u32 %s, 2' % s(sSTEP))
            A('s_cbranch_scc1 %s_probe' % base)
            A('s_cmp_eq_u32 %s, 5' % s(sSTEP))
            A('s_cbranch_scc1 %s_pick' % base)
            A('s_cmp_lg_u32 %s, 1' % s(sSTEP))
            A('s_cbranch_scc1 %s_cal' % base)
            A('v_and_b32 v32, 0x3ff, %s' % v(vT16))
            A('buffer_store_dwordx4 %s, v32, %s, %s offen sc1' % (v(ACC, 4), s(sWS, 4), s(sSel)))
            A('s_branch %s_cal' % base)
            A.label(base + '_probe')
            A('s_waitcnt vmcnt(0) lgkmcnt(0)')
            A('s_mov_b32 s64, -1')
            for rep in range(3):
                A('s_memtime s[68:69]')
                A('s_waitcnt lgkmcnt(0)')
                A('s_mov_b32 s65, s68')
                A('buffer_load_dword v32, %s, %s, %s offen offset:%d sc1' % (v(vOne), s(sWS, 4), s(sSel), 256 * rep))
                A('s_waitcnt vmcnt(0)')
                A('s_memtime s[68:69]')
                A('s_waitcnt lgkmcnt(0)')
                A('s_sub_u32 s68, s68, s65')
                A('s_min_u32 s64, s64, s68')
            A('s_lshl_b32 %s, %s, 2' % (s(sT0), s(sWAVE)))
            A('v_mov_b32 v33, %d' % RED)
            A('v_add_u32 v34, %s, v33' % s(sT0))
            A('v_mov_b32 v32, s64')
            A('ds_write_b32 v34, v32')
            A('s_waitcnt lgkmcnt(0)')
            A('s_barrier')
            A('ds_read_b128 v[36:39], v33')
            A('s_waitcnt lgkmcnt(0)')
            A('s_barrier')
            A('v_min_u32 v36, v36, v38')
            A('v_min_u32 v37, v37, v39')
            A('v_cmp_lt_u32 vcc, v37, v36')
            A('s_lshl_b32 %s, %s, 3' % (s(sT0), s(sGRP)))
            A('s_lshl_b32 %s, 0x100, %s' % (s(sT0), s(sT0)))
            A('s_cmp_eq_u64 vcc, 0')
            A('s_cselect_b32 %s, 0, %s' % (s(sT0), s(sT0)))
            A('s_add_u32 %s, %s, 1' % (s(sT0), s(sT0)))
            A('s_cmp_lg_u32 %s, 0' % s(sWAVE))
            A('s_cbranch_scc1 %s_cal' % base)
            A('s_mov_b64 exec, 1')
            A('v_mov_b32 v32, 0')
            A('v_mov_b32 v33, %s' % s(sT0))
            A('global_atomic_add v32, v33, %s offset:196 sc1' % s(sDBG, 2))
            A('s_mov_b64 exec, -1')
            A('s_branch %s_cal' % base)
            A.label(base + '_pick')
            A('v_mov_b32 v32, 0')
            A('global_load_dword v33, v32, %s offset:196 sc1' % s(sDBG, 2))
            spin_fail(A)
            A('s_waitcnt vmcnt(0)')
            A('v_readfirstlane_b32 %s, v33' % s(sT1))
            A('s_and_b32 %s, %s, 0xff' % (s(sT0), s(sT1)))
            A('s_cmp_lt_u32 %s, 32' % s(sT0))
            A('s_cbranch_scc1 %s_pick' % base)
            if cfg.dbgt:
                A('s_mov_b32 s95, %s' % s(sT1))
            for reg, flip in ((sRem, 0), (sPart, 1)):
                A('s_xor_b32 %s, %s, %d' % (s(sT0), s(sGRP), flip))
                A('s_lshl_b32 %s, %s, 3' % (s(sT0), s(sT0)))
                A('s_add_u32 %s, %s, 8' % (s(sT0), s(sT0)))
                A('s_lshr_b32 %s, %s, %s' % (s(sT0), s(sT1), s(sT0)))
                A('s_and_b32 %s, %s, 0xff' % (s(sT0), s(sT0)))
                A('s_cmp_gt_u32 %s, 8' % s(sT0))
                A('s_cselect_b32 %s, %d, 0' % (s(sT0), 8 * KB))
                A('s_add_u32 %s, %s, %s' % (s(reg), s(reg), s(sT0)))
            A('s_branch %s_cal' % base)
            A.tail += A.lines
            A.lines = main
        A('v_mov_b32 v0, %s' % s(sNext))
        A('s_waitcnt lgkmcnt(0)')
        if cfg.osleep:
            A('s_sleep %d' % cfg.osleep)
        wait_bell(A, vSp, sBellO, [OP, OP + 1, OP + 2, OP + 3][:cfg.odepth], sNext, [oload(0)])
        NU = cfg.oup
        for p in range(1, NU):
            A(oload(p))
        stamp(A, cfg, 9)
        for p in range(-1, 8):
            issued = min(8, NU + p + 1)
            if p == 6 and cfg.otail:
                A.label('%s_c6' % base)
                A(omf(6, 0)); A(omf(6, 1))
                A('s_waitcnt vmcnt(0)')
                A('v_cmp_eq_u32 vcc, -1, %s' % v(OP + 28))
                A(omf(6, 2))
                A('s_cbranch_vccnz %s_f7' % base)
                A.ool('%s_f7:' % base)
                A.ool(oload(7))
                A.ool('s_sub_u32 %s, %s, 1\ns_cbranch_scc1 L_end' % (s(sBUD), s(sBUD)))
                A.ool('s_waitcnt vmcnt(0)')
                A.ool('v_cmp_eq_u32 vcc, -1, %s' % v(OP + 28))
                A.ool('s_cbranch_vccnz %s_f7' % base)
                A.ool('s_branch %s_c7' % base)
                A.label('%s_c7' % base)
                A(omf(7, 0)); A(omf(7, 1)); A(omf(6, 3)); A(omf(7, 2))
                A('v_permlane32_swap_b32 %s, %s' % (v(ACC), v(ACC + 4)))
                A(omf(7, 3))
                break
            if p >= 0:
                A.label('%s_c%d' % (base, p))
                A(omf(p, 0))
                if NU + p < 8:
                    A(oload(NU + p))
                A(omf(p, 1))
            if p < 7:
                A('s_waitcnt vmcnt(%d)' % (issued - p - 2))
                A('v_cmp_eq_u32 vcc, -1, %s' % v(OP + 4 * (p + 1)))
            if p >= 0:
                A(omf(p, 2))
                A(omf(p, 3))
            if p < 7:
                fix = '%s_f%d' % (base, p + 1)
                A('s_cbranch_vccnz %s' % fix)
                A.ool(fix + ':')
                if cfg.profile:
                    A.ool('s_add_u32 s97, s97, 1')
                for k in range(p + 1, issued):
                    A.ool(oload(k))
                A.ool('s_sub_u32 %s, %s, 1\ns_cbranch_scc1 L_end' % (s(sBUD), s(sBUD)))
                A.ool('s_waitcnt vmcnt(%d)' % (issued - p - 2))
                A.ool('v_cmp_eq_u32 vcc, -1, %s' % v(OP + 4 * (p + 1)))
                A.ool('s_cbranch_vccnz %s' % fix)
                A.ool('s_branch %s_c%d' % (base, p + 1))
        A.label('%s_done' % base)
        stamp(A, cfg, 3)
        for tp in range(2):
            for r in range(1 if cfg.otail and tp == 0 else 0, 4):
                A('v_permlane32_swap_b32 %s, %s' % (v(ACC + 8 * tp + r), v(ACC + 8 * tp + 4 + r)))
            for r in (0, 2):
                A('v_pk_add_f32 %s, %s, %s' % (v(ACC + 8 * tp + r, 2), v(ACC + 8 * tp + r, 2), v(ACC + 8 * tp + 4 + r, 2)))
            for r in (0, 2):
                A('ds_write2_b32 %s, %s, %s offset0:%d offset1:%d' % (v(vRw2 if tp else vRw), v(ACC + 8 * tp + r), v(ACC + 8 * tp + r + 1), 80 * r, 80 * r + 80))
        A('s_cmp_ge_u32 %s, 2' % s(sWAVE))
        A('s_waitcnt lgkmcnt(0)')
        A('s_barrier')
        stamp(A, cfg, 7)
        for p in range(4):
            A('ds_read_b128 %s, %s offset:%d' % (v(ACC + 4 * p, 4), v(vRr), 2560 * p))
        A('s_waitcnt lgkmcnt(2)')
        for c in (0, 2):
            A('v_pk_add_f32 %s, %s, %s' % (v(ACC + c, 2), v(ACC + c, 2), v(ACC + 4 + c, 2)))
        A('s_waitcnt lgkmcnt(0)')
        for c in (0, 2):
            A('v_pk_add_f32 %s, %s, %s' % (v(ACC + 8 + c, 2), v(ACC + 8 + c, 2), v(ACC + 12 + c, 2)))
        for c in (0, 2):
            A('v_pk_add_f32 %s, %s, %s' % (v(ACC + c, 2), v(ACC + c, 2), v(ACC + 8 + c, 2)))
        A('s_cbranch_scc1 %s_ld' % step)
        A('v_min_u32 %s, -2, %s' % (v(ACC), v(ACC)))
        for k in range(cfg.nrep):
            r, o = part_addr(sPart, sR0, k)
            A('buffer_store_dwordx4 %s, %s, %s, %s offen offset:%d sc1' % (v(ACC, 4), v(vT16), s(sWS, 4), s(r), o))
        stamp(A, cfg, 4)
        A('s_branch %s_fin' % step)
        A.label(step + '_ld')
        for k in range(1, cfg.nrep):
            A('s_add_u32 %s, %s, %d' % (s(sR0 + k - 1), s(sRem), 16 * KB * k))

        def rload(k):
            r, o = part_addr(sRem, sR0, k)
            return 'buffer_load_dwordx4 %s, %s, %s, %s offen offset:%d sc1' % (v(OP + 4 * k, 4), v(vT16), s(sWS, 4), s(r), o)
        stamp(A, cfg, 10)
        if cfg.profile:
            A('s_mov_b32 %s, 0' % s(sSTAMP + 22))
        for k in range(cfg.nrep):
            if cfg.rsleep[k]:
                A('s_sleep %d' % cfg.rsleep[k])
            A(rload(k))
        stamp(A, cfg, 8)
        got = A.uid('got')
        for k in range(cfg.nrep):
            if k == cfg.nrep - 1:
                A.label(got + '_l')
            A('s_waitcnt vmcnt(%d)' % (cfg.nrep - 1 - k))
            A('v_cmp_eq_u32 vcc, -1, %s' % v(OP + 4 * k))
            if k == 0:
                A('s_cbranch_vccnz %s_%s' % (got, 'n1' if cfg.nrep > 1 else 'again'))
                break
        for c in (0, 2):
            A('v_pk_add_f32 %s, %s, %s' % (v(ACC + c, 2), v(ACC + c, 2), v(OP + c, 2)))
        if cfg.profile:
            A('s_mov_b32 %s, 0' % s(sSTAMP + 12))
        A.label(got + '_fin')
        if cfg.mring == 0:
            A('buffer_store_dword v0, %s, %s, %s offen%s' % (v(vOne), s(sWS, 4), s(sRing), sfx))
        A('v_cvt_pk_bf16_f32 %s, %s, %s' % (v(ACC + 12), v(ACC), v(ACC + 1)))
        A('v_cvt_pk_bf16_f32 %s, %s, %s' % (v(ACC + 13), v(ACC + 2), v(ACC + 3)))
        A('v_min_u32 %s, -2, %s' % (v(ACC + 12), v(ACC + 12)))
        A('v_min_u32 %s, -2, %s' % (v(ACC + 13), v(ACC + 13)))
        A('buffer_store_dwordx2 %s, %s, %s, %s offen%s' % (v(ACC + 12, 2), v(vT8), s(sWS, 4), s(sMemW), sfx))
        if cfg.mring == 1:
            A('buffer_store_dword v0, %s, %s, %s offen%s' % (v(vOne), s(sWS, 4), s(sRing), sfx))
        for k in range(1, cfg.nrep):
            A.ool('%s_n%d:' % (got, k))
            A.ool('s_waitcnt vmcnt(%d)' % (cfg.nrep - 1 - k))
            A.ool('v_cmp_eq_u32 vcc, -1, %s' % v(OP + 4 * k))
            if k < cfg.nrep - 1:
                A.ool('s_cbranch_vccnz %s_n%d' % (got, k + 1))
            else:
                A.ool('s_cbranch_vccnz %s_again' % got)
            for c in (0, 2):
                A.ool('v_pk_add_f32 %s, %s, %s' % (v(ACC + c, 2), v(ACC + c, 2), v(OP + 4 * k + c, 2)))
            if cfg.profile:
                A.ool('s_mov_b32 %s, %d' % (s(sSTAMP + 12), k))
            A.ool('s_branch %s_fin' % got)
        A.ool(got + '_again:')
        if cfg.profile:
            A.ool('s_add_u32 %s, %s, 1' % (s(sSTAMP + 22), s(sSTAMP + 22)))
        A.ool(rload(cfg.nrep - 1))
        A.ool('s_sub_u32 %s, %s, 1\ns_cbranch_scc1 L_end\ns_branch %s_%s' % (s(sBUD), s(sBUD), got, 'n%d' % (cfg.nrep - 1) if cfg.nrep > 1 else 'l'))
        stamp(A, cfg, 5)
        A.label(step + '_fin')
        stamp_flush(A, cfg, 15, vT, vOne, wave=cfg.pwave)
        ring_adv(A, sMem, 16 * KB)
        A('s_add_u32 %s, %s, 1' % (s(sSTEP), s(sSTEP)))
        A('s_branch %s' % step)
        A.flush_tail()
    A.label('L_vo_last')
    if cfg.dbgt:
        A('s_mov_b64 exec, 1')
        A('v_mov_b32 v40, 0')
        A('v_mov_b32 v41, s95')
        A('global_store_dword v40, v41, %s offset:28 sc1' % s(sDBG, 2))
        A('v_mov_b32 v41, %s' % s(sWSP))
        A('global_store_dword v40, v41, %s offset:32 sc1' % s(sDBG, 2))
        A('s_mov_b64 exec, -1')
    A('s_waitcnt vmcnt(0)')
    A('s_barrier')
    gstamp(A, cfg, 3, vOne, True)
    A('v_mov_b32 v40, %d' % cfg.nsteps)
    A('buffer_store_dword v40, %s, %s, %s offen sc1' % (v(vOne), s(sWS, 4), s(sFlag)))
    A('s_branch L_end')
```

```python
from common import *

SMF = 'v_smfmac_f32_16x16x64_bf16'
MF = 'v_mfma_f32_16x16x32_bf16'


def wait_bell(A, vbell, sbell, regs, sval, first=()):
    l = A.uid('wb')
    d = len(regs)
    ld = lambda k: A('buffer_load_dword %s, %s, %s, %s offen sc1' % (v(regs[k]), v(vbell), s(sWS, 4), s(sbell)))
    for k in range(d):
        ld(k)
    for k in range(d):
        A.label('%s_%d' % (l, k))
        A('s_waitcnt vmcnt(%d)' % (d - 1))
        A('v_cmp_gt_u32 vcc, %s, %s' % (s(sval), v(regs[k])))
        A('s_cbranch_vccnz %s_r%d' % (l, k))
        for x in first:
            A(x)
        if k < d - 1:
            A('s_branch %s_ok' % l)
            A.label('%s_r%d' % (l, k))
            ld(k)
    A.label(l + '_ok')
    A.ool('%s_r%d:' % (l, d - 1))
    A.ool('buffer_load_dword %s, %s, %s, %s offen sc1' % (v(regs[d - 1]), v(vbell), s(sWS, 4), s(sbell)))
    A.ool('s_sub_u32 %s, %s, 1\ns_cbranch_scc1 L_end\ns_branch %s_0' % (s(sBUD), s(sBUD), l))


def dma_mem(A, vpoll, smem):
    for i in range(4):
        A('buffer_load_dwordx4 %s, %s, %s offen offset:%d sc1 lds' % (v(vpoll), s(sWS, 4), s(smem), 1024 * i))


def nan_net(A, cfg, lbl, back, pre, resume, vA, vpoll, smem, tmp, vt, snan, sver, sm0=None):
    o = A.ool
    o(lbl + ':')
    o('s_mov_b64 %s, 0' % s(snan, 2))
    o('s_mov_b64 vcc, 0')
    o('s_cmp_eq_u32 %s, %s' % (s(sver), s(sSTEP)))
    o('s_cbranch_scc1 %s' % back)
    o('s_mov_b32 %s, %s' % (s(sver), s(sSTEP)))
    if cfg.profile in (1, 2):
        o('s_add_u32 s98, s98, 1')
    if sm0:
        o('s_mov_b32 m0, %s' % s(sm0))
    o(lbl + '_again:')
    o('s_waitcnt vmcnt(0) lgkmcnt(0)')
    o('s_barrier')
    for i in range(4):
        o('buffer_load_dwordx4 %s, %s, %s offen offset:%d sc1 lds' % (v(vpoll), s(sWS, 4), s(smem), 1024 * i))
    o('s_sub_u32 %s, %s, 1\ns_cbranch_scc1 L_end' % (s(sBUD), s(sBUD)))
    o('s_waitcnt vmcnt(0)')
    o('s_barrier')
    o('v_mov_b32 %s, 0' % v(vt))
    for f in range(16):
        o('ds_read_b128 %s, %s offset:%d' % (v(tmp, 4), v(vA), 1024 * f))
        o('s_waitcnt lgkmcnt(0)')
        o('v_max3_u32 %s, %s, %s, %s' % (v(vt), v(vt), v(tmp), v(tmp + 1)))
        o('v_max3_u32 %s, %s, %s, %s' % (v(vt), v(vt), v(tmp + 2), v(tmp + 3)))
    o('v_cmp_eq_u32 vcc, -1, %s' % v(vt))
    o('s_cbranch_vccnz %s_again' % lbl)
    for x in pre:
        o(x)
    o('s_waitcnt lgkmcnt(0)')
    o('s_branch %s' % resume)


def ring(A, dst, reg, delta, stepb):
    mask = 3 * stepb
    A('s_add_u32 %s, %s, %d' % (s(dst), s(reg), (delta % 4) * stepb))
    A('s_and_b32 %s, %s, %d' % (s(dst), s(dst), mask))
    A('s_andn2_b32 %s, %s, %d' % (s(sT2), s(reg), mask))
    A('s_or_b32 %s, %s, %s' % (s(dst), s(dst), s(sT2)))


def ring_adv(A, reg, stepb):
    mask = 3 * stepb
    A('s_add_u32 %s, %s, %d' % (s(sT2), s(reg), stepb))
    A('s_and_b32 %s, %s, %d' % (s(sT2), s(sT2), mask))
    A('s_andn2_b32 %s, %s, %d' % (s(reg), s(reg), mask))
    A('s_or_b32 %s, %s, %s' % (s(reg), s(reg), s(sT2)))


FR = lambda n: 4 * (n & 3) + (n >> 2)


def gen_qk(A, cfg):
    vT = 1; vA = 2; vB = 3; vPoll = 4; vSamp = 5; vQTw = 6; vQTr = 7; vIdx = 8; vBias = 9; vO = 10
    vVM = 11; vL16 = 12; vOne = 13; vKMr = 14; vKMo = 15
    AR, BR, ACC, KX, VX = 16, 32, 56, 72, 104
    ONES, VM, LS = 112, 116, 124
    WK0 = 128
    sMem, sO, sVM, sKF, sVF, sKM, sSeen, sFlag, sG1, sBell = range(50, 60)
    sC, sNC, sRing = 60, 62, 63
    sNan, sVer, sNext, sM0m, sM0k = 64, 66, 67, 68, 69
    KXL = QT + 4 * KB + 128
    QHALF = 2048 + 64
    A.label('L_qk')
    A('s_lshl_b32 %s, %s, 4' % (s(sT1), s(sGRP)))
    A('s_add_u32 %s, %s, %s' % (s(sT1), s(sT1), s(sJ)))
    common_chain_init(A, vB, vKMr, vA, vOne, vIdx)
    gstamp(A, cfg, 0, vOne, True)
    srd(A, sSA, sWK, 8 * MB)
    srd(A, sSB, sWQ, 8 * MB)
    A('s_lshr_b32 %s, %s, 1' % (s(sT0), s(sWAVE)))
    A('s_lshl_b32 %s, %s, 1' % (s(sT2), s(sJ)))
    A('s_add_u32 %s, %s, %s' % (s(sT0), s(sT0), s(sT2)))
    A('s_lshl_b32 %s, %s, 10' % (s(sT0), s(sT0)))
    A('s_and_b32 %s, %s, 1' % (s(sT2), s(sWAVE)))
    A('s_lshl_b32 %s, %s, 7' % (s(sT2), s(sT2)))
    A('s_add_u32 %s, %s, %s' % (s(sT0), s(sT0), s(sT2)))
    A('v_lshlrev_b32 %s, 4, v0' % v(vL16))
    A('v_add_u32 %s, %s, %s' % (v(vO), s(sT0), v(vL16)))
    A('v_and_b32 v16, 8, v0')
    A('v_lshlrev_b32 v16, 27, v16')
    A('v_or_b32 %s, %s, v16' % (v(vO), v(vO)))
    A('v_lshrrev_b32 v17, 4, v0')
    A('v_lshlrev_b32 v17, 7, v17')
    A('v_and_b32 v18, 7, v0')
    A('v_lshl_add_u32 v17, v18, 4, v17')
    A('s_lshl_b32 %s, %s, 9' % (s(sT0), s(sWAVE)))
    A('v_add_u32 v17, %s, v17' % s(sT0))
    A('v_or_b32 %s, v17, v16' % v(vKMo))
    A('s_lshl_b32 %s, %s, 17' % (s(sO), s(sGRP)))
    A('s_add_u32 %s, %s, %d' % (s(sO), s(sO), OR_))
    A('s_lshl_b32 %s, %s, 16' % (s(sMem), s(sGRP)))
    A('s_add_u32 %s, %s, %d' % (s(sMem), s(sMem), MEMR))
    A('s_lshl_b32 %s, %s, 13' % (s(sVM), s(sT1)))
    A('s_add_u32 %s, %s, %d' % (s(sVM), s(sVM), VMR))
    A('s_lshl_b32 %s, %s, 13' % (s(sKF), s(sT1)))
    A('s_add_u32 %s, %s, %s' % (s(sVF), s(sKF), hx(VF)))
    A('s_add_u32 %s, %s, %s' % (s(sKF), s(sKF), hx(KF)))
    A('s_lshl_b32 %s, %s, 11' % (s(sT0), s(sWAVE)))
    A('s_add_u32 %s, %s, %s' % (s(sVF), s(sVF), s(sT0)))
    A('s_lshl_b32 %s, %s, 11' % (s(sKM), s(sT1)))
    A('s_add_u32 %s, %s, %s' % (s(sKM), s(sKM), hx(KMG)))
    A('s_lshl_b32 %s, %s, 7' % (s(sFlag), s(sT1)))
    A('s_add_u32 %s, %s, %d' % (s(sFlag), s(sFlag), CT_KM))
    A('s_lshl_b32 %s, %s, 10' % (s(sRing), s(sGRP)))
    A('s_lshl_b32 %s, %s, 8' % (s(sBell), s(sWAVE)))
    A('s_add_u32 %s, %s, %s' % (s(sBell), s(sBell), s(sRing)))
    A('s_add_u32 %s, %s, %d' % (s(sBell), s(sBell), CT_BELL))
    A('s_lshr_b32 %s, %s, 2' % (s(sT0), s(sJ)))
    A('s_lshl_b32 %s, %s, 8' % (s(sT0), s(sT0)))
    A('s_add_u32 %s, %s, %s' % (s(sRing), s(sRing), s(sT0)))
    A('s_and_b32 %s, %s, 3' % (s(sT0), s(sJ)))
    A('s_lshl_b32 %s, %s, 4' % (s(sT0), s(sT0)))
    A('s_add_u32 %s, %s, %s' % (s(sRing), s(sRing), s(sT0)))
    A('s_lshl_b32 %s, %s, 2' % (s(sT0), s(sWAVE)))
    A('s_add_u32 %s, %s, %s' % (s(sRing), s(sRing), s(sT0)))
    A('s_add_u32 %s, %s, %d' % (s(sRing), s(sRing), CT_BELL + 2048))
    A('s_lshl_b32 %s, %s, 8' % (s(sG1), s(sT1)))
    A('s_add_u32 %s, %s, %d' % (s(sG1), s(sG1), CT_G1 + 64 * 128))
    A('s_mov_b32 %s, %s' % (s(sC), hx(f2u(SC))))
    A('s_mov_b32 %s, %s' % (s(sC + 1), hx(f2u(SC))))
    A('s_mov_b32 %s, %s' % (s(sNC), hx(f2u(-SC))))
    lane_consts(A, 16, 17, 18)
    sparse_rowlane_mem(A, 19, 16, 17, 25)
    A('s_lshl_b32 %s, %s, 8' % (s(sT0), s(sT1)))
    A('s_lshl_b32 %s, %s, 6' % (s(sT2), s(sWAVE)))
    A('s_add_u32 %s, %s, %s' % (s(sT2), s(sT2), s(sT0)))
    vPair = vPoll
    dma_offsets(A, vPair, 19, 18, 25, 13, sT2)
    ops = []
    for m in range(2):
        for ks in range(16):
            for hb in range(2):
                for u in range(2):
                    q = 4 * hb + 2 * u
                    ops.append(dict(nt='kq'[m] in cfg.nt, srd=sSB if m else sSA, voff=vPair, soff=(64 * ks + 32 * hb + 2 * u) * 8192,
                                    reads=[(v(WK0 + ks * 8 + q, 2), 0), (('res', 2 * ks + hb, u), 512)] if m else
                                    [(a((ks * 2 + t) * 8 + q, 2), 512 * t) for t in range(2)]))

    def init(n):
        verdict_arrive(A, vT, 118)
        for i in range(4):
            A('v_mov_b32 %s, -1' % v(120 + i))
        for sl in range(4):
            A('s_add_u32 %s, %s, %d' % (s(sT0), s(sO), sl * 32 * KB))
            A('buffer_store_dwordx4 v[120:123], %s, %s, %s offen sc1' % (v(vO), s(sWS, 4), s(sT0)))
        A('v_mov_b32 v124, 0')
        A('buffer_store_dword v124, %s, %s, %s offen sc1' % (v(vOne), s(sWS, 4), s(sFlag)))
        A('buffer_store_dword v124, %s, %s, %s offen sc1' % (v(vOne), s(sWS, 4), s(sRing)))
    weight_loader(A, ops, vB, vKMr, init, resident=32, vfin=vSamp, hooks={40: lambda: grid_arrive(A, vT, vSamp)})
    A('v_mov_b32 %s, %s' % (v(vB), v(vSamp)))
    gstamp(A, cfg, 1, vOne, True)
    A('s_lshl_b32 %s, %s, 12' % (s(sT0), s(sWAVE)))
    A('v_add_u32 %s, %s, %s' % (v(vPoll), s(sT0), v(vL16)))
    A('v_and_b32 %s, 7, v0' % v(vSamp))
    A('v_lshlrev_b32 %s, 2, %s' % (v(vSamp), v(vSamp)))
    A('s_add_u32 %s, %s, %d' % (s(sM0m), s(sT0), MS))
    A('s_lshr_b32 %s, %s, 1' % (s(sT0), s(sT0)))
    A('s_add_u32 %s, %s, %d' % (s(sM0k), s(sT0), KXL))
    A('s_add_u32 %s, %s, %s' % (s(sKF), s(sKF), s(sT0)))
    A('v_lshrrev_b32 v16, 5, v0')
    A('v_lshlrev_b32 v16, 4, v16')
    A('v_and_b32 v17, 15, v0')
    A('v_add_u32 v16, v16, v17')
    A('v_lshlrev_b32 v16, 3, v16')
    A('v_bfe_u32 v17, v0, 4, 1')
    A('v_mul_u32_u24 v17, %d, v17' % QHALF)
    A('v_add_u32 v16, v17, v16')
    A('s_lshl_b32 %s, %s, 8' % (s(sT0), s(sWAVE)))
    A('s_add_u32 %s, %s, %d' % (s(sT0), s(sT0), QT))
    A('v_add_u32 %s, %s, v16' % (v(vQTw), s(sT0)))
    A('v_lshrrev_b32 v16, 2, v0')
    A('v_lshlrev_b32 v16, 3, v16')
    A('v_and_b32 v17, 1, v0')
    A('v_mul_u32_u24 v17, %d, v17' % QHALF)
    A('v_add_u32 v16, v17, v16')
    A('v_add_u32 %s, %d, v16' % (v(vQTr), QT))
    A('v_add_u32 %s, %s, v16' % (v(vKMr), s(sT0)))
    A('v_cmp_gt_u32 vcc, 32, v0')
    A('v_mov_b32 %s, 0xff800000' % v(vBias))
    A('s_nop 0')
    A('v_cndmask_b32 %s, %s, 0, vcc' % (v(vBias), v(vBias)))
    A('v_and_b32 v16, 31, v0')
    A('v_lshlrev_b32 v16, 3, v16')
    A('s_lshl_b32 %s, %s, 9' % (s(sT0), s(sWAVE)))
    A('v_add_u32 %s, %s, v16' % (v(vVM), s(sT0)))
    for i in range(4):
        A('v_mov_b32 %s, 0x3f803f80' % v(ONES + i))
    for t in range(2):
        A('v_mov_b32 %s, 0' % v(VM + 4 * t + 2))
        A('v_mov_b32 %s, 0' % v(VM + 4 * t + 3))
    verdict(A, 16, 18)
    grid_wait(A, 16, 17, cfg, [(192, cfg.nchain), (4, cfg.ngemm << 16)])
    A('s_barrier')
    A('s_mov_b32 %s, 0' % s(sSTEP))
    A('s_mov_b32 %s, 0' % s(sSeen))
    A('s_mov_b32 %s, -1' % s(sVer))
    A('s_mov_b32 s98, 0')

    def kv_ready(nxt):
        ok, l = A.uid('kvok'), A.uid('kvp')
        A('s_add_u32 %s, %s, %d' % (s(sT1), s(sSTEP), nxt))
        A('s_min_u32 %s, %s, 63' % (s(sT1), s(sT1)))
        A.label(l)
        A('s_cmp_lt_u32 %s, %s' % (s(sT1), s(sSeen)))
        A('s_cbranch_scc1 %s' % ok)
        A('v_and_b32 v16, 1, v0')
        A('v_bfe_u32 v17, v0, 1, 1')
        A('v_lshlrev_b32 v16, 7, v16')
        A('v_lshl_add_u32 v16, v17, 13, v16')
        A('buffer_load_dword v17, v16, %s, %s offen sc1' % (s(sWS, 4), s(sG1)))
        A('s_waitcnt vmcnt(0)')
        A('v_readlane_b32 %s, v17, 0' % s(sSeen))
        for k in range(1, 4):
            A('v_readlane_b32 %s, v17, %d' % (s(sT0), k))
            A('s_min_u32 %s, %s, %s' % (s(sSeen), s(sSeen), s(sT0)))
        spin_fail(A)
        A('s_branch %s' % l)
        A.label(ok)

    kdma = ['buffer_load_dwordx4 %s, %s, %s offen offset:%d sc1 lds' % (v(vL16), s(sWS, 4), s(sKF), 1024 * i) for i in range(2)]

    def fetch_kv():
        for i in range(2):
            A('buffer_load_dwordx4 %s, %s, %s, %s offen offset:%d sc1' % (v(VX + 4 * i, 4), v(vL16), s(sWS, 4), s(sVF), 1024 * i))
        A('s_mov_b32 m0, %s' % s(sM0m))
        A('s_barrier')
        A('v_add_u32 v16, %d, %s' % (KXL, v(vL16)))
        for i in range(8):
            A('ds_read_b128 %s, v16 offset:%d' % (v(KX + 4 * i, 4), 1024 * i))
        A('s_add_u32 %s, %s, %d' % (s(sKF), s(sKF), 256 * KB))
        A('s_add_u32 %s, %s, %d' % (s(sVF), s(sVF), 256 * KB))

    def bread(n):
        return ['ds_read_b128 %s, %s offset:%d' % (v(BR + 8 * (n % 3) + 4 * q, 4), v(vB), FR(n) * 2048 + 1024 * q) for q in range(2)]

    def aread(n):
        return 'ds_read_b128 %s, %s offset:%d' % (v(AR + 4 * (n % 4), 4), v(vA), FR(n) * 1024)

    kv_ready(1)
    A('s_mov_b32 m0, %s' % s(sM0k))
    A('s_nop 0')
    A(kdma[0]); A(kdma[1])
    A('s_waitcnt vmcnt(0)')
    fetch_kv()
    gstamp(A, cfg, 2, vOne, True)
    A('s_cmp_eq_u32 %s, 1' % s(sLOCAL))
    A('s_cbranch_scc0 L_qk_step_g')
    for tag, sfx in (('l', ''), ('g', ' sc1')):
        step = 'L_qk_step_' + tag
        align(A, cfg.qal)
        A(';even')
        A.label(step)
        stamp(A, cfg, 0)
        pre = ['v_mov_b32 %s, 0' % v(ACC + i) for i in range(16)] + bread(0) + bread(1) + bread(2)
        RB = 'buffer_store_dword v71, %s, %s, %s offen%s' % (v(vOne), s(sWS, 4), s(sRing), sfx)
        for x in pre:
            A(x)
        if cfg.profile == 1 or 12 in cfg.stamps:
            A('s_waitcnt vmcnt(0)')
            stamp(A, cfg, 12)
        A('s_add_u32 %s, %s, 1' % (s(sNext), s(sSTEP)))
        A('s_waitcnt lgkmcnt(0)')
        stamp(A, cfg, 10)
        if cfg.qsleep:
            A('s_sleep %d' % cfg.qsleep)
        dm = ['buffer_load_dwordx4 %s, %s, %s offen offset:%d sc1 lds' % (v(vPoll), s(sWS, 4), s(sMem), 1024 * i) for i in range(4)]
        wait_bell(A, vSamp, sBell, [124, 125, 126, 127][:cfg.depth], sSTEP, dm[:1])
        stamp(A, cfg, 1)
        if cfg.dmagap:
            A('s_sleep %d' % cfg.dmagap)
        for x in dm[1:]:
            A(x)
        A('s_waitcnt vmcnt(3)')
        A.label(step + '_go')
        A('s_barrier')
        stamp(A, cfg, 4)
        for n in range(4):
            A(aread(n))
        q = ['a0', 'a1', 'a2', 'a3']
        when = {n: max(n - 3, cfg.adelay[n // 4]) for n in range(4, 16)}
        for n in range(16):
            ks = FR(n)
            need = max(q.index('a%d' % n), max([i for i, x in enumerate(q) if x == 'b%d' % n] + [0]))
            A('s_waitcnt lgkmcnt(%d)' % (len(q) - 1 - need))
            Aop = v(AR + 4 * (n % 4), 4)
            mq1 = '%s %s, %s, %s, %s' % (SMF, v(ACC + 4, 4), Aop, v(BR + 8 * (n % 3), 8), v(vIdx))
            mk0 = '%s %s, %s, %s, %s' % (SMF, v(ACC + 8, 4), Aop, a(ks * 16, 8), v(vIdx))
            mk1 = '%s %s, %s, %s, %s' % (SMF, v(ACC + 12, 4), Aop, a(ks * 16 + 8, 8), v(vIdx))
            mq0 = '%s %s, %s, %s, %s' % (SMF, v(ACC, 4), Aop, v(WK0 + ks * 8, 8), v(vIdx))
            if n + 3 < 16:
                br = bread(n + 3)
                ar = [m for m in range(4, 16) if when[m] == n]
                A(mq1)
                for m in ar:
                    assert m - 4 < n
                    if m % 4 == 0:
                        A('s_waitcnt vmcnt(%d)' % (3 - m // 4 + min(2, max(0, n - cfg.kat))))
                        A('s_barrier')
                    A(aread(m))
                    q.append('a%d' % m)
                A(mq0)
                A(br[0])
                A(mk0)
                A(br[1])
                if n == cfg.kat:
                    A('s_mov_b32 m0, %s' % s(sM0k))
                A(mk1)
                if n in (cfg.kat, cfg.kat + 1):
                    A(kdma[n - cfg.kat])
                q += ['b%d' % (n + 3)] * 2
            else:
                A(mq0); A(mq1); A(mk0); A(mk1)
        stamp(A, cfg, 5)
        for base, off in ((ACC, 0), (ACC + 8, 1024)):
            for r in range(4):
                A('v_permlane32_swap_b32 %s, %s' % (v(base + r), v(base + 4 + r)))
            for r in (0, 2):
                A('v_pk_add_f32 %s, %s, %s' % (v(base + r, 2), v(base + r, 2), v(base + 4 + r, 2)))
            A('v_cvt_pk_bf16_f32 %s, %s, %s' % (v(base + 4), v(base), v(base + 1)))
            A('v_cvt_pk_bf16_f32 %s, %s, %s' % (v(base + 5), v(base + 2), v(base + 3)))
            A('ds_write_b64 %s, %s offset:%d' % (v(vQTw), v(base + 4, 2), off))
        A('v_cmp_u_f32 vcc, %s, %s' % (v(ACC), v(ACC + 1)))
        A('v_cmp_u_f32 %s, %s, %s' % (s(sNan, 2), v(ACC + 2), v(ACC + 3)))
        A('s_waitcnt lgkmcnt(0)')
        A('s_barrier')
        stamp(A, cfg, 2)
        QFR, KFR = 16, 32
        A.label(step + '_ok')
        nan_net(A, cfg, step + '_nan', step + '_ok', pre, step + '_go', vA, vPoll, sMem, AR, vT, sNan, sVer, sM0m)
        S = ACC
        M, M2 = 68, 69
        PT, PM = 48, 52
        vml = ['buffer_load_dwordx2 %s, %s, %s, %s offen offset:%d sc1' % (v(VM + 4 * t, 2), v(vVM), s(sWS, 4), s(sVM), 256 * t) for t in range(2)]
        rd = lambda m, ks: ['ds_read_b64_tr_b16 %s, %s offset:%d' % (v((QFR, KFR)[m] + 4 * ks + 2 * u, 2), v(vQTr), 1024 * m + (32 * ks + 16 * u) * 8) for u in range(2)]
        tok = lambda jt, ks: '%s %s, %s, %s, %s' % (MF, v(S + 4 * jt, 4), v(KX + 16 * jt + 4 * ks, 4), v(QFR + 4 * ks, 4), v(S + 4 * jt, 4) if ks else '0')
        mem = lambda ks: '%s %s, %s, %s, %s' % (MF, v(S + 8, 4), v(KFR + 4 * ks, 4), v(QFR + 4 * ks, 4), v(S + 8, 4) if ks else '0')
        for x in rd(0, 0) + rd(0, 1) + rd(1, 0):
            A(x)
        A('s_or_b64 vcc, vcc, %s' % s(sNan, 2))
        A('s_cmp_eq_u32 %s, %d' % (s(sSTEP), cfg.nsteps - 1))
        seq = [(4, tok(0, 0), rd(0, 2)), (None, tok(1, 0), rd(0, 3)), (6, tok(0, 1), rd(1, 1)), (None, tok(1, 1), rd(1, 2)),
               (8, mem(0), rd(1, 3)), (8, tok(0, 2), ['s_cbranch_vccnz %s_nan' % step]), (None, tok(1, 2), ['s_cbranch_scc1 L_qk_last']),
               (4, mem(1), ['v_mov_b32 %s, 0' % v(PM + 2), 'v_mov_b32 %s, 0' % v(PM + 3)]),
               (None, tok(0, 3), ['v_mov_b32 v71, %s' % s(sNext)]), (2, tok(1, 3), []), (None, mem(2), [vml[0]]), (0, mem(3), [vml[1]])]
        for w, m, fill in seq:
            if w is not None:
                A('s_waitcnt lgkmcnt(%d)' % w)
            A(m)
            for x in fill:
                A(x)
        stamp(A, cfg, 9)
        A('v_max3_f32 %s, %s, %s, %s' % (v(M), v(S), v(S + 1), v(S + 2)))
        A('v_max3_f32 %s, %s, %s, %s' % (v(M), v(M), v(S + 3), v(S + 4)))
        A('v_max3_f32 %s, %s, %s, %s' % (v(M), v(M), v(S + 5), v(S + 6)))
        A('v_max_f32 %s, %s, %s' % (v(M), v(M), v(S + 7)))
        A('s_nop 2')
        A('v_max3_f32 %s, %s, %s, %s' % (v(M), v(M), v(S + 8), v(S + 9)))
        A('v_max3_f32 %s, %s, %s, %s' % (v(M2), v(M), v(S + 10), v(S + 11)))
        A('v_max3_f32 %s, %s, %s, %s' % (v(M), v(M), v(S + 10), v(S + 11)))
        A('s_nop 1')
        A('v_permlane32_swap_b32 %s, %s' % (v(M), v(M2)))
        A('v_max_f32 %s, %s, %s' % (v(70), v(M), v(M2)))
        A('v_max_f32 %s, %s, %s' % (v(M), v(M), v(M2)))
        A('s_nop 1')
        A('v_permlane16_swap_b32 %s, %s' % (v(M), v(70)))
        A('v_max_f32 %s, %s, %s' % (v(M), v(M), v(70)))
        A('v_mul_f32 %s, %s, %s' % (v(M), s(sNC), v(M)))
        for i in range(0, 8, 2):
            A('v_pk_fma_f32 %s, %s, %s, %s op_sel_hi:[1,1,0]' % (v(S + i, 2), v(S + i, 2), s(sC, 2), v(M, 2)))
        A('v_add_f32 %s, %s, %s' % (v(70), v(M), v(vBias)))
        if cfg.ringat == 1:
            A(RB)
        for i in range(8):
            A('v_exp_f32 %s, %s' % (v(S + i), v(S + i)))
            if i in (2, 4, 6):
                A('v_cvt_pk_bf16_f32 %s, %s, %s' % (v(PT + i // 2 - 1), v(S + i - 2), v(S + i - 1)))
        A('v_pk_fma_f32 %s, %s, %s, %s op_sel_hi:[1,1,0]' % (v(S + 8, 2), v(S + 8, 2), s(sC, 2), v(70, 2)))
        A('v_cvt_pk_bf16_f32 %s, %s, %s' % (v(PT + 3), v(S + 6), v(S + 7)))
        A('v_pk_fma_f32 %s, %s, %s, %s op_sel_hi:[1,1,0]' % (v(S + 10, 2), v(S + 10, 2), s(sC, 2), v(70, 2)))
        A('v_exp_f32 %s, %s' % (v(S + 8), v(S + 8)))
        OA = 24
        A('%s %s, %s, %s, 0' % (MF, v(LS, 4), v(ONES, 4), v(PT, 4)))
        if cfg.ringat == 5:
            A(RB)
        A('v_exp_f32 %s, %s' % (v(S + 9), v(S + 9)))
        A('%s %s, %s, %s, 0' % (MF, v(OA, 4), v(VX, 4), v(PT, 4)))
        A('v_exp_f32 %s, %s' % (v(S + 10), v(S + 10)))
        A('%s %s, %s, %s, 0' % (MF, v(OA + 4, 4), v(VX + 4, 4), v(PT, 4)))
        if cfg.ringat == 4:
            A(RB)
        A('v_exp_f32 %s, %s' % (v(S + 11), v(S + 11)))
        l, d = A.uid('vm'), A.uid('vmd')
        stamp(A, cfg, 7)
        A('s_waitcnt vmcnt(%d)' % (0 if cfg.ringat in (2, 3) else 1))
        A.label(l)
        A('v_max_u32 %s, %s, %s' % (v(vT), v(VM), v(VM + 4)))
        A('v_cmp_eq_u32 vcc, -1, %s' % v(vT))
        A('v_cvt_pk_bf16_f32 %s, %s, %s' % (v(PM), v(S + 8), v(S + 9)))
        A('v_cvt_pk_bf16_f32 %s, %s, %s' % (v(PM + 1), v(S + 10), v(S + 11)))
        A('s_nop 0')
        A('s_cbranch_vccnz %s' % d)
        A.ool(d + ':')
        for t in range(2):
            A.ool('buffer_load_dwordx2 %s, %s, %s, %s offen offset:%d sc1' % (v(VM + 4 * t, 2), v(vVM), s(sWS, 4), s(sVM), 256 * t))
        A.ool('s_sub_u32 %s, %s, 1\ns_cbranch_scc1 L_end\ns_waitcnt vmcnt(0)\ns_branch %s' % (s(sBUD), s(sBUD), l))
        stamp(A, cfg, 8)
        A('%s %s, %s, %s, %s' % (MF, v(LS, 4), v(ONES, 4), v(PM, 4), v(LS, 4)))
        for t in range(2):
            A('%s %s, %s, %s, %s' % (MF, v(OA + 4 * t, 4), v(VM + 4 * t, 4), v(PM, 4), v(OA + 4 * t, 4)))
        A(RB if cfg.ringat == 2 else 's_nop 0')
        A('v_rcp_f32 %s, %s' % (v(M), v(LS)))
        A('s_nop 1')
        for i in range(0, 4, 2):
            A('v_pk_mul_f32 %s, %s, %s op_sel_hi:[1,0]' % (v(OA + i, 2), v(OA + i, 2), v(M, 2)))
        A('v_cvt_pk_bf16_f32 %s, %s, %s' % (v(OA), v(OA), v(OA + 1)))
        A('v_cvt_pk_bf16_f32 %s, %s, %s' % (v(OA + 1), v(OA + 2), v(OA + 3)))
        for i in range(4, 8, 2):
            A('v_pk_mul_f32 %s, %s, %s op_sel_hi:[1,0]' % (v(OA + i, 2), v(OA + i, 2), v(M, 2)))
        A('v_min_u32 %s, -2, %s' % (v(OA), v(OA)))
        A('v_cvt_pk_bf16_f32 %s, %s, %s' % (v(OA + 2), v(OA + 4), v(OA + 5)))
        A('v_cvt_pk_bf16_f32 %s, %s, %s' % (v(OA + 3), v(OA + 6), v(OA + 7)))
        A('buffer_store_dwordx4 %s, %s, %s, %s offen%s' % (v(OA, 4), v(vO), s(sWS, 4), s(sO), sfx))
        if cfg.ringat == 3:
            A(RB)
        stamp(A, cfg, 3)
        for u in range(2):
            A('ds_read_b64_tr_b16 %s, %s offset:%d' % (v(32 + 2 * u, 2), v(vKMr), 1024 + 128 * u))
        for i in range(4):
            A('v_mov_b32 %s, -1' % v(36 + i))
        ring(A, sT0, sO, -1, 32 * KB)
        A('buffer_store_dwordx4 v[36:39], %s, %s, %s offen%s' % (v(vO), s(sWS, 4), s(sT0), sfx))
        A('v_mov_b32 %s, %s' % (v(40), s(sSTEP)))
        A('buffer_store_dword v40, %s, %s, %s offen sc1' % (v(vOne), s(sWS, 4), s(sFlag)))
        A('s_waitcnt lgkmcnt(0)')
        if not cfg.nokm:
            A('buffer_store_dwordx4 v[32:35], %s, %s, %s offen sc1' % (v(vKMo), s(sWS, 4), s(sKM)))
        A('s_add_u32 %s, %s, %d' % (s(sKM), s(sKM), 64 * KB))
        fetch_kv()
        kv_ready(2)
        stamp_flush(A, cfg, 15, vT, vOne)
        for reg, stepb in ((sO, 32 * KB), (sMem, 16 * KB), (sVM, 2 * KB)):
            ring_adv(A, reg, stepb)
        A('s_add_u32 %s, %s, 1' % (s(sSTEP), s(sSTEP)))
        A('s_branch %s' % step)
        A(';endeven')
        A.flush_tail()
    A.label('L_qk_last')
    for u in range(2):
        A('ds_read_b64_tr_b16 %s, %s offset:%d' % (v(32 + 2 * u, 2), v(vKMr), 1024 + 128 * u))
    A('s_waitcnt lgkmcnt(0)')
    A('buffer_store_dwordx4 v[32:35], %s, %s, %s offen sc1' % (v(vKMo), s(sWS, 4), s(sKM)))
    A('s_waitcnt vmcnt(0)')
    A('s_barrier')
    gstamp(A, cfg, 3, vOne, True)
    A('v_mov_b32 v40, %d' % cfg.nsteps)
    A('buffer_store_dword v40, %s, %s, %s offen sc1' % (v(vOne), s(sWS, 4), s(sFlag)))
    A('s_branch L_end')


def gen_vo(A, cfg):
    vT = 1; vA = 2; vB = 3; vPoll = 4; vSamp = 5; vRw = 6; vRr = 7; vIdx = 8; vT16 = 9; vT8 = 10
    vVM = 11; vOp = 12; vOne = 13; vSp = 14; vRw2 = 15
    ACC, AR, SW = 16, 48, 64
    OP = 32
    WV0 = 128
    WV1 = 192
    sMem, sO, sVM, sVMG, sPart, sRem, sFlag, sO2, sMemW, sBell, sR0, sR1, sR2, sSel = range(50, 64)
    sNan, sVer, sNext, sRing, sBellO = 64, 66, 67, 26 + 1, 96
    A.label('L_vo')
    A('s_lshl_b32 %s, %s, 4' % (s(sT1), s(sGRP)))
    A('s_add_u32 %s, %s, %s' % (s(sT1), s(sT1), s(sJ)))
    common_chain_init(A, vB, vSp, vA, vOne, vIdx)
    gstamp(A, cfg, 0, vOne, True)
    srd(A, sSA, sWV, 8 * MB)
    srd(A, sSB, sWO, 8 * MB)
    A('s_and_b32 %s, %s, 1' % (s(sT0), s(sWAVE)))
    A('s_lshl_b32 %s, %s, 6' % (s(sT0), s(sT0)))
    A('v_add_u32 v16, %s, v0' % s(sT0))
    A('v_lshlrev_b32 %s, 4, v16' % v(vT16))
    A('v_lshlrev_b32 %s, 3, v16' % v(vT8))
    A('s_lshl_b32 %s, %s, 16' % (s(sMem), s(sGRP)))
    A('s_add_u32 %s, %s, %d' % (s(sMem), s(sMem), MEMR))
    A('s_lshl_b32 %s, %s, 10' % (s(sT0), s(sJ)))
    A('s_add_u32 %s, %s, %s' % (s(sMemW), s(sMem), s(sT0)))
    A('s_lshl_b32 %s, %s, 17' % (s(sO), s(sGRP)))
    A('s_add_u32 %s, %s, %d' % (s(sO), s(sO), OR_))
    A('s_lshl_b32 %s, %s, 13' % (s(sVM), s(sT1)))
    A('s_add_u32 %s, %s, %d' % (s(sVM), s(sVM), VMR))
    A('s_lshl_b32 %s, %s, 11' % (s(sVMG), s(sT1)))
    A('s_add_u32 %s, %s, %s' % (s(sVMG), s(sVMG), hx(VMG)))
    A('s_lshl_b32 %s, %s, 16' % (s(sRem), s(sT1)))
    A('s_xor_b32 %s, %s, %d' % (s(sPart), s(sRem), 16 << 16))
    A('s_add_u32 %s, %s, %s' % (s(sPart), s(sPart), hx(PART)))
    A('s_add_u32 %s, %s, %s' % (s(sRem), s(sRem), hx(PART)))
    A('s_lshl_b32 %s, %s, 7' % (s(sFlag), s(sT1)))
    A('s_add_u32 %s, %s, %d' % (s(sFlag), s(sFlag), CT_VM))
    A('s_and_b32 %s, %s, 1' % (s(sSel), s(sWAVE)))
    A('s_lshl_b32 %s, %s, 13' % (s(sSel), s(sSel)))
    A('s_lshr_b32 %s, %s, 1' % (s(sT0), s(sWAVE)))
    A('s_lshl_b32 %s, %s, 10' % (s(sT0), s(sT0)))
    A('s_add_u32 %s, %s, %s' % (s(sSel), s(sSel), s(sT0)))
    A('s_add_u32 %s, %s, %s' % (s(sSel), s(sSel), s(sRem)))
    A('s_add_u32 %s, %s, %d' % (s(sSel), s(sSel), 32 * KB))
    A('s_lshl_b32 %s, %s, 10' % (s(sRing), s(sGRP)))
    A('s_lshl_b32 %s, %s, 8' % (s(sBell), s(sWAVE)))
    A('s_add_u32 %s, %s, %s' % (s(sBell), s(sBell), s(sRing)))
    A('s_add_u32 %s, %s, %d' % (s(sBell), s(sBell), CT_BELL))
    A('s_add_u32 %s, %s, 2048' % (s(sBellO), s(sBell)))
    A('s_lshr_b32 %s, %s, 2' % (s(sT0), s(sJ)))
    A('s_lshl_b32 %s, %s, 8' % (s(sT0), s(sT0)))
    A('s_add_u32 %s, %s, %s' % (s(sRing), s(sRing), s(sT0)))
    A('s_and_b32 %s, %s, 3' % (s(sT0), s(sJ)))
    A('s_lshl_b32 %s, %s, 3' % (s(sT0), s(sT0)))
    A('s_add_u32 %s, %s, %s' % (s(sRing), s(sRing), s(sT0)))
    A('s_and_b32 %s, %s, 1' % (s(sT0), s(sWAVE)))
    A('s_lshl_b32 %s, %s, 2' % (s(sT0), s(sT0)))
    A('s_add_u32 %s, %s, %s' % (s(sRing), s(sRing), s(sT0)))
    A('s_add_u32 %s, %s, %d' % (s(sRing), s(sRing), CT_BELL))
    A('s_lshl_b32 %s, %s, 9' % (s(sT0), s(sWAVE)))
    A('v_lshlrev_b32 %s, 3, v0' % v(vVM))
    A('v_add_u32 %s, %s, %s' % (v(vVM), s(sT0), v(vVM)))
    A('v_lshrrev_b32 v17, 4, v16')
    A('v_lshlrev_b32 v17, 3, v17')
    A('v_and_b32 v18, 1, v0')
    A('v_lshl_add_u32 v17, v18, 2, v17')
    A('v_bfe_u32 v18, v0, 1, 3')
    A('v_mul_u32_u24 v19, 320, v18')
    A('v_lshl_add_u32 v19, v17, 2, v19')
    A('v_add_u32 %s, %d, v19' % (v(vRr), RED))
    A('v_lshlrev_b32 v18, 11, v18')
    A('v_lshl_add_u32 v17, v17, 1, v18')
    A('s_lshl_b32 %s, %s, 7' % (s(sT0), s(sJ)))
    A('v_add_u32 v17, %s, v17' % s(sT0))
    A('global_load_dwordx2 v[126:127], v17, %s' % s(sMEM0, 2))
    lane_consts(A, 16, 17, 24)
    sparse_rowlane_mem(A, 22, 16, 17, 25)
    A('s_lshl_b32 %s, %s, 8' % (s(sT0), s(sT1)))
    A('s_lshl_b32 %s, %s, 6' % (s(sT2), s(sWAVE)))
    A('s_add_u32 %s, %s, %s' % (s(sT2), s(sT2), s(sT0)))
    vPair, vPairO = vPoll, vOp
    dma_offsets(A, vPair, 22, 24, 25, 13, sT2)
    sparse_rowlane_o(A, 22, 16, 17, 25)
    A('s_lshl_b32 %s, %s, 22' % (s(sT0), s(sGRP)))
    A('s_lshl_b32 %s, %s, 20' % (s(sT2), s(sWAVE)))
    A('s_add_u32 %s, %s, %s' % (s(sT0), s(sT0), s(sT2)))
    A('s_lshl_b32 %s, %s, 7' % (s(sT2), s(sJ)))
    A('s_add_u32 %s, %s, %s' % (s(sT2), s(sT2), s(sT0)))
    dma_offsets(A, vPairO, 22, 24, 25, 11, sT2)
    ops = []
    for ks in range(16):
        for hb in range(2):
            for u in range(2):
                q = 4 * hb + 2 * u
                ops.append(dict(nt='v' in cfg.nt, srd=sSA, voff=vPair, soff=(64 * ks + 32 * hb + 2 * u) * 8192,
                                reads=[(v(WV0 + ks * 8 + q, 2), 0),
                                       (a(WV1 + ks * 8 + q, 2) if ks < 8 else ('res', 2 * (ks - 8) + hb, u), 512)]))
    lo, hi = [], []
    for ks in range(8):
        for hb in range(2):
            for u in range(2):
                q, so = 4 * hb + 2 * u, (64 * ks + 8 * hb + 2 * u) * 2048
                lo.append(dict(nt='o' in cfg.nt, srd=sSB, voff=vPairO, soff=so, reads=[(a((ks * 3 + t) * 8 + q, 2), 512 * t) for t in range(2)]))
                hi.append(dict(nt='o' in cfg.nt, srd=sSB, voff=vPairO, soff=so + 64, reads=[(a((ks * 3 + 2) * 8 + q, 2), 0), (('res', 16 + 2 * ks + hb, u), 512)]))
    for i in range(0, 32, 8):
        ops += lo[i:i + 8] + hi[i:i + 8]

    def init(n):
        verdict_arrive(A, vT, 118)
        for i in range(4):
            A('v_mov_b32 %s, -1' % v(120 + i))
        for sl in range(1, 4):
            A('s_add_u32 %s, %s, %d' % (s(sT0), s(sMemW), sl * 16 * KB))
            A('buffer_store_dwordx2 v[120:121], %s, %s, %s offen sc1' % (v(vT8), s(sWS, 4), s(sT0)))
        for sl in range(4):
            A('s_add_u32 %s, %s, %d' % (s(sT0), s(sVM), sl * 2 * KB))
            A('buffer_store_dwordx2 v[120:121], %s, %s, %s offen sc1' % (v(vVM), s(sWS, 4), s(sT0)))
        for k in range(8 * cfg.nrep):
            A('s_add_u32 %s, %s, %d' % (s(sT0), s(sRem), k * 2 * KB))
            A('buffer_store_dwordx4 v[120:123], %s, %s, %s offen sc1' % (v(vT16), s(sWS, 4), s(sT0)))
        A('v_mov_b32 v124, 0')
        A('buffer_store_dword v124, %s, %s, %s offen sc1' % (v(vOne), s(sWS, 4), s(sFlag)))
        A('buffer_store_dword v124, %s, %s, %s offen sc1' % (v(vOne), s(sWS, 4), s(sRing)))
        A('s_waitcnt vmcnt(%d)' % min(63, n + 3 + 4 + 8 * cfg.nrep + 2))
        A('v_min_u32 v126, -2, v126')
        A('v_min_u32 v127, -2, v127')
        A('buffer_store_dwordx2 v[126:127], %s, %s, %s offen sc1' % (v(vT8), s(sWS, 4), s(sMemW)))
        A('s_add_u32 %s, %s, %d' % (s(sMemW), s(sMemW), 16 * KB))
    weight_loader(A, ops, vB, vSp, init, resident=32, vfin=vSamp, hooks={40: lambda: grid_arrive(A, vT, vSamp)})
    A('v_mov_b32 %s, %s' % (v(vB), v(vSamp)))
    gstamp(A, cfg, 1, vOne, True)
    A('v_lshlrev_b32 v16, 4, v0')
    A('s_lshl_b32 %s, %s, 12' % (s(sT0), s(sWAVE)))
    A('v_add_u32 %s, %s, v16' % (v(vPoll), s(sT0)))
    A('v_and_b32 %s, 7, v0' % v(vSamp))
    A('v_lshlrev_b32 %s, 2, %s' % (v(vSamp), v(vSamp)))
    A('v_and_b32 %s, 15, v0' % v(vSp))
    A('v_lshlrev_b32 %s, 2, %s' % (v(vSp), v(vSp)))
    A('s_add_u32 m0, %s, %d' % (s(sT0), MS))
    A('s_lshl_b32 %s, %s, 13' % (s(sT0), s(sWAVE)))
    A('v_add_u32 %s, %s, v16' % (v(vOp), s(sT0)))
    A('v_lshrrev_b32 v16, 5, v0')
    A('v_lshlrev_b32 v16, 4, v16')
    A('v_and_b32 v17, 15, v0')
    A('v_add_u32 v16, v16, v17')
    A('v_lshlrev_b32 v16, 2, v16')
    A('v_bfe_u32 v17, v0, 4, 1')
    A('v_mul_u32_u24 v17, 1280, v17')
    A('v_add_u32 v16, v17, v16')
    A('s_mul_i32 %s, %s, 2560' % (s(sT0), s(sWAVE)))
    A('s_add_u32 %s, %s, %d' % (s(sT0), s(sT0), RED))
    A('v_add_u32 %s, %s, v16' % (v(vRw), s(sT0)))
    A('v_add_u32 %s, 128, %s' % (v(vRw2), v(vRw)))
    verdict(A, 16, 18)
    grid_wait(A, 16, 18, cfg, [(192, cfg.nchain)])
    A('s_barrier')
    A('s_mov_b32 %s, 0' % s(sSTEP))
    A('s_mov_b32 %s, -1' % s(sVer))
    A('s_mov_b32 s98, 0')
    A('s_mov_b32 s97, 0')

    others = ((sO, 32 * KB), (sMemW, 16 * KB), (sVM, 2 * KB), (sPart, 2 * KB), (sRem, 2 * KB))
    sMask = 99

    def swap_in(base):
        for k in range(16):
            A('ds_read_b128 %s, %s offset:%d' % (v(SW + 4 * k, 4), v(vB), base + 1024 * k))

    def aread(ks):
        return 'ds_read_b128 %s, %s offset:%d' % (v(AR + 4 * (ks % 4), 4), v(vA), ks * 1024)

    def part_addr(base, hi, k):
        return (base if k < 1 else hi + k - 1), 0

    for reg, stepb in others:
        ring(A, sT0, reg, -1, stepb)
        A('s_mov_b32 %s, %s' % (s(reg), s(sT0)))
    A('s_lshr_b32 %s, %s, 1' % (s(sMask), s(sWAVE)))
    A('s_lshl_b32 %s, %s, 30' % (s(sMask), s(sMask)))
    gstamp(A, cfg, 2, vOne, True)
    A('s_cmp_eq_u32 %s, 1' % s(sLOCAL))
    A('s_cbranch_scc0 L_vo_step_g')
    for tag, sfx in (('l', ''), ('g', ' sc1')):
        step = 'L_vo_step_' + tag
        align(A, cfg.val)
        A(';even')
        A.label(step)
        stamp(A, cfg, 0)
        wait_bell(A, vSamp, sBell, [32, 33, 34, 35][:cfg.vdepth], sSTEP)
        dma_mem(A, vPoll, sMem)
        stamp(A, cfg, 1)
        swap_in(0)
        for i in range(8):
            A('v_mov_b32 %s, 0' % v(ACC + i))
        for i in range(4):
            A('v_mov_b32 %s, -1' % v(ACC + 8 + i))
        A('v_mov_b32 %s, %s' % (v(ACC + 12), s(sSTEP)))
        A('v_or_b32 %s, %s, %s' % (v(ACC + 13), s(sMask), v(vT16)))
        A('s_mov_b32 %s, %s' % (s(sR1), s(sVM)))
        A('s_mov_b32 %s, %s' % (s(sR2), s(sRem)))
        for reg, stepb in others:
            ring_adv(A, reg, stepb)
        ring(A, sR0, sMemW, -2, 16 * KB)
        A('s_add_u32 %s, %s, 1' % (s(sNext), s(sSTEP)))
        A('s_waitcnt vmcnt(0) lgkmcnt(0)')
        A.label(step + '_go')
        A('s_barrier')
        for ks in range(4):
            A(aread(ks))
        house = ['buffer_store_dwordx2 %s, %s, %s, %s offen%s' % (v(ACC + 8, 2), v(vT8), s(sWS, 4), s(sR0), sfx),
                 'buffer_store_dwordx2 %s, %s, %s, %s offen%s' % (v(ACC + 8, 2), v(vVM), s(sWS, 4), s(sR1), sfx),
                 'buffer_store_dword %s, %s, %s, %s offen sc1' % (v(ACC + 12), v(vOne), s(sWS, 4), s(sFlag))]
        for k in range(cfg.nrep):
            house.append('s_add_u32 %s, %s, %d' % (s(sT1), s(sR2), 16 * KB * k))
            house.append('buffer_store_dwordx4 %s, %s, %s, %s offen sc1' % (v(ACC + 8, 4), v(ACC + 13), s(sWS, 4), s(sT1)))
        for ks in range(16):
            A('s_waitcnt lgkmcnt(%d)' % min(3, 15 - ks))
            Aop = v(AR + 4 * (ks % 4), 4)
            A('%s %s, %s, %s, %s' % (SMF, v(ACC, 4), Aop, v(WV0 + ks * 8, 8), v(vIdx)))
            if house:
                A(house.pop(0))
            A('%s %s, %s, %s, %s' % (SMF, v(ACC + 4, 4), Aop, a(WV1 + ks * 8, 8) if ks < 8 else v(SW + (ks - 8) * 8, 8), v(vIdx)))
            if ks + 4 < 16:
                A(aread(ks + 4))
        assert not house
        A('s_nop 7')
        for r in range(4):
            A('v_permlane32_swap_b32 %s, %s' % (v(ACC + r), v(ACC + 4 + r)))
        for r in (0, 2):
            A('v_pk_add_f32 %s, %s, %s' % (v(ACC + r, 2), v(ACC + r, 2), v(ACC + 4 + r, 2)))
        A('v_cmp_u_f32 vcc, %s, %s' % (v(ACC), v(ACC + 1)))
        A('v_cmp_u_f32 %s, %s, %s' % (s(sNan, 2), v(ACC + 2), v(ACC + 3)))
        A('v_cvt_pk_bf16_f32 %s, %s, %s' % (v(ACC + 4), v(ACC), v(ACC + 1)))
        A('v_cvt_pk_bf16_f32 %s, %s, %s' % (v(ACC + 5), v(ACC + 2), v(ACC + 3)))
        A('v_min_u32 %s, -2, %s' % (v(ACC + 4), v(ACC + 4)))
        A('s_or_b64 vcc, vcc, %s' % s(sNan, 2))
        A('s_cbranch_vccnz %s_nan' % step)
        A.label(step + '_ok')
        nan_net(A, cfg, step + '_nan', step + '_ok', ['v_mov_b32 %s, 0' % v(ACC + i) for i in range(8)], step + '_go', vA, vPoll, sMem, AR, vT, sNan, sVer)
        A('buffer_store_dwordx2 %s, %s, %s, %s offen%s' % (v(ACC + 4, 2), v(vVM), s(sWS, 4), s(sVM), sfx))
        if not cfg.nokm:
            A('buffer_store_dwordx2 %s, %s, %s, %s offen sc1' % (v(ACC + 4, 2), v(vVM), s(sWS, 4), s(sVMG)))
        A('s_add_u32 %s, %s, %d' % (s(sVMG), s(sVMG), 64 * KB))
        stamp(A, cfg, 2)
        A('s_cmp_eq_u32 %s, %d' % (s(sSTEP), cfg.nsteps - 1))
        A('s_cbranch_scc1 L_vo_last')
        swap_in(16 * KB)
        for i in range(16):
            A('v_mov_b32 %s, 0' % v(ACC + i))
        A('s_add_u32 %s, %s, 4096' % (s(sO2), s(sO)))
        for k in range(1, cfg.nrep):
            A('s_add_u32 %s, %s, %d' % (s(sR0 + k - 1), s(sPart), 16 * KB * k))

        def oload(p):
            return 'buffer_load_dwordx4 %s, %s, %s, %s offen offset:%d sc1' % (v(OP + 4 * p, 4), v(vOp), s(sWS, 4), s(sO if p < 4 else sO2), 1024 * (p & 3))

        def omf(p, t):
            B = a((p * 3 + t) * 8, 8) if t < 3 else v(SW + p * 8, 8)
            return '%s %s, %s, %s, %s' % (SMF, v(ACC + 4 * t, 4), v(OP + 4 * p, 4), B, v(vIdx))
        base = A.uid('op')
        if cfg.near:
            A('s_cmp_lt_u32 %s, 6' % s(sSTEP))
            A('s_cbranch_scc1 %s_early' % base)
            A.label(base + '_cal')
            main, A.lines = A.lines, []
            A.label(base + '_early')
            A('s_cmp_eq_u32 %s, 2' % s(sSTEP))
            A('s_cbranch_scc1 %s_probe' % base)
            A('s_cmp_eq_u32 %s, 5' % s(sSTEP))
            A('s_cbranch_scc1 %s_pick' % base)
            A('s_cmp_lg_u32 %s, 1' % s(sSTEP))
            A('s_cbranch_scc1 %s_cal' % base)
            A('v_and_b32 v32, 0x3ff, %s' % v(vT16))
            A('buffer_store_dwordx4 %s, v32, %s, %s offen sc1' % (v(ACC, 4), s(sWS, 4), s(sSel)))
            A('s_branch %s_cal' % base)
            A.label(base + '_probe')
            A('s_waitcnt vmcnt(0) lgkmcnt(0)')
            A('s_mov_b32 s64, -1')
            for rep in range(3):
                A('s_memtime s[68:69]')
                A('s_waitcnt lgkmcnt(0)')
                A('s_mov_b32 s65, s68')
                A('buffer_load_dword v32, %s, %s, %s offen offset:%d sc1' % (v(vOne), s(sWS, 4), s(sSel), 256 * rep))
                A('s_waitcnt vmcnt(0)')
                A('s_memtime s[68:69]')
                A('s_waitcnt lgkmcnt(0)')
                A('s_sub_u32 s68, s68, s65')
                A('s_min_u32 s64, s64, s68')
            A('s_lshl_b32 %s, %s, 2' % (s(sT0), s(sWAVE)))
            A('v_mov_b32 v33, %d' % RED)
            A('v_add_u32 v34, %s, v33' % s(sT0))
            A('v_mov_b32 v32, s64')
            A('ds_write_b32 v34, v32')
            A('s_waitcnt lgkmcnt(0)')
            A('s_barrier')
            A('ds_read_b128 v[36:39], v33')
            A('s_waitcnt lgkmcnt(0)')
            A('s_barrier')
            A('v_min_u32 v36, v36, v38')
            A('v_min_u32 v37, v37, v39')
            A('v_cmp_lt_u32 vcc, v37, v36')
            A('s_lshl_b32 %s, %s, 3' % (s(sT0), s(sGRP)))
            A('s_lshl_b32 %s, 0x100, %s' % (s(sT0), s(sT0)))
            A('s_cmp_eq_u64 vcc, 0')
            A('s_cselect_b32 %s, 0, %s' % (s(sT0), s(sT0)))
            A('s_add_u32 %s, %s, 1' % (s(sT0), s(sT0)))
            A('s_cmp_lg_u32 %s, 0' % s(sWAVE))
            A('s_cbranch_scc1 %s_cal' % base)
            A('s_mov_b64 exec, 1')
            A('v_mov_b32 v32, 0')
            A('v_mov_b32 v33, %s' % s(sT0))
            A('global_atomic_add v32, v33, %s offset:196 sc1' % s(sDBG, 2))
            A('s_mov_b64 exec, -1')
            A('s_branch %s_cal' % base)
            A.label(base + '_pick')
            A('v_mov_b32 v32, 0')
            A('global_load_dword v33, v32, %s offset:196 sc1' % s(sDBG, 2))
            spin_fail(A)
            A('s_waitcnt vmcnt(0)')
            A('v_readfirstlane_b32 %s, v33' % s(sT1))
            A('s_and_b32 %s, %s, 0xff' % (s(sT0), s(sT1)))
            A('s_cmp_lt_u32 %s, 32' % s(sT0))
            A('s_cbranch_scc1 %s_pick' % base)
            if cfg.dbgt:
                A('s_mov_b32 s95, %s' % s(sT1))
            for reg, flip in ((sRem, 0), (sPart, 1)):
                A('s_xor_b32 %s, %s, %d' % (s(sT0), s(sGRP), flip))
                A('s_lshl_b32 %s, %s, 3' % (s(sT0), s(sT0)))
                A('s_add_u32 %s, %s, 8' % (s(sT0), s(sT0)))
                A('s_lshr_b32 %s, %s, %s' % (s(sT0), s(sT1), s(sT0)))
                A('s_and_b32 %s, %s, 0xff' % (s(sT0), s(sT0)))
                A('s_cmp_gt_u32 %s, 8' % s(sT0))
                A('s_cselect_b32 %s, %d, 0' % (s(sT0), 8 * KB))
                A('s_add_u32 %s, %s, %s' % (s(reg), s(reg), s(sT0)))
            A('s_branch %s_cal' % base)
            A.tail += A.lines
            A.lines = main
        A('v_mov_b32 v0, %s' % s(sNext))
        A('s_waitcnt lgkmcnt(0)')
        if cfg.osleep:
            A('s_sleep %d' % cfg.osleep)
        wait_bell(A, vSp, sBellO, [OP, OP + 1, OP + 2, OP + 3][:cfg.odepth], sNext, [oload(0)])
        NU = cfg.oup
        for p in range(1, NU):
            A(oload(p))
        stamp(A, cfg, 9)
        for p in range(-1, 8):
            issued = min(8, NU + p + 1)
            if p == 6 and cfg.otail:
                A.label('%s_c6' % base)
                A(omf(6, 0)); A(omf(6, 1))
                A('s_waitcnt vmcnt(0)')
                A('v_cmp_eq_u32 vcc, -1, %s' % v(OP + 28))
                A(omf(6, 2))
                A('s_cbranch_vccnz %s_f7' % base)
                A.ool('%s_f7:' % base)
                A.ool(oload(7))
                A.ool('s_sub_u32 %s, %s, 1\ns_cbranch_scc1 L_end' % (s(sBUD), s(sBUD)))
                A.ool('s_waitcnt vmcnt(0)')
                A.ool('v_cmp_eq_u32 vcc, -1, %s' % v(OP + 28))
                A.ool('s_cbranch_vccnz %s_f7' % base)
                A.ool('s_branch %s_c7' % base)
                A.label('%s_c7' % base)
                A(omf(7, 0)); A(omf(7, 1)); A(omf(6, 3)); A(omf(7, 2))
                A('v_permlane32_swap_b32 %s, %s' % (v(ACC), v(ACC + 4)))
                A(omf(7, 3))
                break
            if p >= 0:
                A.label('%s_c%d' % (base, p))
                A(omf(p, 0))
                if NU + p < 8:
                    A(oload(NU + p))
                A(omf(p, 1))
            if p < 7:
                A('s_waitcnt vmcnt(%d)' % (issued - p - 2))
                A('v_cmp_eq_u32 vcc, -1, %s' % v(OP + 4 * (p + 1)))
            if p >= 0:
                A(omf(p, 2))
                A(omf(p, 3))
            if p < 7:
                fix = '%s_f%d' % (base, p + 1)
                A('s_cbranch_vccnz %s' % fix)
                A.ool(fix + ':')
                if cfg.profile in (1, 2):
                    A.ool('s_add_u32 s97, s97, 1')
                for k in range(p + 1, issued):
                    A.ool(oload(k))
                A.ool('s_sub_u32 %s, %s, 1\ns_cbranch_scc1 L_end' % (s(sBUD), s(sBUD)))
                A.ool('s_waitcnt vmcnt(%d)' % (issued - p - 2))
                A.ool('v_cmp_eq_u32 vcc, -1, %s' % v(OP + 4 * (p + 1)))
                A.ool('s_cbranch_vccnz %s' % fix)
                A.ool('s_branch %s_c%d' % (base, p + 1))
        A.label('%s_done' % base)
        stamp(A, cfg, 3)
        for tp in range(2):
            for r in range(1 if cfg.otail and tp == 0 else 0, 4):
                A('v_permlane32_swap_b32 %s, %s' % (v(ACC + 8 * tp + r), v(ACC + 8 * tp + 4 + r)))
            for r in (0, 2):
                A('v_pk_add_f32 %s, %s, %s' % (v(ACC + 8 * tp + r, 2), v(ACC + 8 * tp + r, 2), v(ACC + 8 * tp + 4 + r, 2)))
            for r in (0, 2):
                A('ds_write2_b32 %s, %s, %s offset0:%d offset1:%d' % (v(vRw2 if tp else vRw), v(ACC + 8 * tp + r), v(ACC + 8 * tp + r + 1), 80 * r, 80 * r + 80))
        A('s_cmp_ge_u32 %s, 2' % s(sWAVE))
        A('s_waitcnt lgkmcnt(0)')
        A('s_barrier')
        stamp(A, cfg, 7)
        for p in range(4):
            A('ds_read_b128 %s, %s offset:%d' % (v(ACC + 4 * p, 4), v(vRr), 2560 * p))
        A('s_waitcnt lgkmcnt(2)')
        for c in (0, 2):
            A('v_pk_add_f32 %s, %s, %s' % (v(ACC + c, 2), v(ACC + c, 2), v(ACC + 4 + c, 2)))
        A('s_waitcnt lgkmcnt(0)')
        for c in (0, 2):
            A('v_pk_add_f32 %s, %s, %s' % (v(ACC + 8 + c, 2), v(ACC + 8 + c, 2), v(ACC + 12 + c, 2)))
        for c in (0, 2):
            A('v_pk_add_f32 %s, %s, %s' % (v(ACC + c, 2), v(ACC + c, 2), v(ACC + 8 + c, 2)))
        A('s_cbranch_scc1 %s_ld' % step)
        A('v_min_u32 %s, -2, %s' % (v(ACC), v(ACC)))
        for k in range(cfg.nrep):
            r, o = part_addr(sPart, sR0, k)
            A('buffer_store_dwordx4 %s, %s, %s, %s offen offset:%d sc1' % (v(ACC, 4), v(vT16), s(sWS, 4), s(r), o))
        stamp(A, cfg, 4)
        A('s_branch %s_fin' % step)
        A.label(step + '_ld')
        for k in range(1, cfg.nrep):
            A('s_add_u32 %s, %s, %d' % (s(sR0 + k - 1), s(sRem), 16 * KB * k))

        def rload(k):
            r, o = part_addr(sRem, sR0, k)
            return 'buffer_load_dwordx4 %s, %s, %s, %s offen offset:%d sc1' % (v(OP + 4 * k, 4), v(vT16), s(sWS, 4), s(r), o)
        stamp(A, cfg, 10)
        if cfg.profile in (1, 2):
            A('s_mov_b32 %s, 0' % s(sSTAMP + 22))
        for k in range(cfg.nrep):
            if cfg.rsleep[k]:
                A('s_sleep %d' % cfg.rsleep[k])
            A(rload(k))
        stamp(A, cfg, 8)
        got = A.uid('got')
        for k in range(cfg.nrep):
            if k == cfg.nrep - 1:
                A.label(got + '_l')
            A('s_waitcnt vmcnt(%d)' % (cfg.nrep - 1 - k))
            A('v_cmp_eq_u32 vcc, -1, %s' % v(OP + 4 * k))
            if k == 0:
                A('s_cbranch_vccnz %s_%s' % (got, 'n1' if cfg.nrep > 1 else 'again'))
                break
        for c in (0, 2):
            A('v_pk_add_f32 %s, %s, %s' % (v(ACC + c, 2), v(ACC + c, 2), v(OP + c, 2)))
        if cfg.profile in (1, 2):
            A('s_mov_b32 %s, 0' % s(sSTAMP + 12))
        A.label(got + '_fin')
        if cfg.mring == 0:
            A('buffer_store_dword v0, %s, %s, %s offen%s' % (v(vOne), s(sWS, 4), s(sRing), sfx))
        A('v_cvt_pk_bf16_f32 %s, %s, %s' % (v(ACC + 12), v(ACC), v(ACC + 1)))
        A('v_cvt_pk_bf16_f32 %s, %s, %s' % (v(ACC + 13), v(ACC + 2), v(ACC + 3)))
        A('v_min_u32 %s, -2, %s' % (v(ACC + 12), v(ACC + 12)))
        A('v_min_u32 %s, -2, %s' % (v(ACC + 13), v(ACC + 13)))
        A('buffer_store_dwordx2 %s, %s, %s, %s offen%s' % (v(ACC + 12, 2), v(vT8), s(sWS, 4), s(sMemW), sfx))
        if cfg.mring == 1:
            A('buffer_store_dword v0, %s, %s, %s offen%s' % (v(vOne), s(sWS, 4), s(sRing), sfx))
        for k in range(1, cfg.nrep):
            A.ool('%s_n%d:' % (got, k))
            A.ool('s_waitcnt vmcnt(%d)' % (cfg.nrep - 1 - k))
            A.ool('v_cmp_eq_u32 vcc, -1, %s' % v(OP + 4 * k))
            if k < cfg.nrep - 1:
                A.ool('s_cbranch_vccnz %s_n%d' % (got, k + 1))
            else:
                A.ool('s_cbranch_vccnz %s_again' % got)
            for c in (0, 2):
                A.ool('v_pk_add_f32 %s, %s, %s' % (v(ACC + c, 2), v(ACC + c, 2), v(OP + 4 * k + c, 2)))
            if cfg.profile in (1, 2):
                A.ool('s_mov_b32 %s, %d' % (s(sSTAMP + 12), k))
            A.ool('s_branch %s_fin' % got)
        A.ool(got + '_again:')
        if cfg.profile in (1, 2):
            A.ool('s_add_u32 %s, %s, 1' % (s(sSTAMP + 22), s(sSTAMP + 22)))
        A.ool(rload(cfg.nrep - 1))
        A.ool('s_sub_u32 %s, %s, 1\ns_cbranch_scc1 L_end\ns_branch %s_%s' % (s(sBUD), s(sBUD), got, 'n%d' % (cfg.nrep - 1) if cfg.nrep > 1 else 'l'))
        stamp(A, cfg, 5)
        A.label(step + '_fin')
        stamp_flush(A, cfg, 15, vT, vOne, wave=cfg.pwave)
        ring_adv(A, sMem, 16 * KB)
        A('s_add_u32 %s, %s, 1' % (s(sSTEP), s(sSTEP)))
        A('s_branch %s' % step)
        A(';endeven')
        A.flush_tail()
    A.label('L_vo_last')
    if cfg.dbgt:
        A('s_mov_b64 exec, 1')
        A('v_mov_b32 v40, 0')
        A('v_mov_b32 v41, s95')
        A('global_store_dword v40, v41, %s offset:32 sc1' % s(sDBG, 2))
        A('s_mov_b64 exec, -1')
    A('s_waitcnt vmcnt(0)')
    A('s_barrier')
    gstamp(A, cfg, 3, vOne, True)
    A('v_mov_b32 v40, %d' % cfg.nsteps)
    A('buffer_store_dword v40, %s, %s, %s offen sc1' % (v(vOne), s(sWS, 4), s(sFlag)))
    A('s_branch L_end')
```

```python
from asmlib import *
from layout import *

sWG, sXCC = 2, 3
sX, sMEM0, sWQ, sWK, sWV, sWO, sW1, sW2, sOUT, sDBG, sWSP = 4, 6, 8, 10, 12, 14, 16, 18, 20, 22, 24
sBUD = 26
sWS = 28
sSA, sSB = 32, 36
sWAVE, sGRP, sJ, sSTEP, sLOCAL = 40, 41, 42, 43, 44
sRES, sSPARE = 45, 46
sT0, sT1, sT2 = 47, 48, 49
sROT = 101
sWGV = 100
sSTAMP = 70

LDS_SPARE = 128 * KB
MS = 128 * KB
QT = 144 * KB
RED = 144 * KB

SC = 0.12751743


def f2u(x):
    import struct
    return struct.unpack('<I', struct.pack('<f', x))[0]


def srd(A, d, base, nbytes):
    A('s_mov_b32 %s, %s' % (s(d), s(base)))
    A('s_and_b32 %s, %s, 0xffff' % (s(d + 1), s(base + 1)))
    A('s_mov_b32 %s, %s' % (s(d + 2), hx(nbytes)))
    A('s_mov_b32 %s, 0x20000' % s(d + 3))


def spin_fail(A):
    A('s_sub_u32 %s, %s, 1' % (s(sBUD), s(sBUD)))
    A('s_cbranch_scc1 L_end')


def weight_loader(A, ops, vres, vspare, after_first=None, lag=3, nslots=40, resident=0, tmp=16, vfin=None, pre=None, hooks=None):
    ns = len(ops)
    off = (nslots - 1 - (ns - 1)) % nslots
    slot = lambda i: (i + off) % nslots
    issued = []
    NT = 28

    def issue(i):
        o, sl = ops[i], slot(i)
        base, so = (sRES, sl * 1024) if sl < 32 else (sSPARE, (sl - 32) * 1024)
        if so:
            A('s_add_u32 m0, %s, %d' % (s(base), so))
        else:
            A('s_mov_b32 m0, %s' % s(base))
        A('s_mov_b32 %s, %s' % (s(sT0), hx(o['soff'])))
        A('buffer_load_dwordx4 %s, %s, %s offen%s lds' % (v(o['voff']), s(o['srd'], 4), s(sT0), ' nt' if o.get('nt') else ''))
        issued.append(i)

    first = min(nslots, ns)
    for i in range(first):
        if pre and i == pre[0]:
            pre[1](i)
        issue(i)
    def call(f, *args):
        n0 = len(A.lines)
        f(*args)
        if hooks is not None:
            issued.extend(['x'] * sum(1 for x in A.lines[n0:] if x.startswith(('buffer_store', 'global_load'))))
    if after_first:
        call(after_first, first)

    def flush(lo, hi):
        A('s_waitcnt lgkmcnt(0)')
        for f in range(lo, hi):
            A('ds_write_b128 %s, %s offset:%d' % (v(vfin), v(tmp + 4 * (f % NT), 4), f * 1024))
        A('s_waitcnt lgkmcnt(0)')

    for i in range(ns):
        if resident and i == ns - 8:
            A('v_lshlrev_b32 %s, 4, v0' % v(vfin))
            A('v_add_u32 %s, %s, %s' % (v(vfin), s(sRES), v(vfin)))
            flush(0, resident - 4)
        later = len(issued) - 1 - issued.index(i)
        A('s_waitcnt vmcnt(%d)' % min(later, 63))
        if hooks and i in hooks:
            call(hooks[i])
        sl = slot(i)
        for dst, o in ops[i]['reads']:
            if isinstance(dst, tuple):
                assert (dst[1] < resident - 4) == (i < ns - 8)
                dst = v(tmp + 4 * (dst[1] % NT) + 2 * dst[2], 2)
            if sl < 32:
                A('ds_read_b64_tr_b16 %s, %s offset:%d' % (dst, v(vres), sl * 1024 + o))
            else:
                A('ds_read_b64_tr_b16 %s, %s offset:%d' % (dst, v(vspare), (sl - 32) * 1024 + o))
        if i >= lag and i - lag + nslots < ns:
            A('s_waitcnt lgkmcnt(%d)' % (2 * lag))
            issue(i - lag + nslots)
    assert len(issued) - issued.count('x') == ns
    if resident:
        flush(resident - 4, resident)
    else:
        A('s_waitcnt lgkmcnt(0)')


def grid_arrive(A, vz, vt):
    A('s_barrier')
    l = A.uid('arr')
    A('s_cmp_lg_u32 %s, 0' % s(sWAVE))
    A('s_cbranch_scc1 %s' % l)
    A('s_mov_b64 exec, 1')
    A('v_mov_b32 %s, 0' % v(vz))
    A('v_mov_b32 %s, 1' % v(vt))
    A('global_atomic_add %s, %s, %s offset:192 sc1' % (v(vz), v(vt), s(sDBG, 2)))
    A('s_mov_b64 exec, -1')
    A.label(l)


def grid_wait(A, vz, vt, cfg, which):
    for off, n, *mask in which:
        if n == 0:
            continue
        l, d = A.uid('gw'), A.uid('gwd')
        A('v_mov_b32 %s, 0' % v(vz))
        A.label(l)
        A('global_load_dword %s, %s, %s offset:%d sc1' % (v(vt), v(vz), s(sDBG, 2), off))
        A('s_waitcnt vmcnt(0)')
        A('v_readfirstlane_b32 %s, %s' % (s(sT1), v(vt)))
        if mask:
            A('s_and_b32 %s, %s, %d' % (s(sT1), s(sT1), mask[0]))
        A('s_cmp_ge_u32 %s, %d' % (s(sT1), n))
        A('s_cbranch_scc1 %s' % d)
        spin_fail(A)
        A('s_sleep 2')
        A('s_branch %s' % l)
        A.label(d)


VERD = (16, 144)


def verdict_arrive(A, vo, vd):
    l = A.uid('va')
    A('s_sub_u32 %s, %s, %s' % (s(sT0), s(sWAVE), s(sLOCAL)))
    A('s_cbranch_scc0 %s' % l)
    A('s_lshl_b32 %s, %s, 16' % (s(sT0), s(sROT)))
    A('s_or_b32 %s, %s, 1' % (s(sT0), s(sT0)))
    A('s_mul_i32 s94, %s, %s' % (s(sROT), s(sROT)))
    A('s_bfe_u32 %s, s2, 0x10003' % s(sT2))
    A('s_lshl_b32 %s, %s, 7' % (s(sT2), s(sT2)))
    A('s_mov_b64 exec, 1')
    A('v_mov_b32 %s, %s' % (v(vo), s(sT2)))
    A('v_mov_b32 %s, %s' % (v(vd), s(sT0)))
    A('v_mov_b32 %s, s94' % v(vd + 1))
    A('global_atomic_add_x2 %s, %s, %s offset:%d sc1' % (v(vo), v(vd, 2), s(sDBG, 2), VERD[0]))
    A('s_mov_b64 exec, -1')
    A.label(l)


def verdict(A, vz, vd):
    l = A.uid('vd')
    A('s_cmp_eq_u32 %s, 0' % s(sLOCAL))
    A('s_cbranch_scc1 %s_ok' % l)
    A('v_mov_b32 %s, 0' % v(vz))
    A.label(l)
    for k in range(2):
        A('global_load_dwordx2 %s, %s, %s offset:%d sc1' % (v(vd + 2 * k, 2), v(vz), s(sDBG, 2), VERD[k]))
    spin_fail(A)
    A('s_waitcnt vmcnt(0)')
    for k in range(2):
        A('v_readfirstlane_b32 %s, %s' % (s(sT0), v(vd + 2 * k)))
        A('v_readfirstlane_b32 %s, %s' % (s(sT2), v(vd + 2 * k + 1)))
        A('s_and_b32 s94, %s, 0xffff' % s(sT0))
        A('s_cmp_lt_u32 s94, 128')
        A('s_cbranch_scc1 %s' % l)
        A('s_lshr_b32 %s, %s, 23' % (s(sT0), s(sT0)))
        A('s_mul_i32 s94, %s, %s' % (s(sT0), s(sT0)))
        A('s_lshl_b32 s94, s94, 7')
        A('s_cmp_lg_u32 %s, %s' % (s(sT0), s(sROT)))
        A('s_cbranch_scc1 L_byid')
        A('s_cmp_lg_u32 s94, %s' % s(sT2))
        A('s_cbranch_scc1 L_byid')
    A.label(l + '_ok')


def xstore(A, instr):
    slow, back = A.uid('xs'), A.uid('xb')
    A('s_cmp_eq_u32 %s, 1' % s(sLOCAL))
    A('s_cbranch_scc0 %s' % slow)
    for i in instr:
        A(i)
    A.label(back)
    A.ool(slow + ':')
    for i in instr:
        A.ool(i + ' sc1')
    A.ool('s_branch %s' % back)


def stamp(A, cfg, k):
    if cfg.profile == 1 or (cfg.profile == 2 and (k == 0 or k in cfg.stamps)):
        A('%s %s' % ('s_memrealtime' if cfg.rt else 's_memtime', s(sSTAMP + 2 * k, 2)))
        A('s_waitcnt lgkmcnt(0)')


def stamp_flush(A, cfg, n, vt, vone, wave=0):
    if cfg.profile not in (1, 2):
        return
    l = A.uid('sf')
    A('s_lshl_b32 %s, %s, 2' % (s(sT0), s(sWGV)))
    A('s_add_u32 %s, %s, %s' % (s(sT0), s(sT0), s(sWAVE)))
    A('s_lshl_b32 %s, %s, 12' % (s(sT0), s(sT0)))
    A('s_lshl_b32 %s, %s, 6' % (s(sT1), s(sSTEP)))
    A('s_add_u32 %s, %s, %s' % (s(sT0), s(sT0), s(sT1)))
    A('s_add_u32 %s, %s, %s' % (s(sT0), s(sT0), hx(STAMP)))
    for k in range(n):
        if cfg.profile != 1 and k not in (0, 6, 11, 13, 14) and k not in cfg.stamps:
            continue
        A('v_mov_b32 %s, %s' % (v(vt), s(97 if k == 13 else sSTAMP + 2 * k)))
        A('buffer_store_dword %s, %s, %s, %s offen offset:%d' % (v(vt), v(vone), s(sWS, 4), s(sT0), 4 * k))
        A('s_nop 1')
    A.label(l)


def check_regs(A, regs, vt):
    regs = list(regs)
    cur = None
    while regs:
        if cur is None:
            if len(regs) >= 3:
                A('v_max3_u32 %s, %s, %s, %s' % (v(vt), v(regs[0]), v(regs[1]), v(regs[2])))
                regs = regs[3:]
            elif len(regs) == 2:
                A('v_max_u32 %s, %s, %s' % (v(vt), v(regs[0]), v(regs[1])))
                regs = []
            else:
                A('v_cmp_eq_u32 vcc, -1, %s' % v(regs[0]))
                return
            cur = vt
        elif len(regs) >= 2:
            A('v_max3_u32 %s, %s, %s, %s' % (v(vt), v(vt), v(regs[0]), v(regs[1])))
            regs = regs[2:]
        else:
            A('v_max_u32 %s, %s, %s' % (v(vt), v(vt), v(regs[0])))
            regs = []
    A('v_cmp_eq_u32 vcc, -1, %s' % v(vt))


def poll_mem(A, cfg, P, vpoll, smem, vt):
    def rnd():
        for i in range(4):
            A('buffer_load_dwordx4 %s, %s, %s, %s offen offset:%d sc1' % (v(P + 4 * i, 4), v(vpoll), s(sWS, 4), s(smem), 1024 * i))
    l, d = A.uid('pm'), A.uid('pmd')
    rnd()
    if cfg.poll2:
        rnd()
    A.label(l)
    A('s_waitcnt vmcnt(%d)' % (4 if cfg.poll2 else 0))
    check_regs(A, range(P, P + 16), vt)
    A('s_cbranch_vccz %s' % d)
    rnd()
    spin_fail(A)
    A('s_branch %s' % l)
    A.label(d)


def lane_consts(A, vg, vr, vc):
    A('v_bfe_u32 %s, v0, 3, 2' % v(vg))
    A('v_bfe_u32 %s, v0, 1, 2' % v(vr))
    A('v_and_b32 %s, 1, v0' % v(vc))


def sparse_rowlane_mem(A, vd, vg, vr, vt):
    A('v_lshrrev_b32 %s, 1, %s' % (v(vd), v(vg)))
    A('v_lshlrev_b32 %s, 4, %s' % (v(vd), v(vd)))
    A('v_and_b32 %s, 1, %s' % (v(vt), v(vg)))
    A('v_lshl_add_u32 %s, %s, 2, %s' % (v(vd), v(vt), v(vd)))
    A('v_lshrrev_b32 %s, 1, %s' % (v(vt), v(vr)))
    A('v_lshl_add_u32 %s, %s, 3, %s' % (v(vd), v(vt), v(vd)))
    A('v_and_b32 %s, 1, %s' % (v(vt), v(vr)))
    A('v_add_u32 %s, %s, %s' % (v(vd), v(vt), v(vd)))


def sparse_rowlane_o(A, vd, vg, vr, vt):
    A('v_lshrrev_b32 %s, 1, %s' % (v(vd), v(vr)))
    A('v_lshlrev_b32 %s, 5, %s' % (v(vd), v(vd)))
    A('v_and_b32 %s, 1, %s' % (v(vt), v(vg)))
    A('v_lshl_add_u32 %s, %s, 4, %s' % (v(vd), v(vt), v(vd)))
    A('v_lshrrev_b32 %s, 1, %s' % (v(vt), v(vg)))
    A('v_lshl_add_u32 %s, %s, 2, %s' % (v(vd), v(vt), v(vd)))
    A('v_and_b32 %s, 1, %s' % (v(vt), v(vr)))
    A('v_add_u32 %s, %s, %s' % (v(vd), v(vt), v(vd)))


def dma_offsets(A, vpair, vrow, vc, vt, lgstride, scol):
    A('v_lshlrev_b32 %s, %d, %s' % (v(vpair), lgstride, v(vrow)))
    A('v_lshl_add_u32 %s, %s, 4, %s' % (v(vpair), v(vc), v(vpair)))
    A('v_add_u32 %s, %s, %s' % (v(vpair), s(scol), v(vpair)))
    A('v_lshrrev_b32 %s, 5, v0' % v(vt))
    A('v_lshl_add_u32 %s, %s, 5, %s' % (v(vpair), v(vt), v(vpair)))


def common_chain_init(A, vB, vSp, vA, vOne, vIdx):
    A('s_lshl_b32 %s, %s, 15' % (s(sRES), s(sWAVE)))
    A('s_lshl_b32 %s, %s, 13' % (s(sSPARE), s(sWAVE)))
    A('s_add_u32 %s, %s, %d' % (s(sSPARE), s(sSPARE), LDS_SPARE))
    A('v_lshlrev_b32 %s, 3, v0' % v(vB))
    A('v_add_u32 %s, %s, %s' % (v(vSp), s(sSPARE), v(vB)))
    A('v_add_u32 %s, %s, %s' % (v(vB), s(sRES), v(vB)))
    A('v_lshlrev_b32 %s, 4, v0' % v(vA))
    A('v_add_u32 %s, %d, %s' % (v(vA), MS, v(vA)))
    A('v_cmp_eq_u32 vcc, 0, v0')
    A('v_mov_b32 %s, %s' % (v(vOne), hx(OOB)))
    A('s_nop 0')
    A('v_cndmask_b32 %s, %s, 0, vcc' % (v(vOne), v(vOne)))
    A('v_and_b32 %s, 8, v0' % v(vIdx))
    A('v_cmp_eq_u32 vcc, 0, %s' % v(vIdx))
    A('v_mov_b32 %s, 0xeeee' % v(vIdx))
    A('v_mov_b32 v1, 0x4444')
    A('v_cndmask_b32 %s, %s, v1, vcc' % (v(vIdx), v(vIdx)))


def gstamp(A, cfg, k, vone, chainrole=False, vtmp=31, vd=1):
    if cfg.dbgt:
        tab = {(152, 0): 3, (152, 1): 2, (152, 2): 7, (152, 3): 6} if chainrole else \
              {(5, 1): 9, (5, 2): 10, (5, 3): 11, (5, 4): 12, (5, 6): 13, (5, 7): 14, (5, 0): 15}
        for (wg, kk), word in tab.items():
            if kk != k:
                continue
            l = A.uid('dt')
            A('s_lshl_b32 s70, %s, 2' % s(sWGV))
            A('s_add_u32 s70, s70, %s' % s(sWAVE))
            A('s_cmp_lg_u32 s70, %d' % (4 * wg))
            A('s_cbranch_scc1 %s' % l)
            A('s_memrealtime s[70:71]')
            A('s_waitcnt lgkmcnt(0)')
            A('s_mov_b64 exec, 1')
            A('v_mov_b32 %s, s70' % v(vd))
            A('v_mov_b32 %s, 0' % v(vtmp))
            A('global_store_dword %s, %s, %s offset:%d sc1' % (v(vtmp), v(vd), s(sDBG, 2), 4 * word))
            A('s_mov_b64 exec, -1')
            A.label(l)
        return
    if not cfg.profile:
        return
    A('s_memrealtime s[70:71]')
    A('s_memtime s[72:73]')
    A('s_lshl_b32 s74, %s, 2' % s(sWGV))
    A('s_add_u32 s74, s74, %s' % s(sWAVE))
    A('s_lshl_b32 s74, s74, 12')
    A('s_add_u32 s74, s74, %s' % hx(STAMP + 63 * 64 + 8 * k))
    A('s_waitcnt lgkmcnt(0)')
    A('v_mov_b32 %s, s70' % v(vd))
    A('buffer_store_dword %s, %s, %s, s74 offen' % (v(vd), v(vone), s(sWS, 4)))
    A('s_nop 1')
    A('v_mov_b32 %s, s72' % v(vd))
    A('buffer_store_dword %s, %s, %s, s74 offen offset:4' % (v(vd), v(vone), s(sWS, 4)))
    A('s_nop 1')


def align(A, k):
    if k is None:
        return
    A('.p2align 6')
    for _ in range(k):
        A('s_nop 0')
```

```python
from common import *

MF = 'v_mfma_f32_16x16x32_bf16'
sC_, sGX, sGI = 50, 51, 52
sSrc, sDst, sDst2, sDstep, sIt, sSstep, sFlagA, sRelu, sM0, sProg = 53, 54, 55, 56, 57, 58, 59, 60, 61, 64
vOne, vL16, vRes, vSp, vPair, vA = 2, 3, 4, 5, 6, 7


def allred_g(A, op, x, y):
    for sw in ('v_permlane32_swap_b32', 'v_permlane16_swap_b32'):
        A('v_mov_b32 %s, %s' % (v(y), v(x)))
        A('s_nop 1')
        A('%s %s, %s' % (sw, v(x), v(y)))
        A('%s %s, %s, %s' % (op, v(x), v(x), v(y)))


def dense_offsets(A, vdst, natural, stride, scol):
    A('v_bfe_u32 v16, v0, 3, 2')
    A('v_bfe_u32 v17, v0, 1, 2')
    A('v_lshl_add_u32 v16, v16, %d, v17' % (3 if natural else 2))
    A('v_mul_u32_u24 v16, %d, v16' % stride)
    A('v_and_b32 v17, 1, v0')
    A('v_lshl_add_u32 v16, v17, 4, v16')
    A('v_lshrrev_b32 v17, 5, v0')
    A('v_lshl_add_u32 v16, v17, 5, v16')
    A('v_add_u32 %s, %s, v16' % (v(vdst), s(scol)))


def layernorm(A, cfg, sTile):
    X, F, T = 32, 64, 16
    LNS = LDS_SPARE + 7 * KB
    for i in range(32):
        A('v_lshlrev_b32 %s, 16, %s' % (v(F + 2 * i), v(X + i)))
        A('v_and_b32 %s, 0xffff0000, %s' % (v(F + 2 * i + 1), v(X + i)))
    A('v_and_b32 v20, 15, v0')
    A('v_lshlrev_b32 v20, 4, v20')
    A('v_add_u32 v20, %d, v20' % LNS)
    A('s_lshl_b32 %s, %s, 2' % (s(sT0), s(sWAVE)))
    A('v_add_u32 v21, %s, v20' % s(sT0))

    def total(off):
        A('v_add_f32 v16, v16, v17')
        allred_g(A, 'v_add_f32', 16, 17)
        A('ds_write_b32 v21, v16 offset:%d' % off)
        A('s_waitcnt lgkmcnt(0)')
        A('s_barrier')
        A('ds_read_b128 v[16:19], v20 offset:%d' % off)
        A('s_waitcnt lgkmcnt(0)')
        A('v_add_f32 v16, v16, v17')
        A('v_add_f32 v18, v18, v19')
        A('v_add_f32 v16, v16, v18')
        A('v_mul_f32 v16, 0x3a800000, v16')
    A('v_pk_add_f32 v[16:17], %s, %s' % (v(F, 2), v(F + 2, 2)))
    for i in range(2, 32):
        A('v_pk_add_f32 v[16:17], v[16:17], %s' % v(F + 2 * i, 2))
    total(0)
    A('v_mov_b32 v22, v16')
    A('v_cvt_pk_bf16_f32 v24, v16, v16')
    A('v_and_b32 v24, 0xffff0000, v24')
    for i in range(32):
        A('v_pk_add_f32 v[18:19], %s, v[22:23] op_sel_hi:[1,0] neg_lo:[0,1] neg_hi:[0,1]' % v(F + 2 * i, 2))
        if i == 0:
            A('v_pk_mul_f32 v[16:17], v[18:19], v[18:19]')
        else:
            A('v_pk_fma_f32 v[16:17], v[18:19], v[18:19], v[16:17]')
    total(256)
    A('v_cvt_pk_bf16_f32 v16, v16, v16')
    A('v_and_b32 v16, 0xffff0000, v16')
    A('v_add_f32 v16, 0x3727c5ac, v16')
    A('v_cvt_pk_bf16_f32 v16, v16, v16')
    A('v_and_b32 v16, 0xffff0000, v16')
    A('v_sqrt_f32 v16, v16')
    A('s_nop 0')
    A('v_cvt_pk_bf16_f32 v16, v16, v16')
    A('v_and_b32 v16, 0xffff0000, v16')
    A('v_rcp_f32 v26, v16')
    for i in range(32):
        A('v_pk_add_f32 v[18:19], %s, v[24:25] op_sel_hi:[1,0] neg_lo:[0,1] neg_hi:[0,1]' % v(F + 2 * i, 2))
        A('v_cvt_pk_bf16_f32 v17, v18, v19')
        A('v_lshlrev_b32 v18, 16, v17')
        A('v_and_b32 v19, 0xffff0000, v17')
        A('v_pk_mul_f32 v[18:19], v[18:19], v[26:27] op_sel_hi:[1,0]')
        A('v_cvt_pk_bf16_f32 %s, v18, v19' % v(X + i))
    A('v_mov_b32 v18, 0')
    A('buffer_store_dword v18, %s, %s, %s offen sc1' % (v(vOne), s(sWS, 4), s(sFlagA)))
    A('s_lshl_b32 %s, %s, 8' % (s(sT0), s(sGX)))
    A('s_lshl_b32 %s, %s, 2' % (s(sT1), s(sGI)))
    A('s_add_u32 %s, %s, %s' % (s(sT0), s(sT0), s(sT1)))
    A('s_add_u32 %s, %s, %d' % (s(sT0), s(sT0), CT_OT))
    A('buffer_store_dword v18, %s, %s, %s offen sc1' % (v(vOne), s(sWS, 4), s(sT0)))
    A('s_lshl_b32 %s, %s, 15' % (s(sT0), s(sTile)))
    A('s_lshl_b32 %s, %s, 13' % (s(sT1), s(sWAVE)))
    A('s_add_u32 %s, %s, %s' % (s(sT0), s(sT0), s(sT1)))
    A('s_add_u32 %s, %s, %s' % (s(sT0), s(sT0), hx(XNF)))
    for i in range(8):
        if i == 4:
            A('s_add_u32 %s, %s, 4096' % (s(sT0), s(sT0)))
        A('buffer_store_dwordx4 %s, %s, %s, %s offen offset:%d sc1' % (v(X + 4 * i, 4), v(vL16), s(sWS, 4), s(sT0), 1024 * (i & 3)))


def proj_ops(stride):
    return [dict(srd=sSA, voff=vPair, soff=(32 * ks + 4 * u) * stride,
                 reads=[(a((ks * 2 + t) * 4 + 2 * u, 2), 512 * t) for t in range(2)])
            for ks in range(32) for u in range(2)]


def proj_loop(A, cfg, tag, swapped, flag):
    ACC, AR, PK = (16, 32), 48, 80

    def piece(c, i):
        out = []
        if i == 0:
            out = ['s_add_u32 m0, %s, %d' % (s(sM0), (c % 8) * 16 * KB) if c % 8 else 's_mov_b32 m0, %s' % s(sM0), 's_nop 0']
        out.append(('vm', ('dma', c), 'buffer_load_dwordx4 %s, %s, %s offen offset:%d sc1 lds' % (v(vL16), s(sWS, 4), s(sSrc), 1024 * i)))
        if i == 3:
            out.append('s_add_u32 %s, %s, %s' % (s(sSrc), s(sSrc), '8192' if c % 4 != 3 else s(sSstep)))
        return out

    def aread(c, j):
        base = (c % 8) * 16 * KB + j * 1024
        reg, off = (vA, base) if base < 64 * KB else (vA + 1, base - 64 * KB)
        return ['ds_read_b128 %s, %s offset:%d' % (v(AR + 8 * (j % 4) + 4 * rt, 4), v(reg), off + 8192 * rt) for rt in range(2)]

    def epilogue(acc):
        out = []
        for x in range(2):
            for h in range(4):
                out.append('v_cvt_pk_bf16_f32 %s, %s, %s' % (v(PK + 4 * x + h), v(acc + 8 * x + 2 * h), v(acc + 8 * x + 2 * h + 1)))
            if swapped:
                for h in range(4):
                    out.append('v_pk_max_i16 %s, %s, %s' % (v(PK + 4 * x + h), v(PK + 4 * x + h), s(sRelu)))
            out.append(('vm', 'st', 'buffer_store_dwordx4 %s, %s, %s, %s offen sc1' % (v(PK + 4 * x, 4), v(vL16), s(sWS, 4), s(sDst2 if x else sDst))))
            out.append('s_add_u32 %s, %s, %s' % (s(sDst2 if x else sDst), s(sDst2 if x else sDst), s(sDstep)))
        return out

    def iteration(n):
        out = []
        acc, prev = ACC[n % 2], ACC[1 - n % 2]
        ep = epilogue(prev) if n else []
        for q in range(4):
            c = 4 * n + q
            for j in range(8):
                ks = 8 * q + j
                fill, late = [], []
                if j == 6:
                    fill = [('wait', 'st' if flag and n == 1 and q == 1 else ('dma', c + 1)), 's_barrier']
                    late = piece(c + 7, 0)
                elif j in (0, 2, 4) and c > 0:
                    late = piece(c + 6, j // 2 + 1)
                elif q == 0 and ep:
                    k = (len(ep) + 3) // 4
                    late = ep[k * (j // 2):k * (j // 2 + 1)]
                elif flag and (n > 2 and q == 3 or n == 1 and q == 2) and j == 1:
                    late = ['s_add_u32 %s, %s, 2' % (s(sProg), s(sProg)), 'v_mov_b32 v1, %s' % s(sProg),
                            ('vm', 'flag', 'buffer_store_dword v1, %s, %s, %s offen sc1' % (v(vOne), s(sWS, 4), s(sFlagA)))]
                rd = aread(c, j + 2) if j < 6 else aread(c + 1, j - 6)
                h = (len(late) + 1) // 2
                per = [fill + rd[:1], rd[1:], late[:h], late[h:]]
                out.append('s_waitcnt lgkmcnt(2)')
                m = 0
                for x in range(2):
                    for y in range(2):
                        rt, ct = (x, y) if swapped else (y, x)
                        W, Xf = a((ks * 2 + ct) * 4, 4), v(AR + 8 * (j % 4) + 4 * rt, 4)
                        D = v(acc + 8 * x + 4 * y, 4)
                        out.append('%s %s, %s, %s, %s' % ((MF, D) + ((W, Xf) if swapped else (Xf, W)) + (D if ks else '0',)))
                        out += per[m]
                        m += 1
        out += ['s_sub_u32 %s, %s, 1' % (s(sIt), s(sIt)), 's_cbranch_scc1 L_%s_end%d' % (tag, n % 2)]
        return out

    pro = []
    for c in range(7):
        for i in range(4):
            pro += piece(c, i)
    pro += [('wait', ('dma', 0)), 's_barrier'] + aread(0, 0) + aread(0, 1)
    runs = [pro] + [iteration(n) for n in range(10)]
    queue, counts = [], []
    for r in runs:
        cs = []
        for x in r:
            if isinstance(x, tuple) and x[0] == 'vm':
                queue.append(x[1])
            elif isinstance(x, tuple):
                last = max(i for i, y in enumerate(queue) if y == x[1])
                cs.append(len(queue) - 1 - last)
        counts.append(cs)
    NP = 4 if flag else 2
    for k in (NP, NP + 1):
        counts[k] = [min(t) for t in zip(counts[k], counts[k + 2], counts[k + 4])]

    def emit(r, cs):
        cs = list(cs)
        for x in r:
            if isinstance(x, tuple):
                A(x[2] if x[0] == 'vm' else 's_waitcnt vmcnt(%d)' % cs.pop(0))
            else:
                A(x)
    A('s_lshl_b32 %s, %s, 12' % (s(sM0), s(sWAVE)))
    for k in range(NP):
        if flag and k == 3:
            grid_wait(A, 1, 9, cfg, [(4, 128, 0xffff)])
        emit(runs[k], counts[k])
    A.label('L_%s_top' % tag)
    for k in (NP, NP + 1):
        emit(runs[k], counts[k])
    A('s_branch L_%s_top' % tag)
    for half in range(2):
        A.label('L_%s_end%d' % (tag, half))
        A('s_nop 7')
        emit(epilogue(ACC[half]), [])
        if half == 0:
            A('s_branch L_%s_done' % tag)
    A.label('L_%s_done' % tag)
    A('s_waitcnt vmcnt(0) lgkmcnt(0)')
    A('s_barrier')
    if flag:
        A('v_mov_b32 v1, 64')
        A('buffer_store_dword v1, %s, %s, %s offen sc1' % (v(vOne), s(sWS, 4), s(sFlagA)))


def counter_arrive(A, off, soff=None):
    l = A.uid('arr')
    A('s_cmp_lg_u32 %s, 0' % s(sWAVE))
    A('s_cbranch_scc1 %s' % l)
    A('s_mov_b64 exec, 1')
    A('v_mov_b32 v16, %s' % (s(soff) if soff else '0'))
    A('v_mov_b32 v17, 1')
    A('global_atomic_add v16, v17, %s offset:%d sc1' % (s(sDBG, 2), off))
    A('s_mov_b64 exec, -1')
    A.label(l)


def wait_ge(A, voff, sbase, vt, sval, sleep=2):
    l = A.uid('wg')
    A.label(l)
    A('buffer_load_dword %s, %s, %s, %s offen sc1' % (v(vt), v(voff), s(sWS, 4), s(sbase)))
    spin_fail(A)
    A('s_waitcnt vmcnt(0)')
    A('v_cmp_gt_u32 vcc, %s, %s' % (s(sval), v(vt)))
    A('s_cbranch_vccz %s_ok' % l)
    if sleep:
        A('s_sleep %d' % sleep)
    A('s_branch %s' % l)
    A.label(l + '_ok')


def final_phase(A, cfg):
    W2V = 160
    ACC, BB, RING, NR, XR = 16, 32, 48, 25, 148
    vMask, vRw, vRr, vXo, vKm, vVm, vBell, vFl = 152, 8, 9, 10, 11, 12, 13, 14
    sSeg, sH, sOT, sOTw, sQ, sKMa, sCnt, sBellA, sFlK, sC, sNC, sXo, sH1, sH2, sH3, sNeed = 53, 54, 55, 56, 57, 58, 59, 60, 61, 62, 64, 65, 66, 67, 68, 69
    RED2 = LDS_SPARE
    srd(A, sSA, sW2, 3584 * 2048)
    srd(A, sSB, sWO, 8 * MB)
    A('s_lshl_b32 %s, %s, 6' % (s(sT1), s(sGI)))
    A('s_mul_i32 %s, %s, %d' % (s(sT2), s(sWAVE), 28 * 32 * 2048))
    A('s_add_u32 %s, %s, %s' % (s(sT2), s(sT2), s(sT1)))
    dense_offsets(A, vPair, False, 2048, sT2)
    A('s_lshl_b32 %s, %s, 21' % (s(sT2), s(sWAVE)))
    A('s_add_u32 %s, %s, %s' % (s(sT2), s(sT2), s(sT1)))
    dense_offsets(A, vA, False, 2048, sT2)
    ops = []
    for kk in range(12):
        for u in range(2):
            ops.append(dict(srd=sSA, voff=vPair, soff=(32 * kk + 16 * u) * 2048,
                            reads=[(v(W2V + (kk * 2 + t) * 4 + 2 * u, 2), 512 * t) for t in range(2)]))
    for kk in range(32):
        for u in range(2):
            ops.append(dict(srd=sSB, voff=vA, soff=(32 * kk + 16 * u) * 2048,
                            reads=[(a((kk * 2 + t) * 4 + 2 * u, 2), 512 * t) for t in range(2)]))
    for kk in range(12, 28):
        for u in range(2):
            ops.append(dict(srd=sSA, voff=vPair, soff=(32 * kk + 16 * u) * 2048,
                            reads=[(('res', 2 * (kk - 12) + t, u), 512 * t) for t in range(2)]))
    ops = ops[:84] + ops[88:116] + ops[84:88] + ops[116:]
    A('v_lshlrev_b32 %s, 3, v0' % v(vRes))
    A('v_add_u32 %s, %s, %s' % (v(vRes), s(sRES), v(vRes)))
    weight_loader(A, ops, vRes, vSp, resident=32, vfin=vRw)
    A('v_mov_b32 %s, %s' % (v(vRes), v(vRw)))
    gstamp(A, cfg, 5, vOne)
    A('s_and_b32 %s, %s, 1' % (s(sT0), s(sWAVE)))
    A('s_lshl_b32 %s, %s, 4' % (s(sT0), s(sT0)))
    A('v_and_b32 v16, 15, v0')
    A('v_add_u32 v16, %s, v16' % s(sT0))
    A('v_lshrrev_b32 v17, 4, v0')
    A('v_lshlrev_b32 v17, 2, v17')
    A('v_mov_b32 v19, 0xff800000')
    for jt in range(2):
        for r in range(4):
            A('v_add_u32 v18, %d, v17' % (16 * jt + r))
            A('v_cmp_gt_u32 vcc, v18, v16')
            A('s_nop 1')
            A('v_cndmask_b32 %s, 0, v19, vcc' % v(vMask + 4 * jt + r))
    A('v_and_b32 v16, 15, v0')
    A('v_mul_u32_u24 v16, 144, v16')
    A('v_lshl_add_u32 v16, v17, 2, v16')
    A('s_mul_i32 %s, %s, 4608' % (s(sT0), s(sWAVE)))
    A('s_add_u32 %s, %s, %d' % (s(sT0), s(sT0), RED2))
    A('v_add_u32 %s, %s, v16' % (v(vRw), s(sT0)))
    A('s_lshl_b32 %s, %s, 3' % (s(sT0), s(sWAVE)))
    A('v_lshrrev_b32 v16, 3, v0')
    A('v_add_u32 v16, %s, v16' % s(sT0))
    A('v_and_b32 v18, 7, v0')
    A('v_mul_u32_u24 v19, 144, v16')
    A('v_lshl_add_u32 v19, v18, 4, v19')
    A('v_add_u32 %s, %d, v19' % (v(vRr), RED2))
    A('v_lshlrev_b32 v16, 11, v16')
    A('v_lshl_add_u32 v16, v18, 3, v16')
    A('s_lshl_b32 %s, %s, 6' % (s(sT0), s(sGI)))
    A('v_add_u32 %s, %s, v16' % (v(vXo), s(sT0)))
    A('v_and_b32 v16, 7, v0')
    A('v_lshlrev_b32 v16, 4, v16')
    A('v_lshl_add_u32 %s, v17, 5, v16' % v(vKm))
    A('v_and_b32 v16, 31, v0')
    A('v_lshlrev_b32 %s, 3, v16' % v(vVm))
    A('v_lshlrev_b32 %s, 2, v16' % v(vBell))
    A('v_and_b32 v16, 1, v0')
    A('v_lshlrev_b32 %s, 12, v16' % v(vFl))
    A('v_cmp_gt_u32 vcc, 32, v0')
    A('v_mov_b32 v15, 0xff800000')
    A('s_nop 0')
    A('v_cndmask_b32 v15, v15, 0, vcc')
    srd(A, sSA, sX, 4 * MB)
    srd(A, sSB, sOUT, 4 * MB)
    A('s_mov_b32 %s, %s' % (s(sC), hx(f2u(SC))))
    A('s_mov_b32 %s, %s' % (s(sC + 1), hx(f2u(SC))))
    A('s_mov_b32 %s, %s' % (s(sNC), hx(f2u(-SC))))
    A('s_lshl_b32 %s, %s, 7' % (s(sFlK), s(sGI)))
    A('s_add_u32 %s, %s, %d' % (s(sFlK), s(sFlK), CT_KM))
    A('s_lshl_b32 %s, %s, 8' % (s(sBellA), s(sGX)))
    A('s_add_u32 %s, %s, %d' % (s(sBellA), s(sBellA), CT_OT))
    A('s_mov_b32 %s, %s' % (s(sSeg), s(sGX)))
    A('s_mov_b32 %s, 1' % s(sCnt))
    A('s_lshl_b32 %s, %s, 19' % (s(sOT), s(sGX)))
    A('s_add_u32 %s, %s, %s' % (s(sOT), s(sOT), hx(OT)))
    grid_wait(A, 16, 17, cfg, [(128, 192), (192, cfg.nchain)])
    A('s_barrier')
    gstamp(A, cfg, 6, vOne)

    class Q_:
        def __init__(self, pend=()):
            self.q = list(pend)

        def add(self, tag, instr):
            self.q.append(tag)
            A(instr)

        def wait(self, tag):
            n = len(self.q) - 1 - max(i for i, x in enumerate(self.q) if x == tag)
            A('s_waitcnt vmcnt(%d)' % n)

    def ringld(i, sl, base):
        out = [('buffer_load_dwordx4 %s, %s, %s, %s offen offset:%d sc1' % (v(RING + 4 * sl, 4), v(vL16), s(sWS, 4), s(base), 1024 * (i % 4)))]
        if i % 4 == 3:
            out.append('s_add_u32 %s, %s, 4096' % (s(base), s(base)))
        return out

    OFF = 64 % NR
    hslot = lambda i: (i + OFF) % NR
    lds = lambda b: b[0] == 'l'

    def steps(Q, name, lo, hi, n, slot, bsrc, nxt, first):
        def bread(kk):
            return ['ds_read_b128 %s, %s offset:%d' % (v(BB + 8 * (kk % 2) + 4 * t, 4), v(vRes), (bsrc(kk)[1] * 2 + t) * 1024) for t in range(2)]
        for kk in range(lo, hi):
            pre = bread(kk + 1) if kk + 1 < n and lds(bsrc(kk + 1)) else []
            Q.wait((name, 2 * kk + 1))
            if lds(bsrc(kk)):
                A('s_waitcnt lgkmcnt(0)')
            for rt in range(2):
                for ct in range(2):
                    k, b = bsrc(kk)
                    W = v(BB + 8 * (kk % 2) + 4 * ct, 4) if k == 'l' else R((k, b), 4 * ct, 4)
                    D = v(ACC + 8 * rt + 4 * ct, 4)
                    A('%s %s, %s, %s, %s' % (MF, D, W, v(RING + 4 * slot(2 * kk + rt), 4), '0' if first and kk == 0 else D))
                    if ct == 0 and pre:
                        A(pre[rt])
                r = nxt(2 * kk + rt)
                if r:
                    Q.add(r[0], r[1][0])
                    for x in r[1][1:]:
                        A(x)

    def h_base(seg_off):
        A('s_add_u32 %s, %s, %d' % (s(sT1), s(sSeg), seg_off))
        A('s_mul_i32 %s, %s, %d' % (s(sH), s(sT1), 224 * KB))
        A('s_mul_i32 %s, %s, %d' % (s(sT0), s(sWAVE), 56 * KB))
        A('s_add_u32 %s, %s, %s' % (s(sH), s(sH), s(sT0)))
        A('s_add_u32 %s, %s, %s' % (s(sH), s(sH), hx(HF)))

    free = [RING + 4 * hslot(i) for i in range(56 - NR, 56)]
    Kf, Qf, Vf, KM, VM = free[0:8], free[8:12], free[12:16], free[16:20], free[20:24]
    S, M = 32, 44
    O, LS, ONES, PT, PM = Kf[0:4], Kf[4], Kf[5], Kf[6], Kf[7]
    sQa, sKa, sKb, sVa, sVMa = sH1, sH2, sH3, sQ, sOTw
    att = [(('k', i), ['buffer_load_dwordx4 %s, %s, %s, %s offen offset:%d sc1' % (v(Kf[i], 4), v(vL16), s(sWS, 4), s(sKa if i < 4 else sKb), 1024 * (i & 3))]) for i in range(8)]
    att += [(('q', i), ['buffer_load_dwordx4 %s, %s, %s, %s offen offset:%d sc1' % (v(Qf[i], 4), v(vL16), s(sWS, 4), s(sQa), 1024 * i)]) for i in range(4)]
    att += [(('v', i), ['buffer_load_dwordx4 %s, %s, %s, %s offen offset:%d sc1' % (v(Vf[i], 4), v(vL16), s(sWS, 4), s(sVa), 1024 * i)]) for i in range(4)]
    mem = [(('km', i), ['buffer_load_dwordx4 %s, %s, %s, %s offen offset:%d sc1' % (v(KM[i], 4), v(vKm), s(sWS, 4), s(sKMa), 512 * i)]) for i in range(4)]
    mem += [(('vm', i), ['buffer_load_dwordx2 %s, %s, %s, %s offen offset:%d sc1' % (v(VM[i], 2), v(vVm), s(sWS, 4), s(sVMa), 256 * i)]) for i in range(4)]
    w2src = lambda kk: ('v', W2V + 8 * kk) if kk < 12 else ('l', kk - 12)
    KSPLIT = (56 - NR + 16 + 1) // 2

    h_base(0)
    for i in range(NR):
        for x in ringld(i, hslot(i), sH):
            A(x)
    A('s_cmp_eq_u32 %s, 1' % s(sLOCAL))
    A('s_cbranch_scc0 L_fin_g')
    for tag, sfx in (('l', ''), ('g', ' sc1')):
        top = 'L_fin_' + tag
        A.label(top)
        stamp(A, cfg, 0)
        Q = Q_([('h', i) for i in range(NR)])
        A('s_lshl_b32 %s, %s, 5' % (s(sT2), s(sSeg)))
        A('s_add_u32 %s, %s, %s' % (s(sT2), s(sT2), s(sGI)))
        A('s_lshl_b32 %s, %s, 11' % (s(sKMa), s(sT2)))
        A('s_lshl_b32 %s, %s, 13' % (s(sT2), s(sT2)))
        A('s_and_b32 %s, %s, 1' % (s(sT0), s(sWAVE)))
        A('s_lshl_b32 %s, %s, 12' % (s(sT0), s(sT0)))
        A('s_add_u32 %s, %s, %s' % (s(sQa), s(sT2), s(sT0)))
        A('s_add_u32 %s, %s, %s' % (s(sQa), s(sQa), hx(QF)))
        A('s_add_u32 %s, %s, %s' % (s(sKa), s(sT2), hx(KF)))
        A('s_add_u32 %s, %s, 4096' % (s(sKb), s(sKa)))
        A('s_lshr_b32 %s, %s, 1' % (s(sT0), s(sWAVE)))
        A('s_lshl_b32 %s, %s, 12' % (s(sT1), s(sT0)))
        A('s_add_u32 %s, %s, %s' % (s(sVa), s(sT2), s(sT1)))
        A('s_add_u32 %s, %s, %s' % (s(sVa), s(sVa), hx(VF)))
        A('s_lshl_b32 %s, %s, 10' % (s(sT0), s(sT0)))
        A('s_add_u32 %s, %s, %s' % (s(sVMa), s(sKMa), s(sT0)))
        A('s_add_u32 %s, %s, %s' % (s(sVMa), s(sVMa), hx(VMG)))
        A('s_add_u32 %s, %s, %s' % (s(sKMa), s(sKMa), hx(KMG)))
        A('s_add_u32 %s, %s, 1' % (s(sNeed), s(sSeg)))
        A('s_lshl_b32 %s, %s, 16' % (s(sXo), s(sSeg)))
        Q.add('flag', 'buffer_load_dword v1, %s, %s, %s offen sc1' % (v(vFl), s(sWS, 4), s(sFlK)))
        Q.add('x', 'buffer_load_dwordx2 %s, %s, %s, %s offen' % (v(XR, 2), v(vXo), s(sSA, 4), s(sXo)))

        def nxt(extra):
            def f(i):
                j = i + NR
                if j < 56:
                    return ('h', j), ringld(j, hslot(j), sH)
                return extra[j - 56] if j - 56 < len(extra) else None
            return f
        steps(Q, 'h', 0, KSPLIT, 28, hslot, w2src, nxt(att), True)
        Q.wait('flag')
        A('v_cmp_gt_u32 vcc, %s, v1' % s(sNeed))
        A('s_cbranch_vccnz %s_late' % top)
        Q2 = Q_(Q.q)
        shift = 2 * KSPLIT + NR - 56 - 16
        steps(Q, 'h', KSPLIT, 28, 28, hslot, w2src, nxt(att + [None] * shift + mem), False)
        for t, x in mem:
            if t not in Q.q:
                Q.add(t, x[0])
        main, A.lines = A.lines, []
        A.label(top + '_late')
        steps(Q2, 'h', KSPLIT, 28, 28, hslot, w2src, nxt(att), False)
        wait_ge(A, vFl, sFlK, 1, sNeed)
        for t, x in mem:
            A(x[0])
        A('s_branch %s_att' % top)
        A.tail += A.lines
        A.lines = main
        A.label(top + '_att')
        stamp(A, cfg, 1)
        assert Q.q[-8:] == [t for t, x in mem]
        for i in range(4):
            A('v_mov_b32 %s, 0' % v(VM[i] + 2))
            A('v_mov_b32 %s, 0' % v(VM[i] + 3))
        Q.wait(('v', 3))
        for ks in range(4):
            for jt in range(2):
                A('%s %s, %s, %s, %s' % (MF, v(S + 4 * jt, 4), v(Kf[4 * jt + ks], 4), v(Qf[ks], 4), v(S + 4 * jt, 4) if ks else '0'))
        Q.wait(('km', 3))
        stamp(A, cfg, 2)
        for ks in range(4):
            A('%s %s, %s, %s, %s' % (MF, v(S + 8, 4), v(KM[ks], 4), v(Qf[ks], 4), v(S + 8, 4) if ks else '0'))
        for i in range(0, 8, 2):
            A('v_pk_add_f32 %s, %s, %s' % (v(S + i, 2), v(S + i, 2), v(vMask + i, 2)))
        for i in range(4):
            A('v_mov_b32 %s, 0x3f803f80' % v(ONES + i))
        A('v_mov_b32 %s, 0' % v(PM + 2))
        A('v_mov_b32 %s, 0' % v(PM + 3))
        A('v_max3_f32 %s, %s, %s, %s' % (v(M), v(S), v(S + 1), v(S + 2)))
        for i in range(3, 11, 2):
            A('v_max3_f32 %s, %s, %s, %s' % (v(M), v(M), v(S + i), v(S + i + 1)))
        A('v_max_f32 %s, %s, %s' % (v(M), v(M), v(S + 11)))
        allred_g(A, 'v_max_f32', M, M + 1)
        A('v_mul_f32 %s, %s, %s' % (v(M), s(sNC), v(M)))
        A('v_add_f32 %s, %s, v15' % (v(M + 2), v(M)))
        for i in range(0, 12, 2):
            A('v_pk_fma_f32 %s, %s, %s, %s op_sel_hi:[1,1,0]' % (v(S + i, 2), v(S + i, 2), s(sC, 2), v(M if i < 8 else M + 2, 2)))
        for i in range(12):
            A('v_exp_f32 %s, %s' % (v(S + i), v(S + i)))
        for i in range(6):
            A('v_cvt_pk_bf16_f32 %s, %s, %s' % (v(PT + i if i < 4 else PM + i - 4), v(S + 2 * i), v(S + 2 * i + 1)))
        A('s_waitcnt vmcnt(0)')
        A('s_nop 0')
        A('%s %s, %s, %s, 0' % (MF, v(LS, 4), v(ONES, 4), v(PT, 4)))
        for t in range(4):
            A('%s %s, %s, %s, 0' % (MF, v(O[t], 4), v(Vf[t], 4), v(PT, 4)))
        A('%s %s, %s, %s, %s' % (MF, v(LS, 4), v(ONES, 4), v(PM, 4), v(LS, 4)))
        for t in range(4):
            A('%s %s, %s, %s, %s' % (MF, v(O[t], 4), v(VM[t], 4), v(PM, 4), v(O[t], 4)))
        A('s_lshl_b32 %s, %s, 13' % (s(sOTw), s(sGI)))
        A('s_lshr_b32 %s, %s, 1' % (s(sT0), s(sWAVE)))
        A('s_lshl_b32 %s, %s, 12' % (s(sT0), s(sT0)))
        A('s_add_u32 %s, %s, %s' % (s(sOTw), s(sOTw), s(sT0)))
        A('s_and_b32 %s, %s, 1' % (s(sT0), s(sWAVE)))
        A('s_lshl_b32 %s, %s, 10' % (s(sT0), s(sT0)))
        A('s_add_u32 %s, %s, %s' % (s(sOTw), s(sOTw), s(sT0)))
        A('s_add_u32 %s, %s, %s' % (s(sOTw), s(sOTw), s(sOT)))
        A('v_rcp_f32 %s, %s' % (v(M), v(LS)))
        A('s_nop 1')
        for t in range(4):
            for i in (0, 2):
                A('v_pk_mul_f32 %s, %s, %s op_sel_hi:[1,0]' % (v(O[t] + i, 2), v(O[t] + i, 2), v(M, 2)))
        for i in range(8):
            A('v_cvt_pk_bf16_f32 %s, %s, %s' % (v(S + i), v(O[i // 2] + 2 * (i & 1)), v(O[i // 2] + 2 * (i & 1) + 1)))
        for p in range(2):
            A('buffer_store_dwordx4 %s, %s, %s, %s offen offset:%d%s' % (v(S + 4 * p, 4), v(vL16), s(sWS, 4), s(sOTw), 2048 * p, sfx))
        A('s_lshl_b32 %s, %s, 2' % (s(sT0), s(sGI)))
        A('s_add_u32 %s, %s, %s' % (s(sT0), s(sT0), s(sBellA)))
        A('v_mov_b32 v1, %s' % s(sCnt))
        stamp(A, cfg, 3)
        A('s_waitcnt vmcnt(0)')
        A('s_barrier')
        A('buffer_store_dword v1, %s, %s, %s offen%s' % (v(vOne), s(sWS, 4), s(sT0), sfx))
        A('s_lshl_b32 %s, %s, 16' % (s(sH1), s(sWAVE)))
        A('s_add_u32 %s, %s, %s' % (s(sH1), s(sH1), s(sOT)))
        h_base(6)
        wait_ge(A, vBell, sBellA, 44, sCnt, sleep=0)
        stamp(A, cfg, 4)
        Q = Q_()
        for i in range(NR):
            r = ringld(i, i, sH1)
            Q.add(('o', i), r[0])
            for x in r[1:]:
                A(x)

        def nxto(i):
            j = i + NR
            return (('o', j), ringld(j, j % NR, sH1)) if j < 64 else (('h', j - 64), ringld(j - 64, hslot(j - 64), sH))
        steps(Q, 'o', 0, 32, 32, lambda i: i % NR, lambda kk: ('a', 8 * kk), nxto, False)
        stamp(A, cfg, 5)
        A('s_nop 7')
        for rt in range(2):
            for ct in range(2):
                A('ds_write_b128 %s, %s offset:%d' % (v(vRw), v(ACC + 8 * rt + 4 * ct, 4), 16 * 144 * rt + 64 * ct))
        A('v_lshlrev_b32 %s, 16, %s' % (v(XR + 2), v(XR + 1)))
        A('v_and_b32 %s, 0xffff0000, %s' % (v(XR + 3), v(XR + 1)))
        A('v_and_b32 %s, 0xffff0000, %s' % (v(XR + 1), v(XR)))
        A('v_lshlrev_b32 %s, 16, %s' % (v(XR), v(XR)))
        A('s_waitcnt lgkmcnt(0)')
        A('s_barrier')
        for p in range(4):
            A('ds_read_b128 %s, %s offset:%d' % (v(32 + 4 * p, 4), v(vRr), 4608 * p))
        A('s_xor_b32 %s, %s, %d' % (s(sOT), s(sOT), 256 * KB))
        A('s_add_u32 %s, %s, 1' % (s(sCnt), s(sCnt)))
        A('s_add_u32 %s, %s, 6' % (s(sSeg), s(sSeg)))
        A('s_waitcnt lgkmcnt(0)')
        for c in (0, 2):
            A('v_pk_add_f32 %s, %s, %s' % (v(32 + c, 2), v(32 + c, 2), v(36 + c, 2)))
            A('v_pk_add_f32 %s, %s, %s' % (v(40 + c, 2), v(40 + c, 2), v(44 + c, 2)))
        for c in (0, 2):
            A('v_pk_add_f32 %s, %s, %s' % (v(32 + c, 2), v(32 + c, 2), v(40 + c, 2)))
        for c in (0, 2):
            A('v_pk_add_f32 %s, %s, %s' % (v(32 + c, 2), v(32 + c, 2), v(XR + c, 2)))
        A('v_cvt_pk_bf16_f32 v36, v32, v33')
        A('v_cvt_pk_bf16_f32 v37, v34, v35')
        A('buffer_store_dwordx2 v[36:37], %s, %s, %s offen' % (v(vXo), s(sSB, 4), s(sXo)))
        if cfg.profile == 1:
            stamp(A, cfg, 7)
            A('s_mov_b32 %s, %s' % (s(sSTEP), s(sCnt)))
            stamp_flush(A, cfg, 8, 1, vOne)
        A('s_cmp_lt_u32 %s, 64' % s(sSeg))
        A('s_cbranch_scc1 %s' % top)
        gstamp(A, cfg, 7, vOne)
        A('s_branch L_end')
        A.flush_tail()


def gen_gemm(A, cfg):
    sTile = 62
    A('s_sub_u32 %s, %s, 2' % (s(sGX), s(sGRP)))
    A('s_mov_b32 %s, %s' % (s(sGI), s(sJ)))
    A('s_lshl_b32 %s, %s, 5' % (s(sC_), s(sGX)))
    A('s_add_u32 %s, %s, %s' % (s(sC_), s(sC_), s(sGI)))
    A('s_lshl_b32 %s, %s, 15' % (s(sRES), s(sWAVE)))
    A('s_lshl_b32 %s, %s, 13' % (s(sSPARE), s(sWAVE)))
    A('s_add_u32 %s, %s, %d' % (s(sSPARE), s(sSPARE), LDS_SPARE))
    A('v_lshlrev_b32 %s, 4, v0' % v(vL16))
    A('v_lshlrev_b32 %s, 3, v0' % v(vRes))
    A('v_add_u32 %s, %s, %s' % (v(vSp), s(sSPARE), v(vRes)))
    A('v_add_u32 %s, %s, %s' % (v(vRes), s(sRES), v(vRes)))
    A('v_cmp_eq_u32 vcc, 0, v0')
    A('v_mov_b32 %s, %s' % (v(vOne), hx(OOB)))
    A('s_nop 0')
    A('v_cndmask_b32 %s, %s, 0, vcc' % (v(vOne), v(vOne)))
    gstamp(A, cfg, 0, vOne)
    A('s_mul_i32 %s, %s, 6' % (s(sTile), s(sGI)))
    A('s_add_u32 %s, %s, %s' % (s(sTile), s(sTile), s(sGX)))
    A('s_cmp_lt_u32 %s, 128' % s(sTile))
    A('s_cselect_b32 s63, 1, 0')
    A('s_cselect_b32 %s, 127, %d' % (s(sT0), cfg.dupmask))
    A('s_and_b32 %s, %s, %s' % (s(sTile), s(sTile), s(sT0)))
    srd(A, sSB, sX, 4 * MB)
    A('v_and_b32 v16, 15, v0')
    A('v_lshlrev_b32 v16, 11, v16')
    A('v_lshrrev_b32 v17, 4, v0')
    A('v_lshl_add_u32 v16, v17, 4, v16')
    A('s_lshl_b32 %s, %s, 15' % (s(sT0), s(sTile)))
    A('s_lshl_b32 %s, %s, 9' % (s(sT1), s(sWAVE)))
    A('s_add_u32 %s, %s, %s' % (s(sT0), s(sT0), s(sT1)))
    for i in range(8):
        A('buffer_load_dwordx4 %s, v16, %s, %s offen offset:%d' % (v(32 + 4 * i, 4), s(sSB, 4), s(sT0), 64 * i))
    A('s_lshl_b32 %s, %s, 7' % (s(sFlagA), s(sC_)))
    A('s_add_u32 %s, %s, %d' % (s(sFlagA), s(sFlagA), CT_G1))
    for m in cfg.pf:
        srd(A, sSA, {'o': sWO, 'q': sWQ, 'k': sWK, 'v': sWV}[m], 8 * MB)
        A('s_lshl_b32 %s, %s, 2' % (s(sT0), s(sC_)))
        A('s_add_u32 %s, %s, %s' % (s(sT0), s(sT0), s(sWAVE)))
        A('s_lshl_b32 %s, %s, 10' % (s(sT0), s(sT0)))
        for i in range(11):
            A('buffer_load_dwordx4 %s, %s, %s, %s offen' % (v(128 + 4 * i, 4), v(vL16), s(sSA, 4), s(sT0)))
            A('s_add_u32 %s, %s, %d' % (s(sT0), s(sT0), 768 * KB))
    A('s_lshr_b32 %s, %s, 6' % (s(sT0), s(sC_)))
    A('s_cmp_eq_u32 %s, 1' % s(sT0))
    A('s_cselect_b32 %s, %s, %s' % (s(sSA), s(sWK), s(sWQ)))
    A('s_cselect_b32 %s, %s, %s' % (s(sSA + 1), s(sWK + 1), s(sWQ + 1)))
    A('s_cmp_eq_u32 %s, 2' % s(sT0))
    A('s_cselect_b32 %s, %s, %s' % (s(sSA), s(sWV), s(sSA)))
    A('s_cselect_b32 %s, %s, %s' % (s(sSA + 1), s(sWV + 1), s(sSA + 1)))
    A('s_and_b32 %s, %s, 0xffff' % (s(sSA + 1), s(sSA + 1)))
    A('s_mov_b32 %s, %s' % (s(sSA + 2), hx(8 * MB)))
    A('s_mov_b32 %s, 0x20000' % s(sSA + 3))
    A('s_bfe_u32 %s, %s, 0x50001' % (s(sT1), s(sC_)))
    A('s_lshl_b32 %s, %s, 8' % (s(sT1), s(sT1)))
    A('s_lshl_b32 %s, %s, 6' % (s(sT2), s(sWAVE)))
    A('s_add_u32 %s, %s, %s' % (s(sT2), s(sT2), s(sT1)))
    dense_offsets(A, vPair, True, 8192, sT2)

    def ln(n):
        verdict_arrive(A, 1, 18)
        A('s_waitcnt vmcnt(%d)' % (n + 11 * len(cfg.pf)))
        layernorm(A, cfg, sTile)

    def arrive(n):
        A('s_waitcnt vmcnt(%d)' % (n - cfg.prewin))
        A('s_barrier')
        A('s_lshl_b32 %s, 1, %s' % (s(sT0), s(sTile)))
        A('s_cmp_lt_u32 %s, 16' % s(sTile))
        A('s_cselect_b32 %s, %s, 0' % (s(sT0), s(sT0)))
        A('s_cmp_lg_u32 %s, 0' % s(sWAVE))
        A('s_cbranch_scc1 L_lnarr')
        A('s_mov_b64 exec, 1')
        A('v_mov_b32 v16, 0')
        A('v_mov_b32 v17, %s' % s(sT0))
        A('s_or_b32 s63, s63, 0x10000')
        A('v_mov_b32 v18, s63')
        A('s_cmp_eq_u32 %s, 0' % s(sT0))
        A('s_cbranch_scc1 L_lnarr1')
        A('global_atomic_or v16, v17, %s sc1' % s(sDBG, 2))
        A.label('L_lnarr1')
        A('global_atomic_add v16, v18, %s offset:4 sc1' % s(sDBG, 2))
        A('s_mov_b64 exec, -1')
        A.label('L_lnarr')
        gstamp(A, cfg, 1, vOne)
    weight_loader(A, proj_ops(8192), vRes, vSp, arrive, nslots=39, pre=(cfg.prewin, ln))
    A('s_and_b32 %s, %s, 1' % (s(sProg), s(sC_)))
    A('s_lshr_b32 %s, %s, 6' % (s(sT0), s(sC_)))
    A('s_lshl_b32 %s, %s, 24' % (s(sDst), s(sT0)))
    A('s_add_u32 %s, %s, %s' % (s(sDst), s(sDst), hx(QF)))
    A('s_lshl_b32 %s, %s, 18' % (s(sT1), s(sProg)))
    A('s_add_u32 %s, %s, %s' % (s(sDst), s(sDst), s(sT1)))
    A('s_bfe_u32 %s, %s, 0x50001' % (s(sT1), s(sC_)))
    A('s_lshl_b32 %s, %s, 13' % (s(sT1), s(sT1)))
    A('s_add_u32 %s, %s, %s' % (s(sDst), s(sDst), s(sT1)))
    A('s_mov_b32 %s, %d' % (s(sDstep), 512 * KB))

    def src(sseg):
        A('s_lshl_b32 %s, %s, 16' % (s(sSrc), s(sseg)))
        A('s_lshr_b32 %s, %s, 1' % (s(sT1), s(sWAVE)))
        A('s_lshl_b32 %s, %s, 15' % (s(sT1), s(sT1)))
        A('s_add_u32 %s, %s, %s' % (s(sSrc), s(sSrc), s(sT1)))
        A('s_and_b32 %s, %s, 1' % (s(sT1), s(sWAVE)))
        A('s_lshl_b32 %s, %s, 12' % (s(sT1), s(sT1)))
        A('s_add_u32 %s, %s, %s' % (s(sSrc), s(sSrc), s(sT1)))
        A('s_add_u32 %s, %s, %s' % (s(sSrc), s(sSrc), hx(XNF)))
    src(sProg)
    A('s_mov_b32 %s, %d' % (s(sSstep), 128 * KB - 24 * KB))
    A('s_mov_b32 %s, 31' % s(sIt))
    A('s_mov_b32 %s, 0x80008000' % s(sRelu))
    A('v_mov_b32 %s, %s' % (v(vA), v(vL16)))
    A('v_add_u32 %s, %d, %s' % (v(vA + 1), 64 * KB, v(vA)))
    verdict(A, 16, 18)
    grid_wait(A, 16, 17, cfg, [(0, 0xffff)])
    A('s_barrier')
    gstamp(A, cfg, 2, vOne)
    A('s_cmp_ge_u32 %s, 128' % s(sC_))
    A('s_cbranch_scc1 L_projv')
    A('s_lshl_b32 %s, %s, 10' % (s(sT1), s(sWAVE)))
    A('s_add_u32 %s, %s, %s' % (s(sDst), s(sDst), s(sT1)))
    A('s_add_u32 %s, %s, 4096' % (s(sDst2), s(sDst)))
    proj_loop(A, cfg, 'qk', True, 1)
    A('s_branch L_ffn1')
    A.label('L_projv')
    A('s_lshl_b32 %s, %s, 11' % (s(sT1), s(sWAVE)))
    A('s_add_u32 %s, %s, %s' % (s(sDst), s(sDst), s(sT1)))
    A('s_add_u32 %s, %s, 1024' % (s(sDst2), s(sDst)))
    proj_loop(A, cfg, 'v', False, 1)
    A.label('L_ffn1')
    gstamp(A, cfg, 3, vOne)
    A('s_cmp_ge_u32 %s, 168' % s(sC_))
    A('s_cbranch_scc1 L_final')
    A('s_mul_i32 s63, %s, 171' % s(sC_))
    A('s_lshr_b32 s63, s63, 10')
    A('s_mul_i32 %s, s63, 6' % s(sT1))
    A('s_sub_u32 %s, %s, %s' % (s(sProg), s(sC_), s(sT1)))
    A('s_cmp_lt_u32 %s, 4' % s(sProg))
    A('s_cselect_b32 %s, 10, 9' % s(sIt))
    srd(A, sSA, sW1, 1024 * 7168)
    A('s_lshl_b32 %s, s63, 8' % s(sT1))
    A('s_lshl_b32 %s, %s, 6' % (s(sT2), s(sWAVE)))
    A('s_add_u32 %s, %s, %s' % (s(sT2), s(sT2), s(sT1)))
    dense_offsets(A, vPair, True, 7168, sT2)
    weight_loader(A, proj_ops(7168), vRes, vSp)
    A('s_mul_i32 %s, %s, %d' % (s(sDst), s(sProg), 224 * KB))
    A('s_lshl_b32 %s, s63, 13' % s(sT1))
    A('s_add_u32 %s, %s, %s' % (s(sDst), s(sDst), s(sT1)))
    A('s_lshl_b32 %s, %s, 11' % (s(sT1), s(sWAVE)))
    A('s_add_u32 %s, %s, %s' % (s(sDst), s(sDst), s(sT1)))
    A('s_add_u32 %s, %s, %s' % (s(sDst), s(sDst), hx(HF)))
    A('s_add_u32 %s, %s, 1024' % (s(sDst2), s(sDst)))
    A('s_mov_b32 %s, %d' % (s(sDstep), 6 * 224 * KB))
    src(sProg)
    A('s_mov_b32 %s, %d' % (s(sSstep), 384 * KB - 24 * KB))
    A('s_mov_b32 %s, 0' % s(sRelu))
    A('s_barrier')
    proj_loop(A, cfg, 'h', True, 0)
    A.label('L_final')
    gstamp(A, cfg, 4, vOne)
    A('s_waitcnt vmcnt(0)')
    A('s_barrier')
    counter_arrive(A, 128)
    final_phase(A, cfg)
    A.flush_tail()
```

```python
import sys
from asmlib import *
from layout import *
import chain
from chain import *

NAME = 'parallel_sum__memory_aug_recurrent_mem_tr__dense_activation_relu__prompt_kernel'
HDR = open('parallel_sum__memory_aug_recurrent_mem_tr__dense_activation_relu__prompt.s.ref').read().split('; Override launch')[0]


class Cfg:
    chain_only = False
    gemm_only = False
    profile = False
    dbgt = False
    stamps = ()
    nsteps = 64
    nchain = 64
    ngemm = 192
    poll2 = True
    hint = True
    osleep = 0
    qsleep = 0
    rsleep = (6,)
    dupmask = 31
    nrep = 1
    near = True
    depth = 4
    vdepth = 2
    odepth = 4
    ringat = 4
    mring = 0
    vmat = 2
    dmagap = 0
    oup = 5
    kat = 10
    pf = 'o'
    nt = ''
    even = 0
    qal = 0
    val = 0
    xmap = 0x76543210
    otail = False
    prewin = 0
    codepf = False
    adelay = (0, 1, 5, 9)
    nokv = False
    nokm = False
    resetsleep = 2
    rt = False
    pwave = 2


def build(cfg):
    A = Asm()
    A('s_cmp_ge_u32 s2, 256')
    A('s_cbranch_scc1 L_end')
    A('s_load_dwordx8 s[4:11], s[0:1], 0')
    A('s_load_dwordx4 s[12:15], s[0:1], 32')
    A('s_load_dwordx4 s[16:19], s[0:1], 64')
    A('s_load_dwordx4 s[20:23], s[0:1], 80')
    A('s_load_dwordx2 s[24:25], s[0:1], 96')
    A('v_lshrrev_b32 v1, 6, v0')
    A('v_and_b32 v0, 63, v0')
    A('s_getreg_b32 %s, hwreg(HW_REG_XCC_ID, 0, 4)' % s(sXCC))
    A('v_readfirstlane_b32 %s, v1' % s(sWAVE))
    A('s_mov_b32 %s, 0x100000' % s(sBUD))
    if cfg.codepf:
        A('s_getpc_b64 s[34:35]')
        A.label('L_pc')
        A('s_lshr_b32 s32, s2, 3')
        A('s_lshl_b32 s32, s32, 2')
        A('s_add_u32 s32, s32, %s' % s(sWAVE))
        A('s_lshl_b32 s32, s32, 10')
        A('s_min_u32 s32, s32, L_end-L_pc-1024')
        A('v_lshl_add_u32 v1, v0, 4, s32')
        A('global_load_dwordx4 v[252:255], v1, s[34:35]')
    A('s_waitcnt lgkmcnt(0)')
    srd(A, sWS, sWSP, WS_BYTES // 2)
    A('s_sub_u32 %s, %s, s2' % (s(sROT), s(sXCC)))
    A('s_and_b32 %s, %s, 7' % (s(sROT), s(sROT)))
    A('s_lshl_b32 %s, %s, 2' % (s(sT0), s(sXCC)))
    A('s_lshr_b32 %s, %s, %s' % (s(sGRP), hx(cfg.xmap), s(sT0)))
    A('s_and_b32 %s, %s, 7' % (s(sGRP), s(sGRP)))
    A('s_mov_b32 %s, 1' % s(sLOCAL))
    A('s_branch L_role')
    A.label('L_byid')
    A('s_waitcnt vmcnt(0) lgkmcnt(0)')
    A('s_barrier')
    A('s_and_b32 %s, s2, 7' % s(sGRP))
    A('s_mov_b32 %s, 0' % s(sLOCAL))
    A('s_add_u32 %s, %s, %s' % (s(sWS), s(sWS), hx(WS_BYTES // 2)))
    A('s_addc_u32 %s, %s, 0' % (s(sWS + 1), s(sWS + 1)))
    A('s_add_u32 %s, %s, 8' % (s(sDBG), s(sDBG)))
    A('s_addc_u32 %s, %s, 0' % (s(sDBG + 1), s(sDBG + 1)))
    A.label('L_role')
    A('s_lshr_b32 %s, s2, 3' % s(sJ))
    if cfg.profile or cfg.dbgt:
        A('s_andn2_b32 %s, s2, 7' % s(sWGV))
        A('s_or_b32 %s, %s, %s' % (s(sWGV), s(sWGV), s(sGRP)))
    A('s_cmp_ge_u32 %s, 2' % s(sGRP))
    A('s_cbranch_scc1 L_gemm')
    if cfg.gemm_only:
        verdict_arrive(A, 1, 2)
        A('s_branch L_end')
    else:
        A('s_cmp_lt_u32 %s, 16' % s(sJ))
        A('s_cbranch_scc1 L_qk')
        A('s_sub_u32 %s, %s, 16' % (s(sJ), s(sJ)))
        gen_vo(A, cfg)
        gen_qk(A, cfg)
    A.label('L_gemm')
    if not cfg.chain_only:
        import gemm
        gemm.gen_gemm(A, cfg)
    else:
        verdict_arrive(A, 1, 2)
    A.label('L_end')
    A('s_endpgm')
    if cfg.even:
        import evenpass
        A.lines = evenpass.run(A.lines, cfg.even)
    A.lines = [l for l in A.lines if l not in (';even', ';endeven')]
    txt = HDR + '; @launch grid=(256,1,1) block=(256,1,1) lds=163840\n'
    txt += '.amdgcn_target "amdgcn-amd-amdhsa--gfx950"\n.text\n.globl %s\n.p2align 8\n.type %s,@function\n%s:\n' % (NAME, NAME, NAME)
    txt += A.text()
    txt += '''.section .rodata,"a"
.p2align 6
.amdhsa_kernel %s
  .amdhsa_next_free_vgpr 512
  .amdhsa_next_free_sgpr 102
  .amdhsa_accum_offset 256
  .amdhsa_group_segment_fixed_size 0
  .amdhsa_kernarg_size 104
  .amdhsa_user_sgpr_count 2
  .amdhsa_user_sgpr_kernarg_segment_ptr 1
  .amdhsa_system_sgpr_workgroup_id_x 1
  .amdhsa_float_denorm_mode_32 3
.end_amdhsa_kernel
''' % NAME
    return txt


if __name__ == '__main__':
    cfg = Cfg()
    out = sys.argv[1]
    for kv in sys.argv[2:]:
        k, val = kv.split('=')
        setattr(cfg, k, eval(val))
    if cfg.chain_only:
        cfg.ngemm = 0
    if cfg.gemm_only:
        cfg.nchain = 0
    open(out, 'w').write(build(cfg))
```
